```python
import torch

def _softmax(x, axis=-1):
    return torch.softmax(x, dim=axis)
def _gelu(x):
    return torch.nn.functional.gelu(x, approximate="tanh")
def _silu(x):
    return torch.nn.functional.silu(x)
def _sigmoid(x):
    return torch.sigmoid(x)
def _layernorm(x, axis=-1, eps=1e-5):
    m = x.mean(dim=axis, keepdim=True)
    v = x.var(dim=axis, keepdim=True, unbiased=False)
    return (x - m) / torch.sqrt(v + eps)
def _scatter_add(tgt, idx, src, axis=0):
    return tgt.clone().index_add_(axis, idx, src)
def _segment_sum(src, seg, n):
    out = torch.zeros((n,) + src.shape[1:], dtype=src.dtype)
    return out.index_add_(0, seg, src)
def _pad(x, pw):
    flat = tuple(v for pair in reversed(pw) for v in pair)
    return torch.nn.functional.pad(x, flat)

kernel_name = 'recurrent_scan__linear_kernel_hedgehog__glu_gated_geglu__prompt'

def setup_inputs():

    _w = (lambda a: (lambda t: t.to(torch.bfloat16) if t.is_floating_point() else t)(torch.as_tensor(a)))
    def _A_setup():
        B, S, D, H = 1, 2048, 640, 32
        Dh = D // H
        return {
            "x": _w((lambda *s: torch.randn(*s, dtype=torch.bfloat16) * 0.05)(B, S, D)),
            "wqkv": _w((lambda *s: torch.randn(*s, dtype=torch.bfloat16) * 0.8)(D, 3 * D)),
            "w_phi": _w((lambda *s: torch.randn(*s, dtype=torch.bfloat16) * 0.8)(H, Dh, Dh) * (Dh ** -0.5)),
            "wo": _w((lambda *s: torch.randn(*s, dtype=torch.bfloat16) * 0.8)(D, D)),
        }
    _A_in = _A_setup()

    def _B_setup():
        B, S, Dm, Df = 1, 2048, 640, 1728
        return {
            "x": _w((lambda *s: torch.randn(*s, dtype=torch.bfloat16) * 0.05)(B, S, Dm)),
            "w_gate": _w((lambda *s: torch.randn(*s, dtype=torch.bfloat16) * 0.2)(Dm, Df) * (Dm ** -0.5)),
            "w_up": _w((lambda *s: torch.randn(*s, dtype=torch.bfloat16) * 0.2)(Dm, Df) * (Dm ** -0.5)),
            "w_down": _w((lambda *s: torch.randn(*s, dtype=torch.bfloat16) * 0.2)(Df, Dm) * (Df ** -0.5)),
        }
    _B_in = _B_setup()

    return {
        "A_x": _A_in["x"],
        "A_wqkv": _A_in["wqkv"],
        "A_w_phi": _A_in["w_phi"],
        "A_wo": _A_in["wo"],
        "B_x": _B_in["x"],
        "B_w_gate": _B_in["w_gate"],
        "B_w_up": _B_in["w_up"],
        "B_w_down": _B_in["w_down"],
    }

def reference(A_x, A_wqkv, A_w_phi, A_wo, B_x, B_w_gate, B_w_up, B_w_down):
    def _A_ref(x, wqkv, w_phi, wo):
        B, S, D = x.shape
        H = 32; Dh = D // H
        qkv = (lambda x, *d: x.permute(*d))((x @ wqkv).reshape(B, S, 3, H, Dh), 2, 0, 3, 1, 4)
        q, k, v = qkv[0], qkv[1], qkv[2]
        pq = torch.einsum("bhsd,hdf->bhsf", q, w_phi)
        pk = torch.einsum("bhsd,hdf->bhsf", k, w_phi)
        phi_q = torch.concatenate([_softmax(pq, axis=-1), _softmax(-pq, axis=-1)], axis=-1)
        phi_k = torch.concatenate([_softmax(pk, axis=-1), _softmax(-pk, axis=-1)], axis=-1)
        kv = torch.einsum("bhsf,bhsd->bhfd", phi_k, v)
        z  = torch.einsum("bhsf->bhf", phi_k)
        num = torch.einsum("bhqf,bhfd->bhqd", phi_q, kv)
        den = torch.einsum("bhqf,bhf->bhq", phi_q, z)[..., None] + 1e-6
        o = num / den
        return (lambda x, *d: x.permute(*d))(o, 0, 2, 1, 3).reshape(B, S, D) @ wo

    def _B_ref(x, w_gate, w_up, w_down):
        g = torch.einsum("bsd,df->bsf", x, w_gate)
        u = torch.einsum("bsd,df->bsf", x, w_up)
        h = _gelu(g) * u
        return torch.einsum("bsf,fd->bsd", h, w_down)

    x = A_x
    xn = _layernorm(x, axis=-1)
    s = _A_ref(xn, A_wqkv, A_w_phi, A_wo)
    g = _silu(_B_ref(xn, B_w_gate, B_w_up, B_w_down))
    return x + s * g
```

```python
import re

TRANS = ("v_exp_f32", "v_log_f32", "v_rcp_f32", "v_rsq_f32", "v_sqrt_f32", "v_sin_f32", "v_cos_f32")

def regs_of(op):
    op = op.strip()
    neg = op.startswith("-")
    if neg: op = op[1:]
    if op.startswith("abs(") : op = op[4:-1]
    if op.startswith("|"): op = op.strip("|")
    m = re.fullmatch(r"([vas])\[(\d+):(\d+)\]", op)
    if m: return [(m.group(1), i) for i in range(int(m.group(2)), int(m.group(3)) + 1)]
    m = re.fullmatch(r"([vas])(\d+)", op)
    if m: return [(m.group(1), int(m.group(2)))]
    if op in ("vcc", "exec", "m0", "scc", "vcc_lo", "vcc_hi", "exec_lo", "exec_hi"):
        return [("x", op.split("_")[0])]
    return []

class I:
    __slots__ = ("text", "tag", "kind", "mn", "dst", "src", "passes", "srcC", "srcAB", "waits", "cost")
    def __init__(self, text, tag=None):
        self.text = text; self.tag = tag; self.waits = None
        self.parse()
    def parse(self):
        t = self.text.split(";")[0].strip()
        self.dst = []; self.src = []; self.passes = 0; self.srcC = []; self.srcAB = []
        if not t or t.endswith(":") or t.startswith("."):
            self.kind = "label" if t.endswith(":") else "dir"; self.mn = t; return
        parts = t.split(None, 1)
        mn = parts[0]; self.mn = mn
        rest = parts[1] if len(parts) > 1 else ""
        ops = [o.strip() for o in rest.split(",")] if rest else []
        clean = []
        for o in ops:
            clean.append(o.split()[0] if o else o)
        mods = rest.split()
        R = [regs_of(o) for o in clean]
        flat = lambda L: [r for x in L for r in x]
        if mn.startswith("v_mfma") or mn.startswith("v_smfmac"):
            self.kind = "mfma"
            self.passes = 8 if "32x32" in mn else (4 if "16x16" in mn else 2)
            self.dst = R[0]; self.srcAB = R[1] + R[2]; self.srcC = R[3]; self.src = self.srcAB + self.srcC
        elif mn.startswith("ds_read") or mn.startswith("ds_bpermute") or mn.startswith("ds_permute") or mn.startswith("ds_swizzle"):
            self.kind = "dsr"; self.dst = R[0]; self.src = flat(R[1:])
        elif mn.startswith("ds_write") or mn.startswith("ds_add"):
            self.kind = "dsw"; self.src = flat(R)
        elif mn.startswith("buffer_load") or mn.startswith("global_load"):
            if "lds" in mods or "_lds_" in mn:
                self.kind = "dma"; self.src = flat(R) + [("x", "m0")]
            else:
                self.kind = "vld"; self.dst = R[0]; self.src = flat(R[1:])
        elif mn.startswith("buffer_store") or mn.startswith("global_store"):
            self.kind = "vst"; self.src = flat(R)
        elif mn.startswith("buffer_atomic") or mn.startswith("global_atomic"):
            self.kind = "vst"; self.src = flat(R)
            if "sc0" in mods: self.dst = R[0]
        elif mn in ("buffer_wbl2", "buffer_inv"):
            self.kind = "vst"
        elif mn.startswith("s_load") or mn.startswith("s_buffer_load") or mn in ("s_memtime", "s_memrealtime"):
            self.kind = "smem"; self.dst = R[0]; self.src = flat(R[1:])
        elif mn == "s_waitcnt": self.kind = "wait"
        elif mn == "s_barrier": self.kind = "barrier"
        elif mn == "s_nop": self.kind = "nop"
        elif mn.startswith("s_cbranch") or mn in ("s_branch", "s_endpgm", "s_setpc_b64", "s_swappc_b64"):
            self.kind = "branch"; self.src = flat(R)
        elif mn.startswith("s_"):
            self.kind = "salu"
            if mn.startswith("s_cmp") or mn in ("s_sleep", "s_setprio", "s_bitcmp0_b32", "s_bitcmp1_b32"):
                self.src = flat(R)
            else:
                self.dst = R[0]; self.src = flat(R[1:])
                if "saveexec" in mn: self.dst = self.dst + [("x", "exec")]
        elif mn.startswith("v_"):
            base = mn.replace("_e32", "").replace("_e64", "").replace("_dpp", "").replace("_sdwa", "")
            self.kind = "trans" if base in TRANS else "valu"
            self.dst = R[0]; self.src = flat(R[1:])
            if base.startswith("v_permlane") and "swap" in base:
                self.dst = R[0] + R[1]; self.src = R[0] + R[1]
            if base in ("v_fmac_f32", "v_dot2c_f32_bf16", "v_pk_fmac_f16") or "_dpp" in mn or "row_" in rest or "quad_perm" in rest:
                self.src = self.src + R[0]
            if base.startswith("v_add_co") or base.startswith("v_addc_co") or base.startswith("v_sub_co"):
                self.dst = R[0] + R[1]; self.src = flat(R[2:])
            if base == "v_cndmask_b32" and len(R) == 3: self.src = self.src + [("x", "vcc")]
        else:
            raise ValueError("unknown instr: " + self.text)

class Prog:
    def __init__(self):
        self.ins = []
    def __call__(self, text, tag=None):
        for line in text.split("\n"):
            if line.strip():
                self.ins.append(I(line.strip(), tag))
        return self
    def add(self, i): self.ins.append(i)
    def wait(self, vm=None, lgkm=None):
        self.ins.append(mkwait(vm, lgkm))
    def label(self, name): self.ins.append(I(name + ":"))

def mkwait(vm=None, lgkm=None):
    i = I("s_waitcnt vmcnt(0)"); i.waits = (vm, lgkm); return i

def resolve_waits(ins):
    out = []
    vmq = []; lgq = []
    vm_done = 0; lg_done = 0
    smem_out = False
    for i in ins:
        if i.waits is not None:
            vm, lg = i.waits
            parts = []
            if vm is not None:
                if vm == 0 and isinstance(vm, int): need = len(vmq)
                else:
                    tags = vm if isinstance(vm, list) else [vm]
                    need = 0
                    for t in tags:
                        idx = [k for k, x in enumerate(vmq) if x == t]
                        assert idx, f"vm tag {t} not issued before its wait"
                        need = max(need, idx[-1] + 1)
                if need > vm_done:
                    n = len(vmq) - need
                    n = min(n, 63)
                    parts.append(f"vmcnt({n})"); vm_done = len(vmq) - n
            if lg is not None:
                if lg == 0 and isinstance(lg, int): need = len(lgq)
                else:
                    tags = lg if isinstance(lg, list) else [lg]
                    need = 0
                    for t in tags:
                        idx = [k for k, x in enumerate(lgq) if x == t]
                        assert idx, f"lgkm tag {t} not issued before its wait"
                        need = max(need, idx[-1] + 1)
                if need > lg_done:
                    n = len(lgq) - need
                    if smem_out: n = 0
                    n = min(n, 15)
                    parts.append(f"lgkmcnt({n})"); lg_done = len(lgq) - n
                    if n == 0: smem_out = False
            if parts:
                out.append(I("s_waitcnt " + " ".join(parts)))
            continue
        if i.kind in ("vld", "vst", "dma"): vmq.append(i.tag)
        elif i.kind in ("dsr", "dsw"): lgq.append(i.tag)
        elif i.kind == "smem": lgq.append(i.tag); smem_out = True
        elif i.kind == "wait":
            m = re.search(r"vmcnt\((\d+)\)", i.text)
            if m: vm_done = max(vm_done, len(vmq) - int(m.group(1)))
            m = re.search(r"lgkmcnt\((\d+)\)", i.text)
            if m:
                if not smem_out or int(m.group(1)) == 0:
                    lg_done = max(lg_done, len(lgq) - int(m.group(1)))
                if int(m.group(1)) == 0: smem_out = False
        out.append(i)
    return out

def states(i):
    if i.kind in ("label", "dir"): return 0
    if i.kind == "nop": return int(i.text.split()[1], 0) + 1
    return 1

def need_states(p, c):
    ov = lambda a, b: bool(set(a) & set(b))
    n = 0
    pv = p.kind in ("valu", "trans")
    cv = c.kind in ("valu", "trans")
    if pv:
        vd = [r for r in p.dst if r[0] in "va"]
        sd = [r for r in p.dst if r[0] in "sx"]
        if c.kind == "mfma" and ov(vd, c.src): n = max(n, 2)
        if p.kind == "trans" and c.kind == "valu" and ov(vd, c.src): n = max(n, 1)
        if cv and ("permlane" in c.mn or "dpp" in c.mn or "row_" in c.text or "quad_perm" in c.text) and ov(vd, c.src): n = max(n, 2)
        if cv and ("readlane" in c.mn or "readfirstlane" in c.mn) and ov(vd, c.src): n = max(n, 1)
        if cv and ov(sd, c.src): n = max(n, 4 if ("readlane" in c.mn or "writelane" in c.mn) else 2)
        if c.kind in ("vld", "vst", "dma") and ov(sd, c.src): n = max(n, 5)
        if c.kind in ("salu", "branch", "smem") and ov(sd, c.src): n = max(n, 2)
        if p.mn.startswith("v_dot") and (ov(vd, c.src) or ov(vd, c.dst)):
            same = c.mn == p.mn and ov(vd, c.dst) and not ov(vd, [r for r in c.src if r not in c.dst])
            if not same: n = max(n, 3)
        if ("sdwa" in p.mn or "op_sel" in p.text) and cv and ov(vd, c.src): n = max(n, 1)
        if ("x", "vcc") in p.dst and c.kind == "branch" and "vcc" in c.mn: n = max(n, 5)
    if p.kind == "mfma":
        big = {8: 12, 4: 8, 2: 5}[p.passes]
        if c.kind == "mfma":
            if ov(p.dst, c.srcAB): n = max(n, big)
            if ov(p.dst, c.srcC):
                if not (p.dst == c.srcC and p.passes == c.passes): n = max(n, {8: 10, 4: 6, 2: 4}[p.passes])
                elif p.passes == 2: n = max(n, 2)
            if ov(p.dst, c.dst) and p.passes != c.passes: n = max(n, big)
        elif cv:
            if ov(p.dst, c.src) or ov(p.dst, c.dst): n = max(n, big)
            if ov(p.srcC, c.dst): n = max(n, {8: 7, 4: 3, 2: 1}[p.passes])
        elif c.kind in ("vld", "vst", "dma", "dsr", "dsw"):
            if ov(p.dst, c.src) or ov(p.dst, c.dst): n = max(n, big)
            if ov(p.srcC, c.dst): n = max(n, {8: 7, 4: 3, 2: 1}[p.passes])
    if p.kind == "vst" and ("x4" in p.mn or "x3" in p.mn):
        if ov([r for r in p.src if r[0] in "va"], c.dst): n = max(n, 2)
    if p.kind == "salu" and ("x", "m0") in p.dst and c.kind == "dma": n = max(n, 1)
    return n

def fix_hazards(ins, verbose=False):
    out = []
    nn = 0
    for c in ins:
        if c.kind in ("label", "dir"):
            out.append(c); continue
        need = 0; dist = 0
        for p in reversed(out):
            if dist >= 20: break
            r = need_states(p, c) - dist
            if r > need: need = r
            dist += states(p)
        while need > 0:
            k = min(need, 16)
            out.append(I(f"s_nop {k-1}")); need -= k; nn += 1
        out.append(c)
    if verbose: print("nops inserted:", nn)
    return out

def finalize(ins, verbose=False):
    ins = resolve_waits(ins)
    ins = fix_hazards(ins, verbose)
    return "\n".join(("" if i.kind == "label" else "    ") + i.text for i in ins) + "\n"

def vr(b, n=1, f="v"):
    return f"{f}{b}" if n == 1 else f"{f}[{b}:{b+n-1}]"
def ar(b, n=1): return vr(b, n, "a")
def sr(b, n=1): return vr(b, n, "s")
```

```python
from asmlib import *
from layout import *
import struct
def f2u(x): return struct.unpack("<I", struct.pack("<f", x))[0]
def fx(x): return "0x%08x" % f2u(x)
LOG2E = 1.4426950408889634

def srd(p, d, lo, size, add=0):
    if add > 0:
        p(f"s_add_u32 s{d}, s{lo}, {add}\ns_addc_u32 s{d+1}, s{lo+1}, 0")
    elif add < 0:
        p(f"s_sub_u32 s{d}, s{lo}, {-add}\ns_subb_u32 s{d+1}, s{lo+1}, 0")
    else:
        p(f"s_mov_b32 s{d}, s{lo}\ns_mov_b32 s{d+1}, s{lo+1}")
    p(f"s_mov_b32 s{d+2}, {size - add}\ns_mov_b32 s{d+3}, 0x20000")

def kernel_text(name, body, vgpr, agpr, sgpr=100):
    acc = (vgpr + 3) // 4 * 4
    nfv = acc + agpr if agpr else vgpr
    head = f".text\n.globl {name}\n.p2align 8\n.type {name},@function\n{name}:\n"
    desc = f""".section .rodata,"a"
.p2align 6
.amdhsa_kernel {name}
  .amdhsa_next_free_vgpr {nfv}
  .amdhsa_next_free_sgpr {sgpr}
  .amdhsa_accum_offset {acc}
  .amdhsa_group_segment_fixed_size 0
  .amdhsa_kernarg_size 88
  .amdhsa_user_sgpr_count 2
  .amdhsa_user_sgpr_kernarg_segment_ptr 1
  .amdhsa_system_sgpr_workgroup_id_x 1
  .amdhsa_float_denorm_mode_32 3
.end_amdhsa_kernel
"""
    return head + body, desc

def swap2(c): return ((c & 1) << 1) | (c >> 1)

def wphi_table(zero_off):
    tab = []
    for P in range(2):
        for s in range(3):
            for tau in range(2):
                for i in range(2):
                    row = []
                    for l in range(64):
                        G = l >> 4; r = (l & 15) >> 2; c = l & 3
                        hhk = G >> 1; q = 4 * (G & 1) + c
                        hd = q & 1; rho = q >> 1
                        f0 = 16 * tau + 4 * rho
                        head = 2 * P + hd
                        col = 16 * (2 * P + s) + 8 * hhk + 4 * i + r
                        if col // 20 == head and f0 < 20:
                            row.append(head * 800 + (col % 20) * 40 + f0 * 2)
                        else:
                            row.append(zero_off)
                    tab.append(row)
    return tab

def softmax_pair(P, EP, OUT, T):
    o = []
    mx, mn, sp, sn, sp2, sn2 = T
    o.append(f"v_max3_f32 v{mx}, v{P[0]}, v{P[1]}, v{P[2]}")
    o.append(f"v_min3_f32 v{mn}, v{P[0]}, v{P[1]}, v{P[2]}")
    for i in range(3, 19, 2):
        o.append(f"v_max3_f32 v{mx}, v{mx}, v{P[i]}, v{P[i+1]}")
        o.append(f"v_min3_f32 v{mn}, v{mn}, v{P[i]}, v{P[i+1]}")
    o.append(f"v_max_f32 v{mx}, v{mx}, v{P[19]}")
    o.append(f"v_min_f32 v{mn}, v{mn}, v{P[19]}")
    for i in range(20):
        o.append(f"v_sub_f32 v{EP[i]}, v{P[i]}, v{mx}")
        o.append(f"v_sub_f32 v{P[i]}, v{mn}, v{P[i]}")
        o.append(f"v_exp_f32 v{EP[i]}, v{EP[i]}")
        o.append(f"v_exp_f32 v{P[i]}, v{P[i]}")
        if i == 2:
            o.append(f"v_add_f32 v{sp}, v{EP[0]}, v{EP[1]}")
            o.append(f"v_add_f32 v{sn}, v{P[0]}, v{P[1]}")
        elif i > 2:
            o.append(f"v_add_f32 v{sp}, v{sp}, v{EP[i-1]}")
            o.append(f"v_add_f32 v{sn}, v{sn}, v{P[i-1]}")
    o.append(f"v_add_f32 v{sp}, v{sp}, v{EP[19]}")
    o.append(f"v_add_f32 v{sn}, v{sn}, v{P[19]}")
    o.append(f"v_rcp_f32 v{sp}, v{sp}")
    o.append(f"v_rcp_f32 v{sn}, v{sn}")
    allv = [(EP[i], sp) for i in range(20)] + [(P[i], sn) for i in range(20)]
    for j in range(20):
        a, sa = allv[2 * j]; b, sb = allv[2 * j + 1]
        o.append(f"v_mul_f32 v{a}, v{a}, v{sa}")
        o.append(f"v_mul_f32 v{b}, v{b}, v{sb}")
        o.append(f"v_cvt_pk_bf16_f32 v{OUT + j}, v{a}, v{b}")
    return o
```

```python
from common import *

def gen_k0(name="k0_kernel"):
    p = Prog()
    p("s_cmp_ge_u32 s2, 256\ns_cbranch_scc1 K0_end")
    p(f"s_load_dwordx2 s[20:21], s[0:1], {KA_X}")
    p(f"s_load_dwordx2 s[22:23], s[0:1], {KA_WO}")
    p(f"s_load_dwordx2 s[24:25], s[0:1], {KA_WD}")
    p(f"s_load_dwordx2 s[26:27], s[0:1], {KA_WS}")
    p("v_lshrrev_b32 v1, 6, v0\nv_and_b32 v0, 63, v0\nv_readfirstlane_b32 s3, v1")
    p("s_waitcnt lgkmcnt(0)")
    srd(p, 4, 20, X_SZ); srd(p, 12, 26, WS_TOTAL)
    p("s_cmp_eq_u32 s3, 4\ns_cbranch_scc1 K0_ln")
    p("s_cmp_ge_u32 s2, 148\ns_cbranch_scc1 K0_end")
    p("s_lshr_b32 s28, s2, 1\ns_and_b32 s29, s2, 1\ns_lshl_b32 s29, s29, 2\ns_add_u32 s29, s29, s3")
    p("s_cmp_lt_u32 s28, 20")
    p("s_cselect_b32 s8, s22, s24\ns_cselect_b32 s9, s23, s25")
    p(f"s_mov_b32 s10, {WD_SZ}\ns_cselect_b32 s10, {WO_SZ}, s10\ns_mov_b32 s11, 0x20000")
    p("s_cselect_b32 s30, 0, 20\ns_sub_u32 s30, s28, s30")
    p("s_mul_i32 s30, s30, 40960\ns_mul_i32 s31, s29, 160\ns_add_u32 s30, s30, s31")
    p("s_mul_i32 s32, s3, 5120")
    p("s_movk_i32 s33, 6554")
    for i in range(5):
        p(f"v_add_u32 v2, {64*i}, v0\nv_mul_u32_u24 v3, s33, v2\nv_lshrrev_b32 v3, 16, v3")
        p("v_mul_u32_u24 v4, 10, v3\nv_sub_u32 v4, v2, v4")
        p("v_mul_u32_u24 v3, 1280, v3\nv_lshl_add_u32 v3, v4, 4, v3")
        p(f"s_add_u32 m0, s32, {1024*i}")
        p("buffer_load_dwordx4 v3, s[8:11], s30 offen lds", tag="w")
    p("v_lshrrev_b32 v2, 4, v0\nv_bfe_u32 v3, v0, 2, 2\nv_lshl_add_u32 v2, v2, 3, v3\nv_mul_u32_u24 v2, 160, v2")
    p("v_and_b32 v3, 3, v0\nv_lshl_add_u32 v2, v3, 3, v2\nv_add_u32 v2, s32, v2")
    p("v_lshlrev_b32 v5, 4, v0")
    p(f"s_mul_i32 s34, s29, 74\ns_add_u32 s34, s34, s28\ns_mul_i32 s34, s34, 5120\ns_add_u32 s34, s34, {W2P}\ns_add_u32 s35, s34, 4096")
    p.wait(vm="w")
    for nt in range(5):
        for i in range(2):
            p(f"ds_read_b64_tr_b16 v[{8+4*nt+2*i}:{9+4*nt+2*i}], v2 offset:{640*i + 32*nt}", tag=("r", nt))
    for nt in range(5):
        p.wait(lgkm=("r", nt))
        if nt < 4: p(f"buffer_store_dwordx4 v[{8+4*nt}:{11+4*nt}], v5, s[12:15], s34 offen offset:{1024*nt}")
        else: p(f"buffer_store_dwordx4 v[{8+4*nt}:{11+4*nt}], v5, s[12:15], s35 offen")
    p("s_endpgm")
    body1 = finalize(p.ins)
    p = Prog()
    p.label("K0_ln")
    p("v_and_b32 v1, 7, v0\nv_lshrrev_b32 v2, 3, v0")
    p("v_mul_u32_u24 v3, 1280, v1\nv_lshl_add_u32 v3, v2, 4, v3")
    p("s_mul_i32 s28, s2, 10240")
    for i in range(10):
        p(f"buffer_load_dwordx4 v[{8+4*i}:{11+4*i}], v3, s[4:7], s28 offen offset:{128*i}", tag=("x", i))
    p("v_mov_b32 v4, 0x3f803f80\nv_mov_b32 v50, 0\nv_mov_b32 v51, 0")
    p("v_lshlrev_b32 v5, 9, v2\nv_lshl_add_u32 v5, v1, 4, v5")
    p(f"s_lshr_b32 s29, s2, 2\ns_mul_i32 s29, s29, 40960\ns_and_b32 s30, s2, 3\ns_lshl_b32 s30, s30, 7\ns_add_u32 s29, s29, s30\ns_add_u32 s29, s29, {XF}")
    for i in range(10):
        p.wait(vm=("x", i))
        for j in range(4):
            r = 8 + 4 * i + j
            p(f"v_dot2c_f32_bf16 v50, v{r}, v4\nv_dot2c_f32_bf16 v51, v{r}, v{r}")
    for a in (50, 51):
        p(f"v_add_f32_dpp v{a}, v{a}, v{a} row_ror:8 row_mask:0xf bank_mask:0xf")
        p(f"v_mov_b32 v52, v{a}\nv_permlane16_swap_b32 v{a}, v52\nv_add_f32 v{a}, v{a}, v52")
        p(f"v_mov_b32 v52, v{a}\nv_permlane32_swap_b32 v{a}, v52\nv_add_f32 v{a}, v{a}, v52")
    p(f"v_mul_f32 v50, {fx(1/640)}, v50\nv_mul_f32 v51, {fx(1/640)}, v51")
    p("v_fma_f32 v51, -v50, v50, v51\nv_max_f32 v51, 0, v51")
    p("v_cvt_pk_bf16_f32 v52, v50, v51\nv_lshlrev_b32 v50, 16, v52\nv_and_b32 v51, 0xffff0000, v52")
    p(f"v_add_f32 v51, {fx(1e-5)}, v51\nv_cvt_pk_bf16_f32 v51, v51, v51\nv_lshlrev_b32 v51, 16, v51")
    p("v_sqrt_f32 v51, v51\nv_cvt_pk_bf16_f32 v51, v51, v51\nv_lshlrev_b32 v51, 16, v51\nv_rcp_f32 v51, v51")
    p("v_mul_f32 v50, v50, v51\nv_mov_b32 v55, 0xffff0000")
    for i in range(10):
        for j in range(4):
            r = 8 + 4 * i + j
            p(f"v_lshlrev_b32 v53, 16, v{r}\nv_and_b32 v54, v55, v{r}")
            p(f"v_fma_f32 v53, v53, v51, -v50\nv_fma_f32 v54, v54, v51, -v50\nv_cvt_pk_bf16_f32 v{r}, v53, v54")
        p(f"buffer_store_dwordx4 v[{8+4*i}:{11+4*i}], v5, s[12:15], s29 offen")
        p("s_add_u32 s29, s29, 4096")
    p.label("K0_end")
    p("s_endpgm")
    return kernel_text(name, body1 + finalize(p.ins), 56, 0, 40)
```

```python
from common import *

S_G, S_U, S_QA, S_QB, S_WS, S_PH = 4, 8, 12, 16, 20, 24
S_PTR = 28
S_W, S_RB, S_TG, S_ROT, S_GP = 40, 41, 42, 43, 44
S_SO, S_BEG, S_END = 46, 50, 54
S_LW4, S_LW5 = 58, 59
S_ST = 60
S_T = 70
ACCA, ACCB, FR = 0, 80, 160
V_DG, V_DQ, V_D5 = 200, 202, 204
V_L16 = 209
V_RD = 210
V_R5 = 214
V_C0, V_C1, V_IR2, V_R, V_RL = 216, 217, 218, 219, 220
V_T = 224
PHI = 81920; PHI_S = 336
VL = PHI + 128 * PHI_S; VL_S = 176
WPH = VL + 128 * VL_S
WPH_ZERO = 4096
LDS_TOTAL = WPH + 4096 + 64

def cost(i):
    if i.kind == "trans": return 2.0
    if i.kind == "mfma": return 0.0
    if i.waits is not None: return 0.5
    return 1.0

class Pass:
    def __init__(self, kind, acc, srdA, srdB, vd, step):
        self.kind = kind; self.nT = 5 if kind == "kv" else 4
        self.acc = acc; self.srdA = srdA; self.srdB = srdB; self.vd = vd; self.step = step

def emit_main(p, passes, slot_stride, fillers, cfg):
    NS = 10 * len(passes); N = 4 * NS
    def rd(n, t, i):
        s = n // 4; kk = n % 4; P = passes[s // 10]; slot = s % 4
        dst = FR + 20 * (n & 1) + 4 * t + 2 * i
        off = slot * slot_stride
        st = 0
        if slot_stride > 16384 and slot >= 2: st = 1; off -= 2 * slot_stride
        if P.kind == "kv":
            return I(f"ds_read_b64_tr_b16 v[{dst}:{dst+1}], v{V_R5+st} offset:{off + kk*5120 + i*1280 + t*64}", tag=("fr", n, t))
        return I(f"ds_read_b64_tr_b16 v[{dst}:{dst+1}], v{V_RD + 2*st + (t & 1)} offset:{off + kk*4096 + (t>>1)*2048 + i*512}", tag=("fr", n, t))
    def dma_pieces(s):
        pi = s // 10; P = passes[pi]; slot = s % 4; tag = ("st", s)
        so = S_SO + pi
        pcs = []
        if pi == 0:
            for kk in range(4):
                pc = [I(f"buffer_load_dwordx4 a[{16*s+4*kk}:{16*s+4*kk+3}], v{V_L16}, s[{S_WS}:{S_WS+3}], s{S_SO+3} offen offset:{1024*kk}", tag=tag)]
                if kk == 3 and s < 9:
                    pc += [I(f"s_add_u32 s{S_SO+3}, s{S_SO+3}, 4096"), I(f"s_cmp_eq_u32 s{S_SO+3}, s{S_END+3}"), I(f"s_cselect_b32 s{S_SO+3}, s{S_BEG+3}, s{S_SO+3}")]
                pcs.append(pc)
        w = []
        if P.kind == "kv":
            for i in range(5):
                pc = []
                if i == 0: pc.append(I(f"s_add_u32 m0, s{S_LW5}, {slot*slot_stride}"))
                if i == 4: pc.append(I(f"s_add_u32 m0, s{S_LW5}, {slot*slot_stride + 4096}"))
                pc.append(I(f"buffer_load_dwordx4 v{P.vd+i}, s[{P.srdA}:{P.srdA+3}], s{so} offen offset:{1024*(i&3)} lds", tag=tag))
                w.append(pc)
        else:
            for i in range(4):
                pc = []
                if i == 0: pc.append(I(f"s_add_u32 m0, s{S_LW4}, {slot*slot_stride}"))
                sr_ = P.srdA if i < 2 else P.srdB
                pc.append(I(f"buffer_load_dwordx4 v{P.vd+(i&1)}, s[{sr_}:{sr_+3}], s{so} offen offset:{1024*i} lds", tag=tag))
                w.append(pc)
        if s % 10 < 9:
            w[-1] += [I(f"s_add_u32 s{so}, s{so}, {P.step}"), I(f"s_cmp_eq_u32 s{so}, s{S_END+pi}"), I(f"s_cselect_b32 s{so}, s{S_BEG+pi}, s{so}")]
        out = []
        for i in range(max(len(pcs), len(w))):
            if i < len(w): out.append(w[i])
            if i < len(pcs): out.append(pcs[i])
        return out
    queue = [(s, pc) for s in range(NS) for pc in dma_pieces(s)]
    qi = 0
    while qi < len(queue) and queue[qi][0] < cfg["pro_stages"]:
        for i in queue[qi][1]: p.add(i)
        qi += 1
    for i in cfg.get("pre", []): p.add(i)
    p.wait(vm=("st", 0), lgkm=0)
    p("s_barrier")
    for t in range(passes[0].nT):
        for i in range(2): p.add(rd(0, t, i))
    gaps = []
    lastbar = -1
    for n in range(N):
        s = n // 4; kk = n % 4; P = passes[s // 10]; nT = P.nT
        row = []
        for t in range(nT):
            a = P.acc + 16 * t; fr = FR + 20 * (n & 1) + 4 * t; x = 4 * (n % 40)
            c = "0" if n % 40 == 0 else f"v[{a}:{a+15}]"
            g = dict(pre=[], post=[], mfma=I(f"v_mfma_f32_32x32x16_bf16 v[{a}:{a+15}], v[{fr}:{fr+3}], a[{x}:{x+3}], {c}"))
            if t in cfg["wait_at"]:
                nxt = [u for u in cfg["wait_at"] if u > t]
                last = (nxt[0] if nxt else nT) - 1
                g["pre"].append(mkwait(lgkm=("fr", n, min(last, nT - 1))))
            row.append(g)
        if kk == 3 and s + 1 < NS:
            row[0]["post"].append(mkwait(vm=("st", s + 1), lgkm=0))
            row[0]["post"].append(I("s_barrier"))
            lastbar = s
        if n + 1 < N:
            nT2 = passes[(n + 1) // 40].nT
            reads = [rd(n + 1, t, i) for t in range(nT2) for i in range(2)]
            dist = cfg["rd_dist5"] if nT2 == 5 else cfg["rd_dist4"]
            k = 0
            for t, cnt in enumerate(dist):
                row[min(t, nT - 1)]["post"] += reads[k:k + cnt]; k += cnt
            assert k == len(reads)
        rate = cfg["rate0"] if s < 10 else cfg["rate"]
        sel = []
        for r in range(rate):
            if qi < len(queue) and queue[qi][0] <= lastbar + 4 and queue[qi][0] <= s + cfg["depth0" if s < 8 else "depth"]:
                sel.append(queue[qi][1]); qi += 1
        for r, pc in enumerate(sel):
            row[nT - len(sel) + r]["post"] += pc
        gaps.append(row)
    assert qi == len(queue), (qi, len(queue))
    for (k0, k1, items) in fillers:
        cells = [g for n in range(k0, k1) for g in gaps[n]]
        if k0 % 4 == 3: pass
        base = [sum(cost(i) for i in g["post"]) + sum(cost(i) for i in g["pre"]) for g in cells]
        tot = sum(cost(i) for i in items)
        lo, hi = 0.0, 1000.0
        for _ in range(50):
            mid = (lo + hi) / 2
            if sum(max(0.0, mid - b) for b in base) >= tot: hi = mid
            else: lo = mid
        cap = 0.0; used = 0.0; k = 0
        for g, b in zip(cells, base):
            cap += max(0.0, hi - b)
            while k < len(items) and used + cost(items[k]) * 0.5 <= cap:
                g["post"].append(items[k]); used += cost(items[k]); k += 1
        cells[-1]["post"] += items[k:]
    for row in gaps:
        for g in row:
            for i in g["pre"]: p.add(i)
            p.add(g["mfma"])
            for i in g["post"]: p.add(i)

def epi_gu(acc, sst, T):
    o = []
    for half in range(2):
        for b in range(2):
            out = T + 16 + 4 * (b & 1)
            for pr in range(2):
                el = [8 * b + 4 * pr + e for e in range(4)]
                g = [acc + 16 * half + r for r in el]; u = [acc + 32 + 16 * half + r for r in el]
                t = [T + 4 * ((2 * b + pr) & 3) + e for e in range(4)]
                for e in range(4): o.append(f"v_mul_f32 v{t[e]}, v{g[e]}, v{g[e]}")
                for e in range(4): o.append(f"v_fma_f32 v{t[e]}, v{t[e]}, v{V_C1}, v{V_C0}")
                for e in range(4): o.append(f"v_mul_f32 v{t[e]}, v{t[e]}, v{g[e]}")
                for e in range(4):
                    o.append(f"v_exp_f32 v{t[e]}, v{t[e]}")
                    o.append(f"v_mul_f32 v{u[e]}, v{g[e]}, v{u[e]}")
                for e in range(4): o.append(f"v_fma_f32 v{t[e]}, v{t[e]}, v{V_IR2}, v{V_IR2}")
                for e in range(4): o.append(f"v_rcp_f32 v{t[e]}, v{t[e]}")
                for e in range(4): o.append(f"v_mul_f32 v{u[e]}, v{u[e]}, v{t[e]}")
                o.append(f"v_cvt_pk_bf16_f32 v{out+2*pr}, v{u[0]}, v{u[1]}")
                o.append(f"v_cvt_pk_bf16_f32 v{out+2*pr+1}, v{u[2]}, v{u[3]}")
            o.append(f"buffer_store_dwordx4 v[{out}:{out+3}], v{V_L16}, s[{S_WS}:{S_WS+3}], s{sst} offen offset:{(4*half+2*b)*512} STFLAG")
    return o

def epi_q(acc, sst, T):
    o = []
    for t in range(4):
        for b in range(2):
            out = T + 4 * ((2 * t + b) & 3)
            for e in range(8): o.append(f"v_mul_f32 v{acc+16*t+8*b+e}, v{V_RL}, v{acc+16*t+8*b+e}")
            for e in range(4): o.append(f"v_cvt_pk_bf16_f32 v{out+e}, v{acc+16*t+8*b+2*e}, v{acc+16*t+8*b+2*e+1}")
            o.append(f"buffer_store_dwordx4 v[{out}:{out+3}], v{V_L16}, s[{S_WS}:{S_WS+3}], s{sst + (t>>1)} offen offset:{(4*(t&1)+2*b)*512} STFLAG")
    return o

def mk(lst, cfg):
    out = []
    for x in lst:
        if isinstance(x, I): out.append(x)
        else: out.append(I(x.replace("STFLAG", cfg["stflag"]).rstrip()))
    return out

def gen_k1(cfg, name="k1_kernel"):
    p = Prog()
    p("s_cmp_ge_u32 s2, 256\ns_cbranch_scc1 K1_end")
    p(f"s_load_dwordx4 s[28:31], s[0:1], {KA_WQKV}")
    p(f"s_load_dwordx4 s[32:35], s[0:1], {KA_WG}")
    p(f"s_load_dwordx2 s[36:37], s[0:1], {KA_WS}")
    p(f"v_lshrrev_b32 v1, 6, v0\nv_and_b32 v0, 63, v0\nv_readfirstlane_b32 s{S_W}, v1")
    T = S_T
    p(f"s_and_b32 s{T}, s2, 7\ns_lshr_b32 s{T+1}, s2, 3")
    p(f"s_and_b32 s{T+2}, s{T}, 1\ns_lshl_b32 s{T+2}, s{T+2}, 3\ns_and_b32 s{T+3}, s{T+1}, 7\ns_add_u32 s{S_RB}, s{T+2}, s{T+3}")
    p(f"s_lshr_b32 s{T+4}, s{T+1}, 3")
    p(f"s_mul_i32 s{T+5}, s{T+3}, {cfg['rot_a']}\ns_mul_i32 s{T+6}, s{T+4}, {cfg['rot_b']}\ns_add_u32 s{T+5}, s{T+5}, s{T+6}\ns_lshr_b32 s{S_ROT}, s{T+5}, 3")
    p(f"s_cmp_ge_u32 s{S_ROT}, 10\ns_cselect_b32 s{T+5}, 10, 0\ns_sub_u32 s{S_ROT}, s{S_ROT}, s{T+5}")
    p(f"s_and_b32 s{T+5}, s{T}, 6\ns_and_b32 s{T+6}, s{T+4}, 1\ns_add_u32 s{S_GP}, s{T+5}, s{T+6}")
    p(f"s_lshl_b32 s{S_TG}, s{S_RB}, 2\ns_add_u32 s{S_TG}, s{S_TG}, s{S_W}")
    p(f"s_lshl_b32 s{S_LW4}, s{S_W}, 12\ns_mul_i32 s{S_LW5}, s{S_W}, 5120")
    p(f"s_mul_i32 s{S_BEG+3}, s{S_TG}, 40960\ns_add_u32 s{S_BEG+3}, s{S_BEG+3}, {XF}\ns_add_u32 s{S_END+3}, s{S_BEG+3}, 40960")
    p(f"s_lshl_b32 s{S_SO+3}, s{S_ROT}, 12\ns_add_u32 s{S_SO+3}, s{S_SO+3}, s{S_BEG+3}")
    p(f"v_lshlrev_b32 v{V_L16}, 4, v0")
    p("v_lshrrev_b32 v1, 3, v0\nv_and_b32 v2, 7, v0\nv_bfe_u32 v3, v0, 4, 1\nv_lshlrev_b32 v3, 2, v3\nv_xor_b32 v2, v2, v3\nv_lshlrev_b32 v2, 4, v2")
    p(f"v_mul_u32_u24 v3, 3456, v1\nv_add_u32 v{V_DG}, v3, v2\nv_add_u32 v{V_DG+1}, {8*3456-1024}, v{V_DG}")
    p(f"v_mul_u32_u24 v3, 3840, v1\nv_add_u32 v{V_DQ}, v3, v2\nv_add_u32 v{V_DQ+1}, {8*3840-1024}, v{V_DQ}")
    p("v_and_b32 v1, 1, v0\nv_bfe_u32 v2, v0, 1, 1\nv_lshl_add_u32 v1, v1, 1, v2")
    p("v_bfe_u32 v2, v0, 4, 1\nv_lshl_add_u32 v1, v2, 2, v1\nv_lshlrev_b32 v1, 3, v1")
    p("v_bfe_u32 v2, v0, 2, 2\nv_lshrrev_b32 v3, 5, v0\nv_lshl_add_u32 v3, v3, 3, v2")
    p(f"v_lshl_add_u32 v4, v3, 7, v1\nv_bfe_u32 v5, v0, 3, 1\nv_lshl_add_u32 v{V_RD}, v5, 6, v4\nv_xor_b32 v{V_RD+1}, 64, v{V_RD}")
    p(f"v_add_u32 v{V_RD+2}, 40960, v{V_RD}\nv_add_u32 v{V_RD+3}, 40960, v{V_RD+1}")
    p(f"v_mul_u32_u24 v4, 320, v3\nv_add_u32 v{V_R5}, v4, v1\nv_add_u32 v{V_R5+1}, 40960, v{V_R5}")
    c0 = -2.0 * LOG2E * 0.7978845608028654
    p(f"v_mov_b32 v{V_C0}, {fx(c0)}\nv_mov_b32 v{V_C1}, {fx(c0*0.044715)}\nv_mov_b32 v{V_IR2}, 1.0\nv_mov_b32 v{V_R}, 1.0\nv_mov_b32 v{V_RL}, {fx(LOG2E)}")
    p("s_waitcnt lgkmcnt(0)")
    srd(p, S_G, 32, WG_SZ); srd(p, S_U, 34, WG_SZ, -2048); srd(p, S_QA, 28, WQKV_SZ); srd(p, S_QB, 28, WQKV_SZ, 128 - 2048)
    srd(p, S_WS, 36, WS_TOTAL); srd(p, S_PH, 30, WPHI_SZ)
    def setpass(pi, pitch, colreg):
        p(f"s_mul_i32 s{S_BEG+pi}, s{S_W}, {16*pitch}\ns_add_u32 s{S_BEG+pi}, s{S_BEG+pi}, s{colreg}\ns_add_u32 s{S_END+pi}, s{S_BEG+pi}, {640*pitch}")
        p(f"s_mul_i32 s{S_SO+pi}, s{S_ROT}, {64*pitch}\ns_add_u32 s{S_SO+pi}, s{S_SO+pi}, s{S_BEG+pi}")
    def hstore(k, lreg):
        p(f"s_mul_i32 s{S_ST+k}, s{S_TG}, {216*512}\ns_lshl_b32 s{T+9}, s{lreg}, 12\ns_add_u32 s{S_ST+k}, s{S_ST+k}, s{T+9}\ns_add_u32 s{S_ST+k}, s{S_ST+k}, {HF}")
    p(f"s_cmp_lt_u32 s{T+4}, 2\ns_cbranch_scc1 K1_kv")
    p(f"s_cmp_lt_u32 s{S_GP}, 5\ns_cbranch_scc1 K1_q")
    head = p
    SG, SQ = 64 * 3456, 64 * 3840
    p = Prog(); p.ins = list(head.ins); nh = len(head.ins)
    p(f"s_mul_i32 s{T}, s{S_GP}, 3\ns_add_u32 s{T}, s{T}, 3")
    for pi in range(3):
        p(f"s_lshl_b32 s{T+1}, s{T}, 7"); setpass(pi, 3456, T + 1); hstore(pi, T); p(f"s_add_u32 s{T}, s{T}, 1")
    passes = [Pass("gu", ACCA, S_G, S_U, V_DG, SG), Pass("gu", ACCB, S_G, S_U, V_DG, SG), Pass("gu", ACCA, S_G, S_U, V_DG, SG)]
    emit_main(p, passes, 16384, [(41, 78, mk(epi_gu(ACCA, S_ST, V_T), cfg)), (81, 118, mk(epi_gu(ACCB, S_ST + 1, V_T), cfg))], cfg)
    for i in mk(epi_gu(ACCA, S_ST + 2, V_T), cfg): p.add(i)
    p.label("K1_end")
    p("s_endpgm")
    txt = finalize(p.ins, True)
    p = Prog(); p.label("K1_q")
    p(f"s_lshl_b32 s{T+1}, s{S_GP}, 8"); setpass(0, 3840, T + 1)
    p(f"s_mul_i32 s{S_ST+3}, s{S_TG}, 40960\ns_lshl_b32 s{T+9}, s{S_GP}, 13\ns_add_u32 s{S_ST+3}, s{S_ST+3}, s{T+9}\ns_add_u32 s{S_ST+3}, s{S_ST+3}, {QF}\ns_add_u32 s{S_ST+4}, s{S_ST+3}, 4096")
    p(f"s_lshl_b32 s{T}, s{S_GP}, 1\ns_add_u32 s{T}, s{T}, 8")
    for pi in (1, 2):
        p(f"s_lshl_b32 s{T+1}, s{T}, 7"); setpass(pi, 3456, T + 1); hstore(pi, T); p(f"s_add_u32 s{T}, s{T}, 1")
    passes = [Pass("q", ACCA, S_QA, S_QB, V_DQ, SQ), Pass("gu", ACCB, S_G, S_U, V_DG, SG), Pass("gu", ACCA, S_G, S_U, V_DG, SG)]
    emit_main(p, passes, 16384, [(41, 60, mk(epi_q(ACCA, S_ST + 3, V_T), cfg)), (81, 118, mk(epi_gu(ACCB, S_ST + 1, V_T), cfg))], cfg)
    for i in mk(epi_gu(ACCA, S_ST + 2, V_T), cfg): p.add(i)
    p("s_endpgm")
    txt += finalize(p.ins, True)
    p = Prog(); p.label("K1_kv")
    p(f"s_mul_i32 s{T+1}, s{S_GP}, 160\ns_add_u32 s{T+1}, s{T+1}, 1280"); setpass(0, 3840, T + 1)
    p(f"s_lshl_b32 s{T+1}, s{S_GP}, 7"); setpass(1, 3456, T + 1); hstore(1, S_GP)
    p(f"s_movk_i32 s{T}, 3277")
    for i in range(5):
        p(f"v_add_u32 v1, {64*i}, v0\nv_mul_u32_u24 v2, s{T}, v1\nv_lshrrev_b32 v2, 16, v2")
        p("v_mul_u32_u24 v3, 20, v2\nv_sub_u32 v3, v1, v3")
        p("v_cmp_lt_u32 vcc, 9, v3\nv_mul_u32_u24 v2, 3840, v2\nv_lshl_add_u32 v2, v3, 4, v2")
        p(f"v_add_u32 v3, {1280-160}, v2\nv_cndmask_b32 v2, v2, v3, vcc")
        p(f"v_subrev_u32 v{V_D5+i}, {1024*(i&3)}, v2")
    pre = Prog()
    pre(f"s_getpc_b64 s[{T}:{T+1}]\nK1_pc:\ns_add_u32 s{T}, s{T}, K1_tab-K1_pc\ns_addc_u32 s{T+1}, s{T+1}, 0")
    for i in range(6):
        pre(f"global_load_dwordx4 v[{V_T+4*i}:{V_T+4*i+3}], v{V_L16}, s[{T}:{T+1}] offset:{1024*i if i < 4 else 0}", tag="tab")
        if i == 3: pre(f"s_add_u32 s{T}, s{T}, 4096\ns_addc_u32 s{T+1}, s{T+1}, 0")
        if i == 4: pre(f"s_add_u32 s{T}, s{T}, 1024\ns_addc_u32 s{T+1}, s{T+1}, 0")
    pre(f"s_mul_i32 s{T+2}, s{S_GP}, 3200\ns_lshl_b32 s{T+3}, s{S_W}, 10\ns_add_u32 s{T+2}, s{T+2}, s{T+3}\ns_add_u32 m0, s{T+3}, {WPH}")
    pre(f"buffer_load_dwordx4 v{V_L16}, s[{S_PH}:{S_PH+3}], s{T+2} offen lds", tag="tab")
    pre(f"v_mov_b32 v2, 0\nv_mov_b32 v3, 0\nv_mov_b32 v1, {WPH+WPH_ZERO}\nds_write_b64 v1, v[2:3]")
    VA_PW, VA_VW, VA_A, VA_B, VA_S1, VA_S3 = 221, 222, 223, 248, 249, 250
    pre(f"v_and_b32 v1, 31, v0\nv_lshl_add_u32 v1, s{S_W}, 5, v1\nv_lshrrev_b32 v4, 5, v0")
    pre(f"v_mul_u32_u24 v5, {VL_S}, v1\nv_add_u32 v5, {VL}, v5\nv_mov_b32 v2, 0x3f80\nds_write_b64 v5, v[2:3] offset:160")
    pre(f"v_lshl_add_u32 v{VA_VW}, v4, 4, v5")
    pre(f"v_mul_u32_u24 v5, {PHI_S}, v1\nv_mul_u32_u24 v6, 80, v4\nv_add3_u32 v{VA_PW}, v5, v6, v{V_T+31}".replace(f"v{V_T+31}", "0"))
    pre(f"v_add_u32 v{VA_PW}, {PHI}, v{VA_PW}")
    pre("v_bfe_u32 v1, v0, 2, 2\nv_lshlrev_b32 v1, 2, v1\nv_lshl_add_u32 v1, v4, 1, v1")
    pre("v_and_b32 v2, 1, v0\nv_bfe_u32 v3, v0, 1, 1\nv_lshl_add_u32 v2, v2, 1, v3\nv_bfe_u32 v3, v0, 4, 1\nv_lshl_add_u32 v2, v3, 2, v2")
    pre(f"v_mul_u32_u24 v5, {PHI_S}, v1\nv_lshl_add_u32 v5, v2, 3, v5\ns_mul_i32 s{T+2}, s{S_W}, 80\ns_add_u32 s{T+2}, s{T+2}, {PHI}\nv_add_u32 v{VA_A}, s{T+2}, v5")
    pre("v_and_b32 v2, 3, v0\nv_lshl_add_u32 v2, v3, 2, v2")
    pre(f"s_mul_i32 s{T+2}, s{S_W}, 40\nv_lshlrev_b32 v5, 3, v2\nv_add_u32 v5, s{T+2}, v5\nv_cmp_gt_u32 vcc, 5, v2\nv_mov_b32 v6, 160\nv_cndmask_b32 v5, v6, v5, vcc")
    pre(f"v_mul_u32_u24 v6, {VL_S}, v1\nv_add_u32 v5, v5, v6\nv_add_u32 v{VA_B}, {VL}, v5")
    pre(f"v_and_b32 v1, 31, v0\nv_mul_u32_u24 v2, 21, v4\nv_add_u32 v2, v2, v1\nv_lshlrev_b32 v2, 4, v2\nv_mov_b32 v3, {OOB}")
    pre(f"v_cmp_gt_u32 vcc, 21, v1\nv_cndmask_b32 v{VA_S1}, v3, v2, vcc\nv_cmp_gt_u32 vcc, 21, v0\nv_cndmask_b32 v{VA_S3}, v3, v2, vcc")
    pre(f"s_lshr_b32 s{T+2}, s{S_W}, 1\ns_lshl_b32 s{T+3}, s{S_GP}, 1\ns_add_u32 s{T+2}, s{T+2}, s{T+3}\ns_lshl_b32 s{T+2}, s{T+2}, 4\ns_add_u32 s{T+2}, s{T+2}, s{S_RB}")
    pre(f"s_mul_i32 s{T+2}, s{T+2}, {KVP_STRIDE}\ns_and_b32 s{T+3}, s{S_W}, 1\ns_mul_i32 s{T+3}, s{T+3}, 1680\ns_add_u32 s{T+2}, s{T+2}, s{T+3}\ns_add_u32 s{S_ST+5}, s{T+2}, {KVP}")
    cfg2 = dict(cfg); cfg2["pre"] = pre.ins
    f0 = [mkwait(vm="tab")]
    f1 = []
    for k in range(24):
        f1.append(f"v_add_u32 v{V_T+k}, {WPH}, v{V_T+k}")
        f1.append(I(f"ds_read_b64_tr_b16 a[{160+2*k}:{161+2*k}], v{V_T+k}", tag="wp"))
    KP = V_T; VP = V_T + 20 + 7
    VP = 252
    a = []
    for b in range(5):
        for e in range(8): a.append(f"v_mul_f32 v{8*b+e}, v{V_RL}, v{8*b+e}")
        for e in range(4): a.append(f"v_cvt_pk_bf16_f32 v{KP+4*b+e}, v{8*b+2*e}, v{8*b+2*e+1}")
    for tau in range(2):
        for s in range(3):
            w = 160 + 4 * ((0 * 3 + s) * 2 + tau)
            a.append(f"v_mfma_f32_32x32x16_bf16 v[{16*tau}:{16*tau+15}], a[{w}:{w+3}], v[{KP+4*s}:{KP+4*s+3}], " + ("0" if s == 0 else f"v[{16*tau}:{16*tau+15}]"))
    for b in range(5):
        o = 144 + 4 * (b & 3)
        for e in range(8): a.append(f"v_mul_f32 v{40+8*b+e}, v{V_R}, v{40+8*b+e}")
        for e in range(4): a.append(f"v_cvt_pk_bf16_f32 v{o+e}, v{40+8*b+2*e}, v{40+8*b+2*e+1}")
        a.append(f"ds_write_b128 v{VA_VW}, v[{o}:{o+3}] offset:{32*b}")
    for tau in range(2):
        for s in range(3):
            w = 160 + 4 * ((1 * 3 + s) * 2 + tau)
            a.append(f"v_mfma_f32_32x32x16_bf16 v[{32+16*tau}:{32+16*tau+15}], a[{w}:{w+3}], v[{KP+8+4*s}:{KP+8+4*s+3}], " + ("0" if s == 0 else f"v[{32+16*tau}:{32+16*tau+15}]"))
    EP = list(range(64, 80)) + [144, 145, 146, 147]
    for P in range(2):
        sm = softmax_pair(list(range(32 * P, 32 * P + 20)), EP, KP, [148, 149, 150, 151, 152, 153])
        cnt = 0
        for s_ in sm:
            a.append(s_)
            if s_.startswith("v_cvt_pk"):
                cnt += 1
                if cnt % 4 == 0:
                    ch = cnt // 4 - 1
                    a.append(f"ds_write_b128 v{VA_PW}, v[{KP+4*ch}:{KP+4*ch+3}] offset:{160*P + 16*ch}")
    bq = []
    def kvreads(kp):
        r = []; base = 32 + 12 * (kp & 1)
        for i in range(2): r.append(I(f"ds_read_b64_tr_b16 v[{base+8+2*i}:{base+9+2*i}], v{VA_B} offset:{kp*16*VL_S + i*VL_S}", tag=("kv", kp)))
        for tau in range(2):
            for i in range(2): r.append(I(f"ds_read_b64_tr_b16 v[{base+4*tau+2*i}:{base+4*tau+2*i+1}], v{VA_A} offset:{kp*16*PHI_S + i*PHI_S + tau*64}", tag=("kv", kp)))
        return r
    bq += kvreads(0)
    for kp in range(8):
        if kp + 1 < 8: bq += kvreads(kp + 1)
        bq.append(mkwait(lgkm=("kv", kp)))
        base = 32 + 12 * (kp & 1)
        for tau in range(2):
            bq.append(f"v_mfma_f32_32x32x16_bf16 v[{16*tau}:{16*tau+15}], v[{base+4*tau}:{base+4*tau+3}], v[{base+8}:{base+11}], " + ("0" if kp == 0 else f"v[{16*tau}:{16*tau+15}]"))
    bq2 = []
    for ch in range(3):
        for e in range(4): bq2.append(f"v_cvt_pk_bf16_f32 v{64+4*ch+e}, v{8*ch+2*e}, v{8*ch+2*e+1}")
        bq2.append(f"buffer_store_dwordx4 v[{64+4*ch}:{67+4*ch}], v{VA_S1 if ch < 2 else VA_S3}, s[{S_WS}:{S_WS+3}], s{S_ST+5} offen offset:{672*ch} STFLAG")
    passes = [Pass("kv", ACCA, S_QA, S_QA, V_D5, SQ), Pass("gu", ACCB, S_G, S_U, V_DG, SG)]
    kb = cfg["kv_bar"]
    emit_main(p, passes, 20480, [(14, 15, mk(f0, cfg)), (15, 36, mk(f1, cfg)), (41, kb, mk(a, cfg)), (kb, 78, mk(bq, cfg)), (79, 80, mk(bq2, cfg))], cfg2)
    for i in mk(epi_gu(ACCB, S_ST + 1, V_T), cfg): p.add(i)
    p("s_endpgm")
    txt += finalize(p.ins, True)
    tab = wphi_table(WPH_ZERO)
    txt += ".p2align 6\n.type K1_tab,@object\nK1_tab:\n"
    for g in range(6):
        for l in range(64):
            txt += "  .long " + ", ".join(str(tab[4 * g + e][l]) for e in range(4)) + "\n"
    return kernel_text(name, txt, 256, 208, 100)

CFG = dict(pro_stages=2, wait_at=[0, 2], rd_dist4=[3, 3, 2], rd_dist5=[3, 3, 2, 2], rate0=3, rate=2, depth0=2, depth=4,
           rot_a=10, rot_b=20, stflag="", kv_bar=71)
```

```python
from common import *
from k1 import WPH_ZERO

def gen_k15(cfg, name="k15_kernel"):
    WPH = 0; KVL = 4352; ZR = KVL + 3584
    p = Prog()
    p("s_cmp_ge_u32 s2, 256\ns_cbranch_scc1 K15_end")
    p(f"s_load_dwordx2 s[20:21], s[0:1], {KA_WPHI}")
    p(f"s_load_dwordx2 s[22:23], s[0:1], {KA_WS}")
    p("v_lshrrev_b32 v1, 6, v0\nv_readfirstlane_b32 s3, v1")
    p("v_lshlrev_b32 v2, 4, v0")
    p("v_and_b32 v0, 63, v0\nv_lshlrev_b32 v3, 4, v0")
    p("s_and_b32 s24, s2, 7\ns_lshr_b32 s25, s2, 3\ns_and_b32 s26, s25, 1\ns_lshl_b32 s24, s24, 1\ns_add_u32 s24, s24, s26\ns_lshr_b32 s25, s25, 1")
    p("s_lshl_b32 s26, s25, 2\ns_add_u32 s26, s26, s3")
    p("s_getpc_b64 s[28:29]\nK15_pc:\ns_add_u32 s28, s28, K1_tab-K15_pc\ns_addc_u32 s29, s29, -1")
    p("s_waitcnt lgkmcnt(0)")
    srd(p, 4, 20, WPHI_SZ); srd(p, 8, 22, WS_TOTAL)
    for i in range(3):
        p(f"global_load_dwordx4 v[{8+4*i}:{11+4*i}], v3, s[28:29] offset:{1024*i}", tag="tab")
    p(f"s_mul_i32 s30, s24, 1600\ns_lshl_b32 s31, s3, 10\ns_add_u32 s30, s30, s31\ns_add_u32 m0, s31, {WPH}")
    p("buffer_load_dwordx4 v3, s[4:7], s30 offen lds", tag="tab")
    p(f"s_mul_i32 s32, s26, 40960\ns_mul_i32 s33, s24, 2560\ns_add_u32 s32, s32, s33\ns_add_u32 s33, s32, {OF}\ns_add_u32 s32, s32, {QF}")
    p("v_and_b32 v4, 31, v0\nv_lshlrev_b32 v4, 4, v4")
    p(f"buffer_load_dwordx4 v[20:23], v3, s[8:11], s32 offen {cfg['ldflag']}", tag="q")
    p(f"buffer_load_dwordx4 v[24:27], v3, s[8:11], s32 offen offset:1024 {cfg['ldflag']}", tag="q")
    p(f"buffer_load_dwordx4 v[28:31], v4, s[8:11], s32 offen offset:2048 {cfg['ldflag']}", tag="q")
    p(f"v_mov_b32 v5, {OOB}\nv_cmp_gt_u32 vcc, 3360, v2\nv_cndmask_b32 v5, v5, v2, vcc")
    p(f"s_mul_i32 s34, s24, {16*KVP_STRIDE}\ns_add_u32 s34, s34, {KVP}")
    for r in range(16):
        p(f"buffer_load_dwordx4 v[{64+4*r}:{67+4*r}], v5, s[8:11], s34 offen {cfg['ldflag']}", tag=("kv", r))
        if r < 15: p(f"s_add_u32 s34, s34, {KVP_STRIDE}")
    p(f"v_mov_b32 v6, 0\nv_mov_b32 v7, 0\nv_lshrrev_b32 v32, 1, v2\nds_write_b64 v32, v[6:7] offset:{ZR}\nv_mov_b32 v32, {WPH+WPH_ZERO}\nds_write_b64 v32, v[6:7]")
    p("v_bfe_u32 v32, v0, 2, 1\nv_lshrrev_b32 v33, 5, v0\nv_and_b32 v34, 3, v0\nv_bfe_u32 v35, v0, 3, 2\nv_lshl_add_u32 v34, v35, 2, v34")
    p("v_lshl_add_u32 v35, v32, 2, v34")
    p("v_mul_u32_u24 v36, 105, v32")
    p(f"v_add_u32 v35, v35, v36\nv_lshlrev_b32 v35, 4, v35\nv_add_u32 v35, {KVL}, v35")
    p("v_lshlrev_b32 v37, 4, v32\nv_sub_u32 v37, 16, v37\nv_add_u32 v37, v37, v34")
    p("v_cmp_gt_u32 vcc, 4, v34\nv_cndmask_b32 v37, 20, v37, vcc")
    p(f"v_add_u32 v37, v37, v36\nv_lshlrev_b32 v37, 4, v37\nv_add_u32 v37, {KVL}, v37")
    p(f"v_mov_b32 v36, {ZR}\nv_cmp_eq_u32 vcc, v32, v33\nv_cndmask_b32 v60, v36, v35, vcc\nv_cndmask_b32 v61, v36, v37, vcc")
    p("v_mul_u32_u24 v62, 1536, v33\nv_add_u32 v62, v62, v4\nv_lshl_add_u32 v63, v33, 3, v4")
    p.wait(vm="tab", lgkm=0)
    p("s_barrier")
    for k in range(12):
        p(f"ds_read_b64_tr_b16 v[{128+2*k}:{129+2*k}], v{8+k} offset:{WPH}", tag="wp")
    p.wait(vm="q", lgkm="wp")
    for tau in range(2):
        for s in range(3):
            w = 128 + 4 * (s * 2 + tau); d = 160 + 16 * tau
            p(f"v_mfma_f32_32x32x16_bf16 v[{d}:{d+15}], v[{w}:{w+3}], v[{20+4*s}:{23+4*s}], " + ("0" if s == 0 else f"v[{d}:{d+15}]"))
    for t in softmax_pair(list(range(160, 180)), list(range(128, 148)), 8 + 24 + 8, [148, 149, 150, 151, 152, 153]): p(t)
    p("v_mov_b32 v6, 0x00003f80\nv_mov_b32 v7, 0x3f800000")
    for e in range(8): p(f"v_mov_b32 v{8+e}, 0")
    for r in range(16):
        p.wait(vm=("kv", r))
        for e in range(4):
            p(f"v_dot2c_f32_bf16 v{8+2*e}, v{64+4*r+e}, v6\nv_dot2c_f32_bf16 v{9+2*e}, v{64+4*r+e}, v7")
    for e in range(4): p(f"v_cvt_pk_bf16_f32 v{16+e}, v{8+2*e}, v{9+2*e}")
    p(f"v_min_u32 v2, {3584-16}, v2")
    p(f"ds_write_b128 v2, v[16:19] offset:{KVL}")
    p.wait(lgkm=0)
    p("s_barrier")
    for s in range(5):
        for tau in range(2):
            p(f"ds_read_b128 v[{64+8*s+4*tau}:{67+8*s+4*tau}], v{60+tau} offset:{336*s}", tag=("a", s))
    for s in range(5):
        p.wait(lgkm=("a", s))
        for tau in range(2):
            d = 160 + 16 * tau
            p(f"v_mfma_f32_32x32x16_bf16 v[{d}:{d+15}], v[{64+8*s+4*tau}:{67+8*s+4*tau}], v[{40+4*s}:{43+4*s}], " + ("0" if s == 0 else f"v[{d}:{d+15}]"))
    p(f"v_add_f32 v180, {fx(1e-6)}, v180\nv_rcp_f32 v180, v180")
    for e in range(20): p(f"v_mul_f32 v{160+e}, v{160+e}, v180")
    for e in range(10): p(f"v_cvt_pk_bf16_f32 v{8+e}, v{160+2*e}, v{161+2*e}")
    p(f"buffer_store_dwordx4 v[8:11], v62, s[8:11], s33 offen {cfg['stflag']}")
    p(f"buffer_store_dwordx4 v[12:15], v62, s[8:11], s33 offen offset:512 {cfg['stflag']}")
    p(f"buffer_store_dwordx2 v[16:17], v63, s[8:11], s33 offen offset:1024 {cfg['stflag']}")
    p.label("K15_end")
    p("s_endpgm")
    return kernel_text(name, finalize(p.ins, True), 192, 0, 48), ZR + 2048
```

```python
from common import *

def gen_k2(cfg, name="k2_kernel"):
    D = cfg["k2_depth"]
    ACC = 0; ST = 80
    RS = 336; WR = 64 * RS
    p = Prog()
    p("s_cmp_ge_u32 s2, 256\ns_cbranch_scc1 K2_end")
    p(f"s_load_dwordx2 s[20:21], s[0:1], {KA_X}")
    p(f"s_load_dwordx2 s[22:23], s[0:1], {KA_OUT}")
    p(f"s_load_dwordx2 s[24:25], s[0:1], {KA_WS}")
    VT = ST + 36 * D
    V_TID, V_A, V_W, V_X = VT, VT + 1, VT + 2, VT + 4
    V_XD = V_X + 6
    assert V_XD % 2 == 0
    p(f"v_mov_b32 v{V_TID}, v0\nv_lshrrev_b32 v1, 6, v0\nv_and_b32 v0, 63, v0\nv_readfirstlane_b32 s3, v1")
    p(f"v_lshlrev_b32 v{V_W}, 4, v0\nv_lshrrev_b32 v1, 4, v0\nv_and_b32 v2, 15, v0\nv_lshlrev_b32 v2, 4, v2\nv_lshl_add_u32 v{V_A}, v1, 9, v2")
    p("s_and_b32 s26, s2, 7\ns_lshr_b32 s27, s2, 3\ns_and_b32 s28, s27, 3\ns_lshl_b32 s26, s26, 2\ns_add_u32 s26, s26, s28\ns_lshr_b32 s27, s27, 2")
    p("s_cmp_eq_u32 s3, 0")
    p(f"s_cselect_b32 s30, 20, 18\ns_mov_b32 s35, 110592\ns_cselect_b32 s35, 40960, s35\ns_mov_b32 s32, {HF - 18*2048}\ns_cselect_b32 s32, {OF}, s32")
    p("s_cselect_b32 s31, 0, 2\ns_mul_i32 s36, s3, 18\ns_add_u32 s31, s31, s36")
    p("s_lshl_b32 s36, s36, 11\ns_add_u32 s32, s32, s36\ns_lshl_b32 s36, s26, 1\ns_mul_i32 s36, s36, s35\ns_add_u32 s32, s32, s36\ns_add_u32 s33, s32, s35")
    p(f"s_mul_i32 s34, s27, 74\ns_add_u32 s34, s34, s31\ns_mul_i32 s34, s34, 5120\ns_add_u32 s34, s34, {W2P}")
    p(f"s_mul_i32 s37, s27, {cfg['k2_rot_a']}\ns_mul_i32 s36, s28, {cfg['k2_rot_b']}\ns_add_u32 s37, s37, s36\ns_lshr_b32 s37, s37, 3")
    p("s_cmp_ge_u32 s37, s30\ns_cselect_b32 s36, s30, 0\ns_sub_u32 s37, s37, s36")
    p("s_waitcnt lgkmcnt(0)")
    srd(p, 4, 20, X_SZ); srd(p, 8, 22, X_SZ); srd(p, 12, 24, WS_TOTAL)
    p("s_cmp_eq_u32 s3, 0\ns_cbranch_scc1 K2_s")
    head = p
    def loads(i):
        b = ST + 36 * (i % D)
        o = [I("s_lshl_b32 s38, s37, 11"), I("s_add_u32 s39, s38, s33"), I("s_add_u32 s38, s38, s32"),
             I("s_mul_i32 s40, s37, 5120"), I("s_add_u32 s40, s40, s34"), I("s_add_u32 s41, s40, 4096"),
             I("s_add_u32 s37, s37, 1"), I("s_cmp_eq_u32 s37, s30"), I("s_cselect_b32 s37, 0, s37")]
        ld = []
        for nt in range(5):
            r = b + 16 + 4 * nt
            ld.append(I(f"buffer_load_dwordx4 v[{r}:{r+3}], v{V_W}, s[12:15], s{40 if nt < 4 else 41} offen offset:{1024*(nt&3)}", tag=("ld", i)))
        for tt in range(4):
            r = b + 4 * tt
            ld.append(I(f"buffer_load_dwordx4 v[{r}:{r+3}], v{V_A}, s[12:15], s{38 + (tt>>1)} offen offset:{256*(tt&1)} {cfg['ldflag']}", tag=("ld", i)))
        return o, ld
    def xaddr(p):
        p("s_movk_i32 s42, 3277\ns_mul_i32 s43, s26, 81920\ns_mul_i32 s44, s27, 160\ns_add_u32 s43, s43, s44")
        for u in range(5):
            p(f"v_add_u32 v1, {256*u}, v{V_TID}\nv_mul_u32_u24 v2, s42, v1\nv_lshrrev_b32 v2, 16, v2\nv_mul_u32_u24 v3, 20, v2\nv_sub_u32 v3, v1, v3")
            p(f"v_mul_u32_u24 v2, 1280, v2\nv_lshl_add_u32 v{V_X+u}, v3, 3, v2")
    def body(p, n):
        for i in range(min(D - 1, n)):
            o, ld = loads(i)
            for x in o + ld: p.add(x)
            if i == 0: xaddr(p)
        for i in range(n):
            extra = []
            if i + D - 1 < n:
                o, ld = loads(i + D - 1); extra = [o] + [[x] for x in ld]
            elif i + D - 1 == n:
                extra = [[I(f"buffer_load_dwordx2 v[{V_XD+2*u}:{V_XD+2*u+1}], v{V_X+u}, s[4:7], s43 offen", tag="x")] for u in range(5)]
            p.wait(vm=("ld", i))
            b = ST + 36 * (i % D); k = 0
            for tt in range(4):
                for nt in range(5):
                    a = ACC + 4 * (5 * tt + nt)
                    p(f"v_mfma_f32_16x16x32_bf16 v[{a}:{a+3}], v[{b+16+4*nt}:{b+19+4*nt}], v[{b+4*tt}:{b+4*tt+3}], " + ("0" if i == 0 else f"v[{a}:{a+3}]"))
                    if (5 * tt + nt) % 2 == 1 and k < len(extra):
                        for x in extra[k]: p.add(x)
                        k += 1
        p.wait(vm=0)
    p = Prog(); p.ins = list(head.ins)
    body(p, 18)
    p("s_branch K2_fin")
    txt = finalize(p.ins, True)
    p = Prog(); p.label("K2_s")
    body(p, 20)
    p.label("K2_fin")
    p("s_nop 7")
    T = ST
    p(f"v_and_b32 v{T}, 15, v{V_TID}\nv_mul_u32_u24 v{T}, {RS}, v{T}\nv_bfe_u32 v{T+1}, v{V_TID}, 4, 2\nv_lshl_add_u32 v{T}, v{T+1}, 4, v{T}")
    p(f"s_mul_i32 s36, s3, {WR}\nv_add_u32 v{T}, s36, v{T}")
    for tt in range(4):
        for nt in range(5):
            a = ACC + 4 * (5 * tt + nt)
            p(f"ds_write_b128 v{T}, v[{a}:{a+3}] offset:{tt*16*RS + nt*64}")
    for u in range(5):
        p(f"v_add_u32 v{T+1}, {256*u}, v{V_TID}\nv_mul_u32_u24 v{T+2}, s42, v{T+1}\nv_lshrrev_b32 v{T+2}, 16, v{T+2}")
        p(f"v_add_u32 v{T+1}, v{T+1}, v{T+2}\nv_lshlrev_b32 v{T+4+u}, 4, v{T+1}")
        p(f"v_add_u32 v{T+10+u}, {2*WR}, v{T+4+u}")
    p.wait(lgkm=0)
    p("s_barrier")
    for u in range(5):
        for w in range(4):
            r = 16 * u + 4 * w
            p(f"ds_read_b128 v[{r}:{r+3}], v{T+4+u if w < 2 else T+10+u} offset:{(w&1)*WR}", tag=("f", u))
    p(f"v_mov_b32 v{T+16}, 0xffff0000")
    for u in range(5):
        p.wait(lgkm=("f", u))
        r = 16 * u; t = T + 20
        for e in range(4): p(f"v_add_f32 v{r+4+e}, v{r+4+e}, v{r+8+e}")
        for e in range(4): p(f"v_add_f32 v{r+4+e}, v{r+4+e}, v{r+12+e}")
        for e in range(4): p(f"v_mul_f32 v{t+e}, {fx(-LOG2E)}, v{r+4+e}")
        for e in range(4):
            p(f"v_exp_f32 v{t+e}, v{t+e}\nv_mul_f32 v{r+e}, v{r+e}, v{r+4+e}")
        for e in range(4): p(f"v_add_f32 v{t+e}, 1.0, v{t+e}")
        for e in range(4): p(f"v_rcp_f32 v{t+e}, v{t+e}")
        x0 = V_XD + 2 * u
        p(f"v_lshlrev_b32 v{t+4}, 16, v{x0}\nv_and_b32 v{t+5}, v{T+16}, v{x0}\nv_lshlrev_b32 v{t+6}, 16, v{x0+1}\nv_and_b32 v{t+7}, v{T+16}, v{x0+1}")
        for e in range(4): p(f"v_fmac_f32 v{t+4+e}, v{r+e}, v{t+e}")
        p(f"v_cvt_pk_bf16_f32 v{r}, v{t+4}, v{t+5}\nv_cvt_pk_bf16_f32 v{r+1}, v{t+6}, v{t+7}")
        p(f"buffer_store_dwordx2 v[{r}:{r+1}], v{V_X+u}, s[8:11], s43 offen")
    p.label("K2_end")
    p("s_endpgm")
    txt += finalize(p.ins, True)
    return kernel_text(name, txt, V_XD + 10, 0, 64), 4 * WR
```

```python
import os
XF = int(os.environ.get('WSOFF', '0'))
XF_SZ = 64 * 80 * 512
HF = XF + XF_SZ
HF_SZ = 64 * 216 * 512
QF = HF + HF_SZ
QF_SZ = 64 * 80 * 512
OF = QF + QF_SZ
OF_SZ = 64 * 80 * 512
W2P = OF + OF_SZ
W2P_SZ = 8 * 74 * 5 * 1024
KVP = W2P + W2P_SZ
KVP_STRIDE = 3456
KVP_SZ = 16 * 16 * KVP_STRIDE
KVF = KVP + KVP_SZ
KVF_SZ = 16 * 4096
STAMP = KVF + KVF_SZ
STAMP_SZ = 4 * 256 * 4 * 16 * 8
FLAGS = STAMP + STAMP_SZ
FLAGS_SZ = 1 << 19
WS_TOTAL = FLAGS + FLAGS_SZ
OOB = 0x40000000
KA_X, KA_WQKV, KA_WPHI, KA_WO, KA_BX, KA_WG, KA_WU, KA_WD, KA_OUT, KA_DBG, KA_WS = [8 * i for i in range(11)]
X_SZ = 2048 * 640 * 2
WQKV_SZ = 640 * 1920 * 2
WPHI_SZ = 32 * 400 * 2
WO_SZ = 640 * 640 * 2
WG_SZ = 640 * 1728 * 2
WD_SZ = 1728 * 640 * 2
```

```python
import sys
from common import *
import k0, k1, k15, k2
def build(cfg, path):
    t0, d0 = k0.gen_k0()
    t1, d1 = k1.gen_k1(cfg)
    (t15, d15), l15 = k15.gen_k15(cfg)
    (t2, d2), l2 = k2.gen_k2(cfg)
    hdr = f"""; generated by gen/build.py
; @launch kernel=k0_kernel grid=(256,1,1) block=(320,1,1) lds=20480
; @launch kernel=k1_kernel grid=(256,1,1) block=(256,1,1) lds={k1.LDS_TOTAL}
; @launch kernel=k15_kernel grid=(256,1,1) block=(256,1,1) lds={l15}
; @launch kernel=k2_kernel grid=(256,1,1) block=(256,1,1) lds={l2}
.amdgcn_target "amdgcn-amd-amdhsa--gfx950"
"""
    open(path, "w").write(hdr + t0 + t1 + t15 + t2 + d0 + d1 + d15 + d2)
if __name__ == "__main__":
    cfg = dict(k1.CFG); cfg.update(ldflag="", k2_depth=4, k2_rot_a=18, k2_rot_b=36)
    for a in sys.argv[2:]:
        k, v = a.split("=", 1); cfg[k] = eval(v)
    build(cfg, sys.argv[1])
```

```python
from asmlib import *
from layout import *
import struct
def f2u(x): return struct.unpack("<I", struct.pack("<f", x))[0]
def fx(x): return "0x%08x" % f2u(x)
LOG2E = 1.4426950408889634

def srd(p, d, lo, size, add=0):
    if add > 0:
        p(f"s_add_u32 s{d}, s{lo}, {add}\ns_addc_u32 s{d+1}, s{lo+1}, 0")
    elif add < 0:
        p(f"s_sub_u32 s{d}, s{lo}, {-add}\ns_subb_u32 s{d+1}, s{lo+1}, 0")
    else:
        p(f"s_mov_b32 s{d}, s{lo}\ns_mov_b32 s{d+1}, s{lo+1}")
    p(f"s_mov_b32 s{d+2}, {size - add}\ns_mov_b32 s{d+3}, 0x20000")

def kernel_text(name, body, vgpr, agpr, sgpr=100):
    acc = (vgpr + 3) // 4 * 4
    nfv = acc + agpr if agpr else vgpr
    head = f".text\n.globl {name}\n.p2align 8\n.type {name},@function\n{name}:\n"
    desc = f""".section .rodata,"a"
.p2align 6
.amdhsa_kernel {name}
  .amdhsa_next_free_vgpr {nfv}
  .amdhsa_next_free_sgpr {sgpr}
  .amdhsa_accum_offset {acc}
  .amdhsa_group_segment_fixed_size 0
  .amdhsa_kernarg_size 88
  .amdhsa_user_sgpr_count 2
  .amdhsa_user_sgpr_kernarg_segment_ptr 1
  .amdhsa_system_sgpr_workgroup_id_x 1
  .amdhsa_float_denorm_mode_32 3
.end_amdhsa_kernel
"""
    return head + body, desc

def swap2(c): return ((c & 1) << 1) | (c >> 1)

def wphi_table(zero_off):
    tab = []
    for P in range(2):
        for s in range(3):
            for tau in range(2):
                for i in range(2):
                    row = []
                    for l in range(64):
                        G = l >> 4; r = (l & 15) >> 2; c = l & 3
                        hhk = G >> 1; q = 4 * (G & 1) + c
                        hd = q & 1; rho = q >> 1
                        f0 = 16 * tau + 4 * rho
                        head = 2 * P + hd
                        col = 16 * (2 * P + s) + 8 * hhk + 4 * i + r
                        if col // 20 == head and f0 < 20:
                            row.append(head * 800 + (col % 20) * 40 + f0 * 2)
                        else:
                            row.append(zero_off)
                    tab.append(row)
    return tab

def softmax_pair(P, EP, OUT, T):
    o = []
    mx, mn, sp, sn, sp2, sn2 = T
    o.append(f"v_max3_f32 v{mx}, v{P[0]}, v{P[1]}, v{P[2]}")
    o.append(f"v_min3_f32 v{mn}, v{P[0]}, v{P[1]}, v{P[2]}")
    for i in range(3, 19, 2):
        o.append(f"v_max3_f32 v{mx}, v{mx}, v{P[i]}, v{P[i+1]}")
        o.append(f"v_min3_f32 v{mn}, v{mn}, v{P[i]}, v{P[i+1]}")
    o.append(f"v_max_f32 v{mx}, v{mx}, v{P[19]}")
    o.append(f"v_min_f32 v{mn}, v{mn}, v{P[19]}")
    for i in range(20):
        o.append(f"v_sub_f32 v{EP[i]}, v{P[i]}, v{mx}")
        o.append(f"v_sub_f32 v{P[i]}, v{mn}, v{P[i]}")
        o.append(f"v_exp_f32 v{EP[i]}, v{EP[i]}")
        o.append(f"v_exp_f32 v{P[i]}, v{P[i]}")
        if i == 2:
            o.append(f"v_add_f32 v{sp}, v{EP[0]}, v{EP[1]}")
            o.append(f"v_add_f32 v{sn}, v{P[0]}, v{P[1]}")
        elif i > 2:
            o.append(f"v_add_f32 v{sp}, v{sp}, v{EP[i-1]}")
            o.append(f"v_add_f32 v{sn}, v{sn}, v{P[i-1]}")
    o.append(f"v_add_f32 v{sp}, v{sp}, v{EP[19]}")
    o.append(f"v_add_f32 v{sn}, v{sn}, v{P[19]}")
    o.append(f"v_rcp_f32 v{sp}, v{sp}")
    o.append(f"v_rcp_f32 v{sn}, v{sn}")
    allv = [(EP[i], sp) for i in range(20)] + [(P[i], sn) for i in range(20)]
    for j in range(20):
        a, sa = allv[2 * j]; b, sb = allv[2 * j + 1]
        o.append(f"v_mul_f32 v{a}, v{a}, v{sa}")
        o.append(f"v_mul_f32 v{b}, v{b}, v{sb}")
        o.append(f"v_cvt_pk_bf16_f32 v{OUT + j}, v{a}, v{b}")
    return o

S_STAMP = 80
import os
def stamp(k, cyc=False):
    if os.environ.get("CYC"): cyc = not cyc
    return I(f"{'s_memtime' if cyc else 's_memrealtime'} s[{S_STAMP+2*k}:{S_STAMP+2*k+1}]")
def stamp_flush(p, kern, srdws, swave, n=10):
    p("s_waitcnt lgkmcnt(0)")
    p(f"s_lshl_b32 s78, s2, 2\ns_add_u32 s78, s78, s{swave}\ns_lshl_b32 s78, s78, 7\ns_add_u32 s78, s78, {STAMP + kern*256*4*128}")
    p("v_mov_b32 v0, 0")
    for k in range(n):
        p(f"v_mov_b32 v1, s{S_STAMP+2*k}\nbuffer_store_dword v1, v0, s[{srdws}:{srdws+3}], s78 offen offset:{4*k}\ns_nop 1")
```

```python
from common import *

S_G, S_U, S_QA, S_QB, S_WS, S_PH = 4, 8, 12, 16, 20, 24
S_PTR = 28
S_W, S_RB, S_TG, S_ROT, S_GP = 40, 41, 42, 43, 44
S_SO, S_BEG, S_END = 46, 50, 54
S_LW4, S_LW5 = 58, 59
S_ST = 60
S_T = 70
ACCA, ACCB, FR = 0, 80, 160
V_DG, V_DQ, V_D5 = 200, 202, 204
V_L16 = 209
V_RD = 210
V_R5 = 214
V_C0, V_C1, V_IR2, V_R, V_RL = 216, 217, 218, 219, 220
V_T = 224
PHI = 81920; PHI_S = 336
VL = PHI + 128 * PHI_S; VL_S = 176
WPH = VL + 128 * VL_S
WPH_ZERO = 4096
LDS_TOTAL = WPH + 4096 + 64

def cost(i):
    if i.kind == "trans": return 2.0
    if i.kind == "mfma": return 0.0
    if i.waits is not None: return 0.5
    return 1.0

class Pass:
    def __init__(self, kind, acc, srdA, srdB, vd, step):
        self.kind = kind; self.nT = 5 if kind == "kv" else 4
        self.acc = acc; self.srdA = srdA; self.srdB = srdB; self.vd = vd; self.step = step

def emit_main(p, passes, slot_stride, fillers, cfg):
    NS = 10 * len(passes); N = 4 * NS
    def rd(n, t, i):
        s = n // 4; kk = n % 4; P = passes[s // 10]; slot = s % 4
        dst = FR + 20 * (n & 1) + 4 * t + 2 * i
        off = slot * slot_stride
        st = 0
        if slot_stride > 16384 and slot >= 2: st = 1; off -= 2 * slot_stride
        if P.kind == "kv":
            return I(f"ds_read_b64_tr_b16 v[{dst}:{dst+1}], v{V_R5+st} offset:{off + kk*5120 + i*1280 + t*64}", tag=("fr", n, t))
        return I(f"ds_read_b64_tr_b16 v[{dst}:{dst+1}], v{V_RD + 2*st + (t & 1)} offset:{off + kk*4096 + (t>>1)*2048 + i*512}", tag=("fr", n, t))
    def dma_pieces(s):
        pi = s // 10; P = passes[pi]; slot = s % 4; tag = ("st", s)
        so = S_SO + pi
        pcs = []
        if pi == 0:
            for kk in range(4):
                pc = [I(f"buffer_load_dwordx4 a[{16*s+4*kk}:{16*s+4*kk+3}], v{V_L16}, s[{S_WS}:{S_WS+3}], s{S_SO+3} offen offset:{1024*kk}", tag=tag)]
                if kk == 3 and s < 9:
                    pc += [I(f"s_add_u32 s{S_SO+3}, s{S_SO+3}, 4096"), I(f"s_cmp_eq_u32 s{S_SO+3}, s{S_END+3}"), I(f"s_cselect_b32 s{S_SO+3}, s{S_BEG+3}, s{S_SO+3}")]
                pcs.append(pc)
        w = []
        if P.kind == "kv":
            for i in range(5):
                pc = []
                if i == 0: pc.append(I(f"s_add_u32 m0, s{S_LW5}, {slot*slot_stride}"))
                if i == 4: pc.append(I(f"s_add_u32 m0, s{S_LW5}, {slot*slot_stride + 4096}"))
                pc.append(I(f"buffer_load_dwordx4 v{P.vd+i}, s[{P.srdA}:{P.srdA+3}], s{so} offen offset:{1024*(i&3)} lds", tag=tag))
                w.append(pc)
        else:
            for i in range(4):
                pc = []
                if i == 0: pc.append(I(f"s_add_u32 m0, s{S_LW4}, {slot*slot_stride}"))
                sr_ = P.srdA if i < 2 else P.srdB
                pc.append(I(f"buffer_load_dwordx4 v{P.vd+(i&1)}, s[{sr_}:{sr_+3}], s{so} offen offset:{1024*i} lds", tag=tag))
                w.append(pc)
        if s % 10 < 9:
            w[-1] += [I(f"s_add_u32 s{so}, s{so}, {P.step}"), I(f"s_cmp_eq_u32 s{so}, s{S_END+pi}"), I(f"s_cselect_b32 s{so}, s{S_BEG+pi}, s{so}")]
        out = []
        for i in range(max(len(pcs), len(w))):
            if i < len(w): out.append(w[i])
            if i < len(pcs): out.append(pcs[i])
        return out
    queue = [(s, pc) for s in range(NS) for pc in dma_pieces(s)]
    qi = 0
    while qi < len(queue) and queue[qi][0] < cfg["pro_stages"]:
        for i in queue[qi][1]: p.add(i)
        qi += 1
    for i in cfg.get("pre", []): p.add(i)
    if cfg.get("stamps"): p.add(stamp(2))
    p.wait(vm=("st", 0), lgkm=0)
    p("s_barrier")
    if cfg.get("stamps"): p.add(stamp(3))
    for t in range(passes[0].nT):
        for i in range(2): p.add(rd(0, t, i))
    gaps = []
    lastbar = -1
    for n in range(N):
        s = n // 4; kk = n % 4; P = passes[s // 10]; nT = P.nT
        row = []
        for t in range(nT):
            a = P.acc + 16 * t; fr = FR + 20 * (n & 1) + 4 * t; x = 4 * (n % 40)
            c = "0" if n % 40 == 0 else f"v[{a}:{a+15}]"
            g = dict(pre=[], post=[], mfma=I(f"v_mfma_f32_32x32x16_bf16 v[{a}:{a+15}], v[{fr}:{fr+3}], a[{x}:{x+3}], {c}"))
            if t in cfg["wait_at"]:
                nxt = [u for u in cfg["wait_at"] if u > t]
                last = (nxt[0] if nxt else nT) - 1
                g["pre"].append(mkwait(lgkm=("fr", n, min(last, nT - 1))))
            row.append(g)
        if kk == 3 and s + 1 < NS:
            row[0]["post"].append(mkwait(vm=("st", s + 1), lgkm=0))
            row[0]["post"].append(I("s_barrier"))
            lastbar = s
        if n + 1 < N:
            nT2 = passes[(n + 1) // 40].nT
            reads = [rd(n + 1, t, i) for t in range(nT2) for i in range(2)]
            dist = cfg["rd_dist5"] if nT2 == 5 else cfg["rd_dist4"]
            k = 0
            for t, cnt in enumerate(dist):
                row[min(t, nT - 1)]["post"] += reads[k:k + cnt]; k += cnt
            assert k == len(reads)
        rate = cfg["rate0"] if s < 10 else cfg["rate"]
        sel = []
        for r in range(rate):
            if qi < len(queue) and queue[qi][0] <= lastbar + 4 and queue[qi][0] <= s + cfg["depth0" if s < 8 else "depth"]:
                sel.append(queue[qi][1]); qi += 1
        for r, pc in enumerate(sel):
            row[nT - len(sel) + r]["post"] += pc
        gaps.append(row)
    assert qi == len(queue), (qi, len(queue))
    for (k0, k1, items) in fillers:
        cells = [g for n in range(k0, k1) for g in gaps[n]]
        if k0 % 4 == 3: pass
        base = [sum(cost(i) for i in g["post"]) + sum(cost(i) for i in g["pre"]) for g in cells]
        tot = sum(cost(i) for i in items)
        lo, hi = 0.0, 1000.0
        for _ in range(50):
            mid = (lo + hi) / 2
            if sum(max(0.0, mid - b) for b in base) >= tot: hi = mid
            else: lo = mid
        cap = 0.0; used = 0.0; k = 0
        for g, b in zip(cells, base):
            cap += max(0.0, hi - b)
            while k < len(items) and used + cost(items[k]) * 0.5 <= cap:
                g["post"].append(items[k]); used += cost(items[k]); k += 1
        cells[-1]["post"] += items[k:]
    for n, row in enumerate(gaps):
        if cfg.get("stamps") and n in (20, 40, 80): p.add(stamp({20: 4, 40: 5, 80: 6}[n]))
        for g in row:
            for i in g["pre"]: p.add(i)
            p.add(g["mfma"])
            for i in g["post"]: p.add(i)

def epi_gu(acc, sst, T):
    o = []
    for half in range(2):
        for b in range(2):
            out = T + 16 + 4 * (b & 1)
            for pr in range(2):
                el = [8 * b + 4 * pr + e for e in range(4)]
                g = [acc + 16 * half + r for r in el]; u = [acc + 32 + 16 * half + r for r in el]
                t = [T + 4 * ((2 * b + pr) & 3) + e for e in range(4)]
                for e in range(4): o.append(f"v_mul_f32 v{t[e]}, v{g[e]}, v{g[e]}")
                for e in range(4): o.append(f"v_fma_f32 v{t[e]}, v{t[e]}, v{V_C1}, v{V_C0}")
                for e in range(4): o.append(f"v_mul_f32 v{t[e]}, v{t[e]}, v{g[e]}")
                for e in range(4):
                    o.append(f"v_exp_f32 v{t[e]}, v{t[e]}")
                    o.append(f"v_mul_f32 v{u[e]}, v{g[e]}, v{u[e]}")
                for e in range(4): o.append(f"v_fma_f32 v{t[e]}, v{t[e]}, v{V_IR2}, v{V_IR2}")
                for e in range(4): o.append(f"v_rcp_f32 v{t[e]}, v{t[e]}")
                for e in range(4): o.append(f"v_mul_f32 v{u[e]}, v{u[e]}, v{t[e]}")
                o.append(f"v_cvt_pk_bf16_f32 v{out+2*pr}, v{u[0]}, v{u[1]}")
                o.append(f"v_cvt_pk_bf16_f32 v{out+2*pr+1}, v{u[2]}, v{u[3]}")
            o.append(f"buffer_store_dwordx4 v[{out}:{out+3}], v{V_L16}, s[{S_WS}:{S_WS+3}], s{sst} offen offset:{(4*half+2*b)*512} STFLAG")
    return o

def epi_q(acc, sst, T):
    o = []
    for t in range(4):
        for b in range(2):
            out = T + 4 * ((2 * t + b) & 3)
            for e in range(8): o.append(f"v_mul_f32 v{acc+16*t+8*b+e}, v{V_RL}, v{acc+16*t+8*b+e}")
            for e in range(4): o.append(f"v_cvt_pk_bf16_f32 v{out+e}, v{acc+16*t+8*b+2*e}, v{acc+16*t+8*b+2*e+1}")
            o.append(f"buffer_store_dwordx4 v[{out}:{out+3}], v{V_L16}, s[{S_WS}:{S_WS+3}], s{sst + (t>>1)} offen offset:{(4*(t&1)+2*b)*512} STFLAG")
    return o

def mk(lst, cfg):
    out = []
    for x in lst:
        if isinstance(x, I): out.append(x)
        else: out.append(I(x.replace("STFLAG", cfg["stflag"]).rstrip()))
    return out

def gen_k1(cfg, name="k1_kernel"):
    p = Prog()
    p("s_cmp_ge_u32 s2, 256\ns_cbranch_scc1 K1_end")
    if cfg.get("stamps"):
        p.add(stamp(0)); p.add(stamp(1, True)); p.add(stamp(6))
    def fin(p, tail):
        if cfg.get("stamps"): p.add(stamp(7))
        for i in tail: p.add(i)
        if cfg.get("stamps"):
            p.add(stamp(8)); p.add(stamp(9, True)); stamp_flush(p, 1, S_WS, S_W)
    p(f"s_load_dwordx4 s[28:31], s[0:1], {KA_WQKV}")
    p(f"s_load_dwordx4 s[32:35], s[0:1], {KA_WG}")
    p(f"s_load_dwordx2 s[36:37], s[0:1], {KA_WS}")
    p(f"v_lshrrev_b32 v1, 6, v0\nv_and_b32 v0, 63, v0\nv_readfirstlane_b32 s{S_W}, v1")
    T = S_T
    p(f"s_and_b32 s{T}, s2, 7\ns_lshr_b32 s{T+1}, s2, 3")
    p(f"s_and_b32 s{T+2}, s{T}, 1\ns_lshl_b32 s{T+2}, s{T+2}, 3\ns_and_b32 s{T+3}, s{T+1}, 7\ns_add_u32 s{S_RB}, s{T+2}, s{T+3}")
    p(f"s_lshr_b32 s{T+4}, s{T+1}, 3")
    p(f"s_mul_i32 s{T+5}, s{T+3}, {cfg['rot_a']}\ns_mul_i32 s{T+6}, s{T+4}, {cfg['rot_b']}\ns_add_u32 s{T+5}, s{T+5}, s{T+6}\ns_lshr_b32 s{S_ROT}, s{T+5}, 3")
    p(f"s_cmp_ge_u32 s{S_ROT}, 10\ns_cselect_b32 s{T+5}, 10, 0\ns_sub_u32 s{S_ROT}, s{S_ROT}, s{T+5}")
    p(f"s_and_b32 s{T+5}, s{T}, 6\ns_and_b32 s{T+6}, s{T+4}, 1\ns_add_u32 s{S_GP}, s{T+5}, s{T+6}")
    p(f"s_lshl_b32 s{S_TG}, s{S_RB}, 2\ns_add_u32 s{S_TG}, s{S_TG}, s{S_W}")
    p(f"s_lshl_b32 s{S_LW4}, s{S_W}, 12\ns_mul_i32 s{S_LW5}, s{S_W}, 5120")
    p(f"s_mul_i32 s{S_BEG+3}, s{S_TG}, 40960\ns_add_u32 s{S_BEG+3}, s{S_BEG+3}, {XF}\ns_add_u32 s{S_END+3}, s{S_BEG+3}, 40960")
    p(f"s_lshl_b32 s{S_SO+3}, s{S_ROT}, 12\ns_add_u32 s{S_SO+3}, s{S_SO+3}, s{S_BEG+3}")
    p(f"v_lshlrev_b32 v{V_L16}, 4, v0")
    p("v_lshrrev_b32 v1, 3, v0\nv_and_b32 v2, 7, v0\nv_bfe_u32 v3, v0, 4, 1\nv_lshlrev_b32 v3, 2, v3\nv_xor_b32 v2, v2, v3\nv_lshlrev_b32 v2, 4, v2")
    p(f"v_mul_u32_u24 v3, 3456, v1\nv_add_u32 v{V_DG}, v3, v2\nv_add_u32 v{V_DG+1}, {8*3456-1024}, v{V_DG}")
    p(f"v_mul_u32_u24 v3, 3840, v1\nv_add_u32 v{V_DQ}, v3, v2\nv_add_u32 v{V_DQ+1}, {8*3840-1024}, v{V_DQ}")
    p("v_and_b32 v1, 1, v0\nv_bfe_u32 v2, v0, 1, 1\nv_lshl_add_u32 v1, v1, 1, v2")
    p("v_bfe_u32 v2, v0, 4, 1\nv_lshl_add_u32 v1, v2, 2, v1\nv_lshlrev_b32 v1, 3, v1")
    p("v_bfe_u32 v2, v0, 2, 2\nv_lshrrev_b32 v3, 5, v0\nv_lshl_add_u32 v3, v3, 3, v2")
    p(f"v_lshl_add_u32 v4, v3, 7, v1\nv_bfe_u32 v5, v0, 3, 1\nv_lshl_add_u32 v{V_RD}, v5, 6, v4\nv_xor_b32 v{V_RD+1}, 64, v{V_RD}")
    p(f"v_add_u32 v{V_RD+2}, 40960, v{V_RD}\nv_add_u32 v{V_RD+3}, 40960, v{V_RD+1}")
    p(f"v_mul_u32_u24 v4, 320, v3\nv_add_u32 v{V_R5}, v4, v1\nv_add_u32 v{V_R5+1}, 40960, v{V_R5}")
    c0 = -2.0 * LOG2E * 0.7978845608028654
    p(f"v_mov_b32 v{V_C0}, {fx(c0)}\nv_mov_b32 v{V_C1}, {fx(c0*0.044715)}\nv_mov_b32 v{V_IR2}, 1.0\nv_mov_b32 v{V_R}, 1.0\nv_mov_b32 v{V_RL}, {fx(LOG2E)}")
    p("s_waitcnt lgkmcnt(0)")
    srd(p, S_G, 32, WG_SZ); srd(p, S_U, 34, WG_SZ, -2048); srd(p, S_QA, 28, WQKV_SZ); srd(p, S_QB, 28, WQKV_SZ, 128 - 2048)
    srd(p, S_WS, 36, WS_TOTAL); srd(p, S_PH, 30, WPHI_SZ)
    def setpass(pi, pitch, colreg):
        p(f"s_mul_i32 s{S_BEG+pi}, s{S_W}, {16*pitch}\ns_add_u32 s{S_BEG+pi}, s{S_BEG+pi}, s{colreg}\ns_add_u32 s{S_END+pi}, s{S_BEG+pi}, {640*pitch}")
        p(f"s_mul_i32 s{S_SO+pi}, s{S_ROT}, {64*pitch}\ns_add_u32 s{S_SO+pi}, s{S_SO+pi}, s{S_BEG+pi}")
    def hstore(k, lreg):
        p(f"s_mul_i32 s{S_ST+k}, s{S_TG}, {216*512}\ns_lshl_b32 s{T+9}, s{lreg}, 12\ns_add_u32 s{S_ST+k}, s{S_ST+k}, s{T+9}\ns_add_u32 s{S_ST+k}, s{S_ST+k}, {HF}")
    p(f"s_cmp_lt_u32 s{T+4}, 2\ns_cbranch_scc1 K1_kv")
    p(f"s_cmp_lt_u32 s{S_GP}, 5\ns_cbranch_scc1 K1_q")
    head = p
    SG, SQ = 64 * 3456, 64 * 3840
    p = Prog(); p.ins = list(head.ins); nh = len(head.ins)
    p(f"s_mul_i32 s{T}, s{S_GP}, 3\ns_add_u32 s{T}, s{T}, 3")
    for pi in range(3):
        p(f"s_lshl_b32 s{T+1}, s{T}, 7"); setpass(pi, 3456, T + 1); hstore(pi, T); p(f"s_add_u32 s{T}, s{T}, 1")
    passes = [Pass("gu", ACCA, S_G, S_U, V_DG, SG), Pass("gu", ACCB, S_G, S_U, V_DG, SG), Pass("gu", ACCA, S_G, S_U, V_DG, SG)]
    emit_main(p, passes, 16384, [(41, 78, mk(epi_gu(ACCA, S_ST, V_T), cfg)), (81, 118, mk(epi_gu(ACCB, S_ST + 1, V_T), cfg))], cfg)
    fin(p, mk(epi_gu(ACCA, S_ST + 2, V_T), cfg))
    p.label("K1_end")
    p("s_endpgm")
    txt = finalize(p.ins, True)
    p = Prog(); p.label("K1_q")
    p(f"s_lshl_b32 s{T+1}, s{S_GP}, 8"); setpass(0, 3840, T + 1)
    p(f"s_mul_i32 s{S_ST+3}, s{S_TG}, 40960\ns_lshl_b32 s{T+9}, s{S_GP}, 13\ns_add_u32 s{S_ST+3}, s{S_ST+3}, s{T+9}\ns_add_u32 s{S_ST+3}, s{S_ST+3}, {QF}\ns_add_u32 s{S_ST+4}, s{S_ST+3}, 4096")
    p(f"s_lshl_b32 s{T}, s{S_GP}, 1\ns_add_u32 s{T}, s{T}, 8")
    for pi in (1, 2):
        p(f"s_lshl_b32 s{T+1}, s{T}, 7"); setpass(pi, 3456, T + 1); hstore(pi, T); p(f"s_add_u32 s{T}, s{T}, 1")
    passes = [Pass("q", ACCA, S_QA, S_QB, V_DQ, SQ), Pass("gu", ACCB, S_G, S_U, V_DG, SG), Pass("gu", ACCA, S_G, S_U, V_DG, SG)]
    emit_main(p, passes, 16384, [(41, 60, mk(epi_q(ACCA, S_ST + 3, V_T), cfg)), (81, 118, mk(epi_gu(ACCB, S_ST + 1, V_T), cfg))], cfg)
    fin(p, mk(epi_gu(ACCA, S_ST + 2, V_T), cfg))
    p("s_endpgm")
    txt += finalize(p.ins, True)
    p = Prog(); p.label("K1_kv")
    p(f"s_mul_i32 s{T+1}, s{S_GP}, 160\ns_add_u32 s{T+1}, s{T+1}, 1280"); setpass(0, 3840, T + 1)
    p(f"s_lshl_b32 s{T+1}, s{S_GP}, 7"); setpass(1, 3456, T + 1); hstore(1, S_GP)
    p(f"s_movk_i32 s{T}, 3277")
    for i in range(5):
        p(f"v_add_u32 v1, {64*i}, v0\nv_mul_u32_u24 v2, s{T}, v1\nv_lshrrev_b32 v2, 16, v2")
        p("v_mul_u32_u24 v3, 20, v2\nv_sub_u32 v3, v1, v3")
        p("v_cmp_lt_u32 vcc, 9, v3\nv_mul_u32_u24 v2, 3840, v2\nv_lshl_add_u32 v2, v3, 4, v2")
        p(f"v_add_u32 v3, {1280-160}, v2\nv_cndmask_b32 v2, v2, v3, vcc")
        p(f"v_subrev_u32 v{V_D5+i}, {1024*(i&3)}, v2")
    pre = Prog()
    pre(f"s_getpc_b64 s[{T}:{T+1}]\nK1_pc:\ns_add_u32 s{T}, s{T}, K1_tab-K1_pc\ns_addc_u32 s{T+1}, s{T+1}, 0")
    for i in range(6):
        pre(f"global_load_dwordx4 v[{V_T+4*i}:{V_T+4*i+3}], v{V_L16}, s[{T}:{T+1}] offset:{1024*i if i < 4 else 0}", tag="tab")
        if i == 3: pre(f"s_add_u32 s{T}, s{T}, 4096\ns_addc_u32 s{T+1}, s{T+1}, 0")
        if i == 4: pre(f"s_add_u32 s{T}, s{T}, 1024\ns_addc_u32 s{T+1}, s{T+1}, 0")
    pre(f"s_mul_i32 s{T+2}, s{S_GP}, 3200\ns_lshl_b32 s{T+3}, s{S_W}, 10\ns_add_u32 s{T+2}, s{T+2}, s{T+3}\ns_add_u32 m0, s{T+3}, {WPH}")
    pre(f"buffer_load_dwordx4 v{V_L16}, s[{S_PH}:{S_PH+3}], s{T+2} offen lds", tag="tab")
    pre(f"v_mov_b32 v2, 0\nv_mov_b32 v3, 0\nv_mov_b32 v1, {WPH+WPH_ZERO}\nds_write_b64 v1, v[2:3]")
    VA_PW, VA_VW, VA_A, VA_B, VA_S1, VA_S3 = 221, 222, 223, 248, 249, 250
    pre(f"v_and_b32 v1, 31, v0\nv_lshl_add_u32 v1, s{S_W}, 5, v1\nv_lshrrev_b32 v4, 5, v0")
    pre(f"v_mul_u32_u24 v5, {VL_S}, v1\nv_add_u32 v5, {VL}, v5\nv_mov_b32 v2, 0x3f80\nds_write_b64 v5, v[2:3] offset:160")
    pre(f"v_lshl_add_u32 v{VA_VW}, v4, 4, v5")
    pre(f"v_mul_u32_u24 v5, {PHI_S}, v1\nv_mul_u32_u24 v6, 80, v4\nv_add3_u32 v{VA_PW}, v5, v6, v{V_T+31}".replace(f"v{V_T+31}", "0"))
    pre(f"v_add_u32 v{VA_PW}, {PHI}, v{VA_PW}")
    pre("v_bfe_u32 v1, v0, 2, 2\nv_lshlrev_b32 v1, 2, v1\nv_lshl_add_u32 v1, v4, 1, v1")
    pre("v_and_b32 v2, 1, v0\nv_bfe_u32 v3, v0, 1, 1\nv_lshl_add_u32 v2, v2, 1, v3\nv_bfe_u32 v3, v0, 4, 1\nv_lshl_add_u32 v2, v3, 2, v2")
    pre(f"v_mul_u32_u24 v5, {PHI_S}, v1\nv_lshl_add_u32 v5, v2, 3, v5\ns_mul_i32 s{T+2}, s{S_W}, 80\ns_add_u32 s{T+2}, s{T+2}, {PHI}\nv_add_u32 v{VA_A}, s{T+2}, v5")
    pre("v_and_b32 v2, 3, v0\nv_lshl_add_u32 v2, v3, 2, v2")
    pre(f"s_mul_i32 s{T+2}, s{S_W}, 40\nv_lshlrev_b32 v5, 3, v2\nv_add_u32 v5, s{T+2}, v5\nv_cmp_gt_u32 vcc, 5, v2\nv_mov_b32 v6, 160\nv_cndmask_b32 v5, v6, v5, vcc")
    pre(f"v_mul_u32_u24 v6, {VL_S}, v1\nv_add_u32 v5, v5, v6\nv_add_u32 v{VA_B}, {VL}, v5")
    pre(f"v_and_b32 v1, 31, v0\nv_mul_u32_u24 v2, 21, v4\nv_add_u32 v2, v2, v1\nv_lshlrev_b32 v2, 4, v2\nv_mov_b32 v3, {OOB}")
    pre(f"v_cmp_gt_u32 vcc, 21, v1\nv_cndmask_b32 v{VA_S1}, v3, v2, vcc\nv_cmp_gt_u32 vcc, 21, v0\nv_cndmask_b32 v{VA_S3}, v3, v2, vcc")
    pre(f"s_lshr_b32 s{T+2}, s{S_W}, 1\ns_lshl_b32 s{T+3}, s{S_GP}, 1\ns_add_u32 s{T+2}, s{T+2}, s{T+3}\ns_lshl_b32 s{T+2}, s{T+2}, 4\ns_add_u32 s{T+2}, s{T+2}, s{S_RB}")
    pre(f"s_mul_i32 s{T+2}, s{T+2}, {KVP_STRIDE}\ns_and_b32 s{T+3}, s{S_W}, 1\ns_mul_i32 s{T+3}, s{T+3}, 1680\ns_add_u32 s{T+2}, s{T+2}, s{T+3}\ns_add_u32 s{S_ST+5}, s{T+2}, {KVP}")
    cfg2 = dict(cfg); cfg2["pre"] = pre.ins
    f0 = [mkwait(vm="tab")]
    f1 = []
    for k in range(24):
        f1.append(f"v_add_u32 v{V_T+k}, {WPH}, v{V_T+k}")
        f1.append(I(f"ds_read_b64_tr_b16 a[{160+2*k}:{161+2*k}], v{V_T+k}", tag="wp"))
    KP = V_T; VP = V_T + 20 + 7
    VP = 252
    a = []
    for b in range(5):
        for e in range(8): a.append(f"v_mul_f32 v{8*b+e}, v{V_RL}, v{8*b+e}")
        for e in range(4): a.append(f"v_cvt_pk_bf16_f32 v{KP+4*b+e}, v{8*b+2*e}, v{8*b+2*e+1}")
    for tau in range(2):
        for s in range(3):
            w = 160 + 4 * ((0 * 3 + s) * 2 + tau)
            a.append(f"v_mfma_f32_32x32x16_bf16 v[{16*tau}:{16*tau+15}], a[{w}:{w+3}], v[{KP+4*s}:{KP+4*s+3}], " + ("0" if s == 0 else f"v[{16*tau}:{16*tau+15}]"))
    for b in range(5):
        o = 144 + 4 * (b & 3)
        for e in range(8): a.append(f"v_mul_f32 v{40+8*b+e}, v{V_R}, v{40+8*b+e}")
        for e in range(4): a.append(f"v_cvt_pk_bf16_f32 v{o+e}, v{40+8*b+2*e}, v{40+8*b+2*e+1}")
        a.append(f"ds_write_b128 v{VA_VW}, v[{o}:{o+3}] offset:{32*b}")
    for tau in range(2):
        for s in range(3):
            w = 160 + 4 * ((1 * 3 + s) * 2 + tau)
            a.append(f"v_mfma_f32_32x32x16_bf16 v[{32+16*tau}:{32+16*tau+15}], a[{w}:{w+3}], v[{KP+8+4*s}:{KP+8+4*s+3}], " + ("0" if s == 0 else f"v[{32+16*tau}:{32+16*tau+15}]"))
    EP = list(range(64, 80)) + [144, 145, 146, 147]
    for P in range(2):
        sm = softmax_pair(list(range(32 * P, 32 * P + 20)), EP, KP, [148, 149, 150, 151, 152, 153])
        cnt = 0
        for s_ in sm:
            a.append(s_)
            if s_.startswith("v_cvt_pk"):
                cnt += 1
                if cnt % 4 == 0:
                    ch = cnt // 4 - 1
                    a.append(f"ds_write_b128 v{VA_PW}, v[{KP+4*ch}:{KP+4*ch+3}] offset:{160*P + 16*ch}")
    bq = []
    def kvreads(kp):
        r = []; base = 32 + 12 * (kp & 1)
        for i in range(2): r.append(I(f"ds_read_b64_tr_b16 v[{base+8+2*i}:{base+9+2*i}], v{VA_B} offset:{kp*16*VL_S + i*VL_S}", tag=("kv", kp)))
        for tau in range(2):
            for i in range(2): r.append(I(f"ds_read_b64_tr_b16 v[{base+4*tau+2*i}:{base+4*tau+2*i+1}], v{VA_A} offset:{kp*16*PHI_S + i*PHI_S + tau*64}", tag=("kv", kp)))
        return r
    bq += kvreads(0)
    for kp in range(8):
        if kp + 1 < 8: bq += kvreads(kp + 1)
        bq.append(mkwait(lgkm=("kv", kp)))
        base = 32 + 12 * (kp & 1)
        for tau in range(2):
            bq.append(f"v_mfma_f32_32x32x16_bf16 v[{16*tau}:{16*tau+15}], v[{base+4*tau}:{base+4*tau+3}], v[{base+8}:{base+11}], " + ("0" if kp == 0 else f"v[{16*tau}:{16*tau+15}]"))
    bq2 = []
    for ch in range(3):
        for e in range(4): bq2.append(f"v_cvt_pk_bf16_f32 v{64+4*ch+e}, v{8*ch+2*e}, v{8*ch+2*e+1}")
        bq2.append(f"buffer_store_dwordx4 v[{64+4*ch}:{67+4*ch}], v{VA_S1 if ch < 2 else VA_S3}, s[{S_WS}:{S_WS+3}], s{S_ST+5} offen offset:{672*ch} STFLAG")
    passes = [Pass("kv", ACCA, S_QA, S_QA, V_D5, SQ), Pass("gu", ACCB, S_G, S_U, V_DG, SG)]
    kb = cfg["kv_bar"]
    emit_main(p, passes, 20480, [(14, 15, mk(f0, cfg)), (15, 36, mk(f1, cfg)), (41, kb, mk(a, cfg)), (kb, 78, mk(bq, cfg)), (79, 80, mk(bq2, cfg))], cfg2)
    fin(p, mk(epi_gu(ACCB, S_ST + 1, V_T), cfg))
    p("s_endpgm")
    txt += finalize(p.ins, True)
    tab = wphi_table(WPH_ZERO)
    txt += ".p2align 6\n.type K1_tab,@object\nK1_tab:\n"
    for g in range(6):
        for l in range(64):
            txt += "  .long " + ", ".join(str(tab[4 * g + e][l]) for e in range(4)) + "\n"
    return kernel_text(name, txt, 256, 208, 102)

CFG = dict(pro_stages=2, wait_at=[0, 2], rd_dist4=[3, 3, 2], rd_dist5=[3, 3, 2, 2], rate0=3, rate=2, depth0=2, depth=4,
           rot_a=10, rot_b=20, stflag="", kv_bar=71)
```

```python
from common import *

def gen_k2(cfg, name="k2_kernel"):
    D = cfg["k2_depth"]
    ACC = 0; ST = 80
    RS = 336; WR = 64 * RS
    p = Prog()
    p("s_cmp_ge_u32 s2, 256\ns_cbranch_scc1 K2_end")
    if cfg.get("stamps"):
        p.add(stamp(0)); p.add(stamp(1, True))
    p(f"s_load_dwordx2 s[20:21], s[0:1], {KA_X}")
    p(f"s_load_dwordx2 s[22:23], s[0:1], {KA_OUT}")
    p(f"s_load_dwordx2 s[24:25], s[0:1], {KA_WS}")
    VT = ST + 36 * D
    V_TID, V_A, V_W, V_X = VT, VT + 1, VT + 2, VT + 4
    V_XD = V_X + 6
    assert V_XD % 2 == 0
    p(f"v_mov_b32 v{V_TID}, v0\nv_lshrrev_b32 v1, 6, v0\nv_and_b32 v0, 63, v0\nv_readfirstlane_b32 s3, v1")
    p(f"v_lshlrev_b32 v{V_W}, 4, v0\nv_lshrrev_b32 v1, 4, v0\nv_and_b32 v2, 15, v0\nv_lshlrev_b32 v2, 4, v2\nv_lshl_add_u32 v{V_A}, v1, 9, v2")
    p("s_and_b32 s26, s2, 7\ns_lshr_b32 s27, s2, 3\ns_and_b32 s28, s27, 3\ns_lshl_b32 s26, s26, 2\ns_add_u32 s26, s26, s28\ns_lshr_b32 s27, s27, 2")
    p("s_cmp_eq_u32 s3, 0")
    p(f"s_cselect_b32 s30, 20, 18\ns_mov_b32 s35, 110592\ns_cselect_b32 s35, 40960, s35\ns_mov_b32 s32, {HF - 18*2048}\ns_cselect_b32 s32, {OF}, s32")
    p("s_cselect_b32 s31, 0, 2\ns_mul_i32 s36, s3, 18\ns_add_u32 s31, s31, s36")
    p("s_lshl_b32 s36, s36, 11\ns_add_u32 s32, s32, s36\ns_lshl_b32 s36, s26, 1\ns_mul_i32 s36, s36, s35\ns_add_u32 s32, s32, s36\ns_add_u32 s33, s32, s35")
    p(f"s_mul_i32 s34, s27, 74\ns_add_u32 s34, s34, s31\ns_mul_i32 s34, s34, 5120\ns_add_u32 s34, s34, {W2P}")
    p(f"s_mul_i32 s37, s27, {cfg['k2_rot_a']}\ns_mul_i32 s36, s28, {cfg['k2_rot_b']}\ns_add_u32 s37, s37, s36\ns_lshr_b32 s37, s37, 3")
    p("s_cmp_ge_u32 s37, s30\ns_cselect_b32 s36, s30, 0\ns_sub_u32 s37, s37, s36")
    p("s_waitcnt lgkmcnt(0)")
    srd(p, 4, 20, X_SZ); srd(p, 8, 22, X_SZ); srd(p, 12, 24, WS_TOTAL)
    p("s_cmp_eq_u32 s3, 0\ns_cbranch_scc1 K2_s")
    head = p
    def loads(i):
        b = ST + 36 * (i % D)
        o = [I("s_lshl_b32 s38, s37, 11"), I("s_add_u32 s39, s38, s33"), I("s_add_u32 s38, s38, s32"),
             I("s_mul_i32 s40, s37, 5120"), I("s_add_u32 s40, s40, s34"), I("s_add_u32 s41, s40, 4096"),
             I("s_add_u32 s37, s37, 1"), I("s_cmp_eq_u32 s37, s30"), I("s_cselect_b32 s37, 0, s37")]
        ld = []
        for nt in range(5):
            r = b + 16 + 4 * nt
            ld.append(I(f"buffer_load_dwordx4 v[{r}:{r+3}], v{V_W}, s[12:15], s{40 if nt < 4 else 41} offen offset:{1024*(nt&3)}", tag=("ld", i)))
        for tt in range(4):
            r = b + 4 * tt
            ld.append(I(f"buffer_load_dwordx4 v[{r}:{r+3}], v{V_A}, s[12:15], s{38 + (tt>>1)} offen offset:{256*(tt&1)} {cfg['ldflag']}", tag=("ld", i)))
        return o, ld
    def xaddr(p):
        p("s_movk_i32 s42, 3277\ns_mul_i32 s43, s26, 81920\ns_mul_i32 s44, s27, 160\ns_add_u32 s43, s43, s44")
        for u in range(5):
            p(f"v_add_u32 v1, {256*u}, v{V_TID}\nv_mul_u32_u24 v2, s42, v1\nv_lshrrev_b32 v2, 16, v2\nv_mul_u32_u24 v3, 20, v2\nv_sub_u32 v3, v1, v3")
            p(f"v_mul_u32_u24 v2, 1280, v2\nv_lshl_add_u32 v{V_X+u}, v3, 3, v2")
    def body(p, n):
        for i in range(min(D - 1, n)):
            o, ld = loads(i)
            for x in o + ld: p.add(x)
            if i == 0: xaddr(p)
        for i in range(n):
            extra = []
            if i + D - 1 < n:
                o, ld = loads(i + D - 1); extra = [o] + [[x] for x in ld]
            elif i + D - 1 == n:
                extra = [[I(f"buffer_load_dwordx2 v[{V_XD+2*u}:{V_XD+2*u+1}], v{V_X+u}, s[4:7], s43 offen", tag="x")] for u in range(5)]
            if cfg.get("stamps") and i == 0: p.add(stamp(2))
            p.wait(vm=("ld", i))
            if cfg.get("stamps") and i in (0, 4, 9): p.add(stamp({0: 3, 4: 4, 9: 5}[i]))
            b = ST + 36 * (i % D); k = 0
            for tt in range(4):
                for nt in range(5):
                    a = ACC + 4 * (5 * tt + nt)
                    p(f"v_mfma_f32_16x16x32_bf16 v[{a}:{a+3}], v[{b+16+4*nt}:{b+19+4*nt}], v[{b+4*tt}:{b+4*tt+3}], " + ("0" if i == 0 else f"v[{a}:{a+3}]"))
                    if (5 * tt + nt) % 2 == 1 and k < len(extra):
                        for x in extra[k]: p.add(x)
                        k += 1
        p.wait(vm=0)
    p = Prog(); p.ins = list(head.ins)
    body(p, 18)
    p("s_branch K2_fin")
    txt = finalize(p.ins, True)
    p = Prog(); p.label("K2_s")
    body(p, 20)
    p.label("K2_fin")
    p("s_nop 7")
    if cfg.get("stamps"): p.add(stamp(6))
    T = ST
    p(f"v_and_b32 v{T}, 15, v{V_TID}\nv_mul_u32_u24 v{T}, {RS}, v{T}\nv_bfe_u32 v{T+1}, v{V_TID}, 4, 2\nv_lshl_add_u32 v{T}, v{T+1}, 4, v{T}")
    p(f"s_mul_i32 s36, s3, {WR}\nv_add_u32 v{T}, s36, v{T}")
    for tt in range(4):
        for nt in range(5):
            a = ACC + 4 * (5 * tt + nt)
            p(f"ds_write_b128 v{T}, v[{a}:{a+3}] offset:{tt*16*RS + nt*64}")
    for u in range(5):
        p(f"v_add_u32 v{T+1}, {256*u}, v{V_TID}\nv_mul_u32_u24 v{T+2}, s42, v{T+1}\nv_lshrrev_b32 v{T+2}, 16, v{T+2}")
        p(f"v_add_u32 v{T+1}, v{T+1}, v{T+2}\nv_lshlrev_b32 v{T+4+u}, 4, v{T+1}")
        p(f"v_add_u32 v{T+10+u}, {2*WR}, v{T+4+u}")
    p.wait(lgkm=0)
    p("s_barrier")
    if cfg.get("stamps"): p.add(stamp(7))
    for u in range(5):
        for w in range(4):
            r = 16 * u + 4 * w
            p(f"ds_read_b128 v[{r}:{r+3}], v{T+4+u if w < 2 else T+10+u} offset:{(w&1)*WR}", tag=("f", u))
    p(f"v_mov_b32 v{T+16}, 0xffff0000")
    for u in range(5):
        p.wait(lgkm=("f", u))
        r = 16 * u; t = T + 20
        for e in range(4): p(f"v_add_f32 v{r+4+e}, v{r+4+e}, v{r+8+e}")
        for e in range(4): p(f"v_add_f32 v{r+4+e}, v{r+4+e}, v{r+12+e}")
        for e in range(4): p(f"v_mul_f32 v{t+e}, {fx(-LOG2E)}, v{r+4+e}")
        for e in range(4):
            p(f"v_exp_f32 v{t+e}, v{t+e}\nv_mul_f32 v{r+e}, v{r+e}, v{r+4+e}")
        for e in range(4): p(f"v_add_f32 v{t+e}, 1.0, v{t+e}")
        for e in range(4): p(f"v_rcp_f32 v{t+e}, v{t+e}")
        x0 = V_XD + 2 * u
        p(f"v_lshlrev_b32 v{t+4}, 16, v{x0}\nv_and_b32 v{t+5}, v{T+16}, v{x0}\nv_lshlrev_b32 v{t+6}, 16, v{x0+1}\nv_and_b32 v{t+7}, v{T+16}, v{x0+1}")
        for e in range(4): p(f"v_fmac_f32 v{t+4+e}, v{r+e}, v{t+e}")
        p(f"v_cvt_pk_bf16_f32 v{r}, v{t+4}, v{t+5}\nv_cvt_pk_bf16_f32 v{r+1}, v{t+6}, v{t+7}")
        p(f"buffer_store_dwordx2 v[{r}:{r+1}], v{V_X+u}, s[8:11], s43 offen")
    if cfg.get("stamps"):
        p.add(stamp(8)); p.add(stamp(9, True)); stamp_flush(p, 3, 12, 3)
    p.label("K2_end")
    p("s_endpgm")
    txt += finalize(p.ins, True)
    return kernel_text(name, txt, V_XD + 10, 0, 102), 4 * WR
```

```python
import sys
from common import *
import k0, k1, k15, k2
def build(cfg, path):
    t0, d0 = k0.gen_k0()
    t1, d1 = k1.gen_k1(cfg)
    (t15, d15), l15 = k15.gen_k15(cfg)
    (t2, d2), l2 = k2.gen_k2(cfg)
    te, de = kernel_text("empty_kernel", "    s_endpgm\n", 8, 0, 16)
    E = "; @launch kernel=empty_kernel grid=(256,1,1) block=(256,1,1) lds=0\n"
    hdr = "; generated by gen/build.py\n" + E * cfg.get("efront", 0) + f"""; @launch kernel=k0_kernel grid=(256,1,1) block=(320,1,1) lds=20480
; @launch kernel=k1_kernel grid=(256,1,1) block=(256,1,1) lds={k1.LDS_TOTAL}
; @launch kernel=k15_kernel grid=(256,1,1) block=(256,1,1) lds={l15}
; @launch kernel=k2_kernel grid=(256,1,1) block=(256,1,1) lds={l2}
""" + E * cfg.get("eback", 0) + """.amdgcn_target "amdgcn-amd-amdhsa--gfx950"
"""
    ex = cfg.get('efront', 0) + cfg.get('eback', 0)
    open(path, "w").write(hdr + t0 + t1 + t15 + t2 + (te if ex else '') + d0 + d1 + d15 + d2 + (de if ex else ''))
if __name__ == "__main__":
    cfg = dict(k1.CFG); cfg.update(ldflag="", k2_depth=4, k2_rot_a=18, k2_rot_b=36)
    for a in sys.argv[2:]:
        k, v = a.split("=", 1); cfg[k] = eval(v)
    build(cfg, sys.argv[1])
```

```python
import re

import os
LENIENT = bool(os.environ.get('LENIENT'))
TRANS = ("v_exp_f32", "v_log_f32", "v_rcp_f32", "v_rsq_f32", "v_sqrt_f32", "v_sin_f32", "v_cos_f32")

def regs_of(op):
    op = op.strip()
    neg = op.startswith("-")
    if neg: op = op[1:]
    if op.startswith("abs(") : op = op[4:-1]
    if op.startswith("|"): op = op.strip("|")
    m = re.fullmatch(r"([vas])\[(\d+):(\d+)\]", op)
    if m: return [(m.group(1), i) for i in range(int(m.group(2)), int(m.group(3)) + 1)]
    m = re.fullmatch(r"([vas])(\d+)", op)
    if m: return [(m.group(1), int(m.group(2)))]
    if op in ("vcc", "exec", "m0", "scc", "vcc_lo", "vcc_hi", "exec_lo", "exec_hi"):
        return [("x", op.split("_")[0])]
    return []

class I:
    __slots__ = ("text", "tag", "kind", "mn", "dst", "src", "passes", "srcC", "srcAB", "waits", "cost")
    def __init__(self, text, tag=None):
        self.text = text; self.tag = tag; self.waits = None
        self.parse()
    def parse(self):
        t = self.text.split(";")[0].strip()
        self.dst = []; self.src = []; self.passes = 0; self.srcC = []; self.srcAB = []
        if not t or t.endswith(":") or t.startswith("."):
            self.kind = "label" if t.endswith(":") else "dir"; self.mn = t; return
        parts = t.split(None, 1)
        mn = parts[0]; self.mn = mn
        rest = parts[1] if len(parts) > 1 else ""
        ops = [o.strip() for o in rest.split(",")] if rest else []
        clean = []
        for o in ops:
            clean.append(o.split()[0] if o else o)
        mods = rest.split()
        R = [regs_of(o) for o in clean]
        flat = lambda L: [r for x in L for r in x]
        if mn.startswith("v_mfma") or mn.startswith("v_smfmac"):
            self.kind = "mfma"
            self.passes = 8 if "32x32" in mn else (4 if "16x16" in mn else 2)
            self.dst = R[0]; self.srcAB = R[1] + R[2]; self.srcC = R[3]; self.src = self.srcAB + self.srcC
        elif mn.startswith("ds_read") or mn.startswith("ds_bpermute") or mn.startswith("ds_permute") or mn.startswith("ds_swizzle"):
            self.kind = "dsr"; self.dst = R[0]; self.src = flat(R[1:])
        elif mn.startswith("ds_write") or mn.startswith("ds_add"):
            self.kind = "dsw"; self.src = flat(R)
        elif mn.startswith("buffer_load") or mn.startswith("global_load"):
            if "lds" in mods or "_lds_" in mn:
                self.kind = "dma"; self.src = flat(R) + [("x", "m0")]
            else:
                self.kind = "vld"; self.dst = R[0]; self.src = flat(R[1:])
        elif mn.startswith("buffer_store") or mn.startswith("global_store"):
            self.kind = "vst"; self.src = flat(R)
        elif mn.startswith("buffer_atomic") or mn.startswith("global_atomic"):
            self.kind = "vst"; self.src = flat(R)
            if "sc0" in mods: self.dst = R[0]
        elif mn in ("buffer_wbl2", "buffer_inv"):
            self.kind = "vst"
        elif mn.startswith("s_load") or mn.startswith("s_buffer_load") or mn in ("s_memtime", "s_memrealtime"):
            self.kind = "smem"; self.dst = R[0]; self.src = flat(R[1:])
        elif mn == "s_waitcnt": self.kind = "wait"
        elif mn == "s_barrier": self.kind = "barrier"
        elif mn == "s_nop": self.kind = "nop"
        elif mn.startswith("s_cbranch") or mn in ("s_branch", "s_endpgm", "s_setpc_b64", "s_swappc_b64"):
            self.kind = "branch"; self.src = flat(R)
        elif mn.startswith("s_"):
            self.kind = "salu"
            if mn.startswith("s_cmp") or mn in ("s_sleep", "s_setprio", "s_bitcmp0_b32", "s_bitcmp1_b32"):
                self.src = flat(R)
            else:
                self.dst = R[0]; self.src = flat(R[1:])
                if "saveexec" in mn: self.dst = self.dst + [("x", "exec")]
        elif mn.startswith("v_"):
            base = mn.replace("_e32", "").replace("_e64", "").replace("_dpp", "").replace("_sdwa", "")
            self.kind = "trans" if base in TRANS else "valu"
            self.dst = R[0]; self.src = flat(R[1:])
            if base.startswith("v_permlane") and "swap" in base:
                self.dst = R[0] + R[1]; self.src = R[0] + R[1]
            if base in ("v_fmac_f32", "v_dot2c_f32_bf16", "v_pk_fmac_f16") or "_dpp" in mn or "row_" in rest or "quad_perm" in rest:
                self.src = self.src + R[0]
            if base.startswith("v_add_co") or base.startswith("v_addc_co") or base.startswith("v_sub_co"):
                self.dst = R[0] + R[1]; self.src = flat(R[2:])
            if base == "v_cndmask_b32" and len(R) == 3: self.src = self.src + [("x", "vcc")]
        else:
            raise ValueError("unknown instr: " + self.text)

class Prog:
    def __init__(self):
        self.ins = []
    def __call__(self, text, tag=None):
        for line in text.split("\n"):
            if line.strip():
                self.ins.append(I(line.strip(), tag))
        return self
    def add(self, i): self.ins.append(i)
    def wait(self, vm=None, lgkm=None):
        self.ins.append(mkwait(vm, lgkm))
    def label(self, name): self.ins.append(I(name + ":"))

def mkwait(vm=None, lgkm=None):
    i = I("s_waitcnt vmcnt(0)"); i.waits = (vm, lgkm); return i

def resolve_waits(ins):
    out = []
    vmq = []; lgq = []
    vm_done = 0; lg_done = 0
    smem_out = False
    waited = set()
    for i in ins:
        if i.waits is not None:
            vm, lg = i.waits
            for w in (vm, lg):
                if w is not None and not isinstance(w, int):
                    for t in (w if isinstance(w, list) else [w]): waited.add(t)
            parts = []
            if vm is not None:
                if vm == 0 and isinstance(vm, int): need = len(vmq)
                else:
                    tags = vm if isinstance(vm, list) else [vm]
                    need = 0
                    for t in tags:
                        idx = [k for k, x in enumerate(vmq) if x == t]
                        if not idx and LENIENT: continue
                        assert idx, f"vm tag {t} not issued before its wait"
                        need = max(need, idx[-1] + 1)
                if need > vm_done:
                    n = len(vmq) - need
                    n = min(n, 63)
                    parts.append(f"vmcnt({n})"); vm_done = len(vmq) - n
            if lg is not None:
                if lg == 0 and isinstance(lg, int): need = len(lgq)
                else:
                    tags = lg if isinstance(lg, list) else [lg]
                    need = 0
                    for t in tags:
                        idx = [k for k, x in enumerate(lgq) if x == t]
                        assert idx, f"lgkm tag {t} not issued before its wait"
                        need = max(need, idx[-1] + 1)
                if need > lg_done:
                    n = len(lgq) - need
                    if smem_out: n = 0
                    n = min(n, 15)
                    parts.append(f"lgkmcnt({n})"); lg_done = len(lgq) - n
                    if n == 0: smem_out = False
            if parts:
                out.append(I("s_waitcnt " + " ".join(parts)))
            continue
        assert i.tag is None or i.tag not in waited, f"op tagged {i.tag} issued after a wait on that tag: {i.text}"
        if i.kind in ("vld", "vst", "dma"): vmq.append(i.tag)
        elif i.kind in ("dsr", "dsw"): lgq.append(i.tag)
        elif i.kind == "smem": lgq.append(i.tag); smem_out = True
        elif i.kind == "wait":
            m = re.search(r"vmcnt\((\d+)\)", i.text)
            if m: vm_done = max(vm_done, len(vmq) - int(m.group(1)))
            m = re.search(r"lgkmcnt\((\d+)\)", i.text)
            if m:
                if not smem_out or int(m.group(1)) == 0:
                    lg_done = max(lg_done, len(lgq) - int(m.group(1)))
                if int(m.group(1)) == 0: smem_out = False
        out.append(i)
    return out

def states(i):
    if i.kind in ("label", "dir"): return 0
    if i.kind == "nop": return int(i.text.split()[1], 0) + 1
    return 1

def need_states(p, c):
    ov = lambda a, b: bool(set(a) & set(b))
    n = 0
    pv = p.kind in ("valu", "trans")
    cv = c.kind in ("valu", "trans")
    if pv:
        vd = [r for r in p.dst if r[0] in "va"]
        sd = [r for r in p.dst if r[0] in "sx"]
        if c.kind == "mfma" and ov(vd, c.src): n = max(n, 2)
        if p.kind == "trans" and c.kind == "valu" and ov(vd, c.src): n = max(n, 1)
        if cv and ("permlane" in c.mn or "dpp" in c.mn or "row_" in c.text or "quad_perm" in c.text) and ov(vd, c.src): n = max(n, 2)
        if cv and ("readlane" in c.mn or "readfirstlane" in c.mn) and ov(vd, c.src): n = max(n, 1)
        if cv and ov(sd, c.src): n = max(n, 4 if ("readlane" in c.mn or "writelane" in c.mn) else 2)
        if c.kind in ("vld", "vst", "dma") and ov(sd, c.src): n = max(n, 5)
        if c.kind in ("salu", "branch", "smem") and ov(sd, c.src): n = max(n, 2)
        if p.mn.startswith("v_dot") and (ov(vd, c.src) or ov(vd, c.dst)):
            same = c.mn == p.mn and ov(vd, c.dst) and not ov(vd, [r for r in c.src if r not in c.dst])
            if not same: n = max(n, 3)
        if ("sdwa" in p.mn or "op_sel" in p.text) and cv and ov(vd, c.src): n = max(n, 1)
        if ("x", "vcc") in p.dst and c.kind == "branch" and "vcc" in c.mn: n = max(n, 5)
    if p.kind == "mfma":
        big = {8: 12, 4: 8, 2: 5}[p.passes]
        if c.kind == "mfma":
            if ov(p.dst, c.srcAB): n = max(n, big)
            if ov(p.dst, c.srcC):
                if not (p.dst == c.srcC and p.passes == c.passes): n = max(n, {8: 10, 4: 6, 2: 4}[p.passes])
                elif p.passes == 2: n = max(n, 2)
            if ov(p.dst, c.dst) and p.passes != c.passes: n = max(n, big)
        elif cv:
            if ov(p.dst, c.src) or ov(p.dst, c.dst): n = max(n, big)
            if ov(p.srcC, c.dst): n = max(n, {8: 7, 4: 3, 2: 1}[p.passes])
        elif c.kind in ("vld", "vst", "dma", "dsr", "dsw"):
            if ov(p.dst, c.src) or ov(p.dst, c.dst): n = max(n, big)
            if ov(p.srcC, c.dst): n = max(n, {8: 7, 4: 3, 2: 1}[p.passes])
    if p.kind == "vst" and ("x4" in p.mn or "x3" in p.mn):
        if ov([r for r in p.src if r[0] in "va"], c.dst): n = max(n, 2)
    if p.kind == "salu" and ("x", "m0") in p.dst and c.kind == "dma": n = max(n, 1)
    return n

def fix_hazards(ins, verbose=False):
    out = []
    nn = 0
    for c in ins:
        if c.kind in ("label", "dir"):
            out.append(c); continue
        need = 0; dist = 0
        for p in reversed(out):
            if dist >= 20: break
            r = need_states(p, c) - dist
            if r > need: need = r
            dist += states(p)
        while need > 0:
            k = min(need, 16)
            out.append(I(f"s_nop {k-1}")); need -= k; nn += 1
        out.append(c)
    if verbose: print("nops inserted:", nn)
    return out

def finalize(ins, verbose=False):
    ins = resolve_waits(ins)
    ins = fix_hazards(ins, verbose)
    return "\n".join(("" if i.kind == "label" else "    ") + i.text for i in ins) + "\n"

def vr(b, n=1, f="v"):
    return f"{f}{b}" if n == 1 else f"{f}[{b}:{b+n-1}]"
def ar(b, n=1): return vr(b, n, "a")
def sr(b, n=1): return vr(b, n, "s")
```

```python
from common import *

S_G, S_U, S_QA, S_QB, S_WS, S_PH = 4, 8, 12, 16, 20, 24
S_PTR = 28
S_W, S_RB, S_TG, S_ROT, S_GP = 40, 41, 42, 43, 44
S_SO, S_BEG, S_END = 46, 50, 54
S_LW4, S_LW5 = 58, 59
S_ST = 60
S_T = 70
ACCA, ACCB, FR = 0, 80, 160
V_DG, V_DQ, V_D5 = 200, 202, 204
V_L16 = 209
V_RD = 210
V_R5 = 214
V_C0, V_C1, V_IR2, V_R, V_RL = 216, 217, 218, 219, 220
V_T = 224
PHI = 81920; PHI_S = 336
VL = PHI + 128 * PHI_S; VL_S = 176
WPH = VL + 128 * VL_S
WPH_ZERO = 4096
LDS_TOTAL = WPH + 4096 + 64

def cost(i):
    if i.kind == "trans": return 2.0
    if i.kind == "mfma": return 0.0
    if i.waits is not None: return 0.5
    return 1.0

class Pass:
    def __init__(self, kind, acc, srdA, srdB, vd, step):
        self.kind = kind; self.nT = 5 if kind == "kv" else 4
        self.acc = acc; self.srdA = srdA; self.srdB = srdB; self.vd = vd; self.step = step

def emit_main(p, passes, slot_stride, nsl, sb, fillers, cfg):
    NS = 10 * len(passes); N = 4 * NS
    NF = cfg["nfrag"]; LB = cfg["lb"]; Q = cfg["quiet"]; WE = cfg["wait_every"]
    per_set = 65536 // slot_stride
    mf = [(n, t) for n in range(N) for t in range(passes[n // 40].nT)]
    M = len(mf)
    start = {}
    for j, (n, t) in enumerate(mf):
        if t == 0: start[n] = j
    start[N] = M
    def rd(j, i):
        n, t = mf[j]
        s = n // 4; kk = n % 4; P = passes[s // 10]; slot = s % nsl
        dst = FR + 4 * (j % NF) + 2 * i
        st = slot // per_set; off = (slot % per_set) * slot_stride
        if P.kind == "kv":
            return I(f"ds_read_b64_tr_b16 v[{dst}:{dst+1}], v{V_R5+st} offset:{off + kk*5120 + i*1280 + t*64}", tag=("fr", j))
        return I(f"ds_read_b64_tr_b16 v[{dst}:{dst+1}], v{V_RD + 2*st + (t & 1)} offset:{off + kk*4096 + (t>>1)*2048 + i*512}", tag=("fr", j))
    def dma_pieces(s):
        pi = s // 10; P = passes[pi]; slot = s % nsl; tag = ("st", s)
        so = S_SO + pi
        pcs = []
        if pi == 0:
            for kk in range(4):
                pc = [I(f"buffer_load_dwordx4 a[{16*s+4*kk}:{16*s+4*kk+3}], v{V_L16}, s[{S_WS}:{S_WS+3}], s{S_SO+3} offen offset:{1024*kk}", tag=tag)]
                if kk == 3 and s < 9:
                    pc += [I(f"s_add_u32 s{S_SO+3}, s{S_SO+3}, 4096"), I(f"s_cmp_eq_u32 s{S_SO+3}, s{S_END+3}"), I(f"s_cselect_b32 s{S_SO+3}, s{S_BEG+3}, s{S_SO+3}")]
                pcs.append(pc)
        w = []
        if P.kind == "kv":
            for i in range(5):
                pc = []
                if i == 0: pc.append(I(f"s_add_u32 m0, s{S_LW5}, {slot*slot_stride}"))
                if i == 4: pc.append(I(f"s_add_u32 m0, s{S_LW5}, {slot*slot_stride + 4096}"))
                pc.append(I(f"buffer_load_dwordx4 v{P.vd+i}, s[{P.srdA}:{P.srdA+3}], s{so} offen offset:{1024*(i&3)} lds", tag=tag))
                w.append(pc)
        else:
            for i in range(4):
                pc = []
                if i == 0: pc.append(I(f"s_add_u32 m0, s{S_LW4}, {slot*slot_stride}"))
                sr_ = P.srdA if i < 2 else P.srdB
                pc.append(I(f"buffer_load_dwordx4 v{P.vd+(i&1)}, s[{sr_}:{sr_+3}], s{so} offen offset:{1024*i} lds", tag=tag))
                w.append(pc)
        if s % 10 < 9:
            w[-1] += [I(f"s_add_u32 s{so}, s{so}, {P.step}"), I(f"s_cmp_eq_u32 s{so}, s{S_END+pi}"), I(f"s_cselect_b32 s{so}, s{S_BEG+pi}, s{so}")]
        out = []
        for i in range(max(len(pcs), len(w))):
            if i < len(w): out.append(w[i])
            if i < len(pcs): out.append(pcs[i])
        return out
    groups = []; s = 0
    while s < NS:
        k = 1 if s < cfg["single_until"] else sb
        groups.append(list(range(s, min(NS, s + k)))); s += k
    gaps = [dict(pre=[], post=[], lock=False) for _ in range(M)]
    bargap = {}
    freed_at = {}
    pro_reads = []
    for gi, grp in enumerate(groups):
        j0 = start[4 * grp[0]]; j1 = start[4 * grp[-1] + 4]
        b = j0 - LB
        if gi > 0:
            gaps[b]["post"] += [mkwait(vm=("st", grp[-1]), lgkm=0)] + ([] if cfg.get("nobar") else [I("s_barrier")])
            gaps[b]["lock"] = True
            bargap[grp[0]] = b
            for s in groups[gi - 1]: freed_at[s] = b
        G = j1 - j0
        span = G - Q if gi + 1 < len(groups) else G
        for k in range(2 * G):
            j = j0 + k // 2
            g = b + 1 + (k * span) // (2 * G)
            g = max(g, j - NF + 1)
            assert g <= j - 2 or g < 0, (g, j)
            if g < 0: pro_reads.append(rd(j, k & 1))
            else: gaps[g]["post"].append(rd(j, k & 1))
    for j in range(0, M, WE):
        gaps[j]["pre"].append(mkwait(lgkm=("fr", min(M - 1, j + WE - 1))))
    queue = [(s, pc) for s in range(NS) for pc in dma_pieces(s)]
    qi = 0
    while qi < len(queue) and qi < cfg["pro_pieces"] * len(dma_pieces(0)) // 8:
        for i in queue[qi][1]: p.add(i)
        qi += 1
    for i in cfg.get("pre", []): p.add(i)
    if cfg.get("stamps"): p.add(stamp(2))
    p.wait(vm=("st", groups[0][-1]), lgkm=0)
    p("s_barrier")
    if cfg.get("stamps"): p.add(stamp(3))
    for i in pro_reads: p.add(i)
    nextg = 0
    for g in range(M):
        if qi >= len(queue): break
        s, pc = queue[qi]
        cur = mf[g][0] // 4
        if g < nextg or gaps[g]["lock"]: continue
        if s >= nsl and g <= freed_at.get(s - nsl, 10**9): continue
        if s > cur + (cfg["depth0"] if cur < 8 else cfg["depth"]): continue
        if cfg.get("nodma") and cur >= 10: pc = [I("s_nop 0", tag=i.tag) if i.kind == "dma" else i for i in pc]
        if pc[0].kind == "salu":
            gaps[g]["pre"].insert(0, pc[0]); pc = pc[1:]
        gaps[g]["post"].insert(0, pc[0])
        gaps[g]["dma"] = True
        if len(pc) > 1: gaps[g + 1 if not gaps[g + 1]["lock"] and (cfg["dgap0"] if cur < 10 else cfg["dgap"]) > 1 else g]["post"] += pc[1:]
        qi += 1
        nextg = g + (cfg["dgap0"] if cur < 10 else cfg["dgap"])
    assert qi == len(queue), (qi, len(queue))
    def gap_of(x):
        if isinstance(x, tuple): return bargap[x[1]] + x[2]
        return start[x]
    for (k0, k1, items) in ([] if cfg.get("nofill") else fillers):
        cells = gaps[gap_of(k0):gap_of(k1)]
        base = [sum(cost(i) for i in g["post"]) + sum(cost(i) for i in g["pre"]) + (100 if g["lock"] else 0) + (cfg["dma_pen"] if g.get("dma") else 0) for g in cells]
        tot = sum(cost(i) for i in items)
        lo, hi = 0.0, 1000.0
        for _ in range(50):
            mid = (lo + hi) / 2
            if sum(max(0.0, mid - b) for b in base) >= tot: hi = mid
            else: lo = mid
        cap = 0.0; used = 0.0; k = 0
        for g, b in zip(cells, base):
            cap += max(0.0, hi - b)
            while k < len(items) and used + cost(items[k]) * 0.5 <= cap and not g["lock"]:
                g["post"].append(items[k]); used += cost(items[k]); k += 1
        assert not cells[-1]["lock"]
        cells[-1]["post"] += items[k:]
    for j, g in enumerate(gaps):
        n, t = mf[j]; P = passes[n // 40]
        if cfg.get("stamps") and t == 0 and n in (20, 40, 80): p.add(stamp({20: 4, 40: 5, 80: 6}[n]))
        a = P.acc + 16 * t; fr = FR + 4 * (j % NF); x = 4 * (n % 40)
        c = "0" if n % 40 == 0 else f"v[{a}:{a+15}]"
        for i in g["pre"]: p.add(i)
        p(f"v_mfma_f32_32x32x16_bf16 v[{a}:{a+15}], v[{fr}:{fr+3}], a[{x}:{x+3}], {c}")
        for i in g["post"]: p.add(i)

def epi_gu(acc, sst, T):
    o = []
    for half in range(2):
        for b in range(2):
            out = T + 16 + 4 * (b & 1)
            for pr in range(2):
                el = [8 * b + 4 * pr + e for e in range(4)]
                g = [acc + 16 * half + r for r in el]; u = [acc + 32 + 16 * half + r for r in el]
                t = [T + 4 * ((2 * b + pr) & 3) + e for e in range(4)]
                for e in range(4): o.append(f"v_mul_f32 v{t[e]}, v{g[e]}, v{g[e]}")
                for e in range(4): o.append(f"v_fma_f32 v{t[e]}, v{t[e]}, v{V_C1}, v{V_C0}")
                for e in range(4): o.append(f"v_mul_f32 v{t[e]}, v{t[e]}, v{g[e]}")
                for e in range(4):
                    o.append(f"v_exp_f32 v{t[e]}, v{t[e]}")
                    o.append(f"v_mul_f32 v{u[e]}, v{g[e]}, v{u[e]}")
                for e in range(4): o.append(f"v_fma_f32 v{t[e]}, v{t[e]}, v{V_IR2}, v{V_IR2}")
                for e in range(4): o.append(f"v_rcp_f32 v{t[e]}, v{t[e]}")
                for e in range(4): o.append(f"v_mul_f32 v{u[e]}, v{u[e]}, v{t[e]}")
                o.append(f"v_cvt_pk_bf16_f32 v{out+2*pr}, v{u[0]}, v{u[1]}")
                o.append(f"v_cvt_pk_bf16_f32 v{out+2*pr+1}, v{u[2]}, v{u[3]}")
            o.append(f"buffer_store_dwordx4 v[{out}:{out+3}], v{V_L16}, s[{S_WS}:{S_WS+3}], s{sst} offen offset:{(4*half+2*b)*512} STFLAG")
    return o

def epi_q(acc, sst, T):
    o = []
    for t in range(4):
        for b in range(2):
            out = T + 4 * ((2 * t + b) & 3)
            for e in range(8): o.append(f"v_mul_f32 v{acc+16*t+8*b+e}, v{V_RL}, v{acc+16*t+8*b+e}")
            for e in range(4): o.append(f"v_cvt_pk_bf16_f32 v{out+e}, v{acc+16*t+8*b+2*e}, v{acc+16*t+8*b+2*e+1}")
            o.append(f"buffer_store_dwordx4 v[{out}:{out+3}], v{V_L16}, s[{S_WS}:{S_WS+3}], s{sst + (t>>1)} offen offset:{(4*(t&1)+2*b)*512} STFLAG")
    return o

def mk(lst, cfg):
    out = []
    for x in lst:
        if isinstance(x, I): out.append(x)
        else: out.append(I(x.replace("STFLAG", cfg["stflag"]).rstrip()))
    return out

def gen_k1(cfg, name="k1_kernel"):
    p = Prog()
    p("s_cmp_ge_u32 s2, 256\ns_cbranch_scc1 K1_end")
    if cfg.get("stamps"):
        p.add(stamp(0)); p.add(stamp(1, True)); p.add(stamp(6))
    def fin(p, tail):
        if cfg.get("stamps"): p.add(stamp(7))
        for i in tail: p.add(i)
        if cfg.get("stamps"):
            p.add(stamp(8)); p.add(stamp(9, True)); stamp_flush(p, 1, S_WS, S_W)
    p(f"s_load_dwordx4 s[28:31], s[0:1], {KA_WQKV}")
    p(f"s_load_dwordx4 s[32:35], s[0:1], {KA_WG}")
    p(f"s_load_dwordx2 s[36:37], s[0:1], {KA_WS}")
    p(f"v_lshrrev_b32 v1, 6, v0\nv_and_b32 v0, 63, v0\nv_readfirstlane_b32 s{S_W}, v1")
    T = S_T
    p(f"s_and_b32 s{T}, s2, 7\ns_lshr_b32 s{T+1}, s2, 3")
    p(f"s_and_b32 s{T+2}, s{T}, 1\ns_lshl_b32 s{T+2}, s{T+2}, 3\ns_and_b32 s{T+3}, s{T+1}, 7\ns_add_u32 s{S_RB}, s{T+2}, s{T+3}")
    p(f"s_lshr_b32 s{T+4}, s{T+1}, 3")
    p(f"s_mul_i32 s{T+5}, s{T+3}, {cfg['rot_a']}\ns_mul_i32 s{T+6}, s{T+4}, {cfg['rot_b']}\ns_add_u32 s{T+5}, s{T+5}, s{T+6}\ns_lshr_b32 s{S_ROT}, s{T+5}, 3")
    p(f"s_cmp_ge_u32 s{S_ROT}, 10\ns_cselect_b32 s{T+5}, 10, 0\ns_sub_u32 s{S_ROT}, s{S_ROT}, s{T+5}")
    p(f"s_and_b32 s{T+5}, s{T}, 6\ns_and_b32 s{T+6}, s{T+4}, 1\ns_add_u32 s{S_GP}, s{T+5}, s{T+6}")
    p(f"s_lshl_b32 s{S_TG}, s{S_RB}, 2\ns_add_u32 s{S_TG}, s{S_TG}, s{S_W}")
    p(f"s_lshl_b32 s{S_LW4}, s{S_W}, 12\ns_mul_i32 s{S_LW5}, s{S_W}, 5120")
    p(f"s_mul_i32 s{S_BEG+3}, s{S_TG}, 40960\ns_add_u32 s{S_BEG+3}, s{S_BEG+3}, {XF}\ns_add_u32 s{S_END+3}, s{S_BEG+3}, 40960")
    p(f"s_lshl_b32 s{S_SO+3}, s{S_ROT}, 12\ns_add_u32 s{S_SO+3}, s{S_SO+3}, s{S_BEG+3}")
    p(f"v_lshlrev_b32 v{V_L16}, 4, v0")
    p("v_lshrrev_b32 v1, 3, v0\nv_and_b32 v2, 7, v0\nv_bfe_u32 v3, v0, 4, 1\nv_lshlrev_b32 v3, 2, v3\nv_xor_b32 v2, v2, v3\nv_lshlrev_b32 v2, 4, v2")
    p(f"v_mul_u32_u24 v3, 3456, v1\nv_add_u32 v{V_DG}, v3, v2\nv_add_u32 v{V_DG+1}, {8*3456-1024}, v{V_DG}")
    p(f"v_mul_u32_u24 v3, 3840, v1\nv_add_u32 v{V_DQ}, v3, v2\nv_add_u32 v{V_DQ+1}, {8*3840-1024}, v{V_DQ}")
    p("v_and_b32 v1, 1, v0\nv_bfe_u32 v2, v0, 1, 1\nv_lshl_add_u32 v1, v1, 1, v2")
    p("v_bfe_u32 v2, v0, 4, 1\nv_lshl_add_u32 v1, v2, 2, v1\nv_lshlrev_b32 v1, 3, v1")
    p("v_bfe_u32 v2, v0, 2, 2\nv_lshrrev_b32 v3, 5, v0\nv_lshl_add_u32 v3, v3, 3, v2")
    p(f"v_lshl_add_u32 v4, v3, 7, v1\nv_bfe_u32 v5, v0, 3, 1\nv_lshl_add_u32 v{V_RD}, v5, 6, v4\nv_xor_b32 v{V_RD+1}, 64, v{V_RD}")
    p(f"v_add_u32 v{V_RD+2}, 65536, v{V_RD}\nv_add_u32 v{V_RD+3}, 65536, v{V_RD+1}")
    p(f"v_mul_u32_u24 v4, 320, v3\nv_add_u32 v{V_R5}, v4, v1\nv_add_u32 v{V_R5+1}, 61440, v{V_R5}")
    c0 = -2.0 * LOG2E * 0.7978845608028654
    p(f"v_mov_b32 v{V_C0}, {fx(c0)}\nv_mov_b32 v{V_C1}, {fx(c0*0.044715)}\nv_mov_b32 v{V_IR2}, 1.0\nv_mov_b32 v{V_R}, 1.0\nv_mov_b32 v{V_RL}, {fx(LOG2E)}")
    p("s_waitcnt lgkmcnt(0)")
    srd(p, S_G, 32, WG_SZ); srd(p, S_U, 34, WG_SZ, -2048); srd(p, S_QA, 28, WQKV_SZ); srd(p, S_QB, 28, WQKV_SZ, 128 - 2048)
    srd(p, S_WS, 36, WS_TOTAL); srd(p, S_PH, 30, WPHI_SZ)
    def setpass(pi, pitch, colreg):
        p(f"s_mul_i32 s{S_BEG+pi}, s{S_W}, {16*pitch}\ns_add_u32 s{S_BEG+pi}, s{S_BEG+pi}, s{colreg}\ns_add_u32 s{S_END+pi}, s{S_BEG+pi}, {640*pitch}")
        p(f"s_mul_i32 s{S_SO+pi}, s{S_ROT}, {64*pitch}\ns_add_u32 s{S_SO+pi}, s{S_SO+pi}, s{S_BEG+pi}")
    def hstore(k, lreg):
        p(f"s_mul_i32 s{S_ST+k}, s{S_TG}, {216*512}\ns_lshl_b32 s{T+9}, s{lreg}, 12\ns_add_u32 s{S_ST+k}, s{S_ST+k}, s{T+9}\ns_add_u32 s{S_ST+k}, s{S_ST+k}, {HF}")
    p(f"s_cmp_lt_u32 s{T+4}, 2\ns_cbranch_scc1 K1_kv")
    p(f"s_cmp_lt_u32 s{S_GP}, 5\ns_cbranch_scc1 K1_q")
    head = p
    SG, SQ = 64 * 3456, 64 * 3840
    p = Prog(); p.ins = list(head.ins); nh = len(head.ins)
    p(f"s_mul_i32 s{T}, s{S_GP}, 3\ns_add_u32 s{T}, s{T}, 3")
    for pi in range(3):
        p(f"s_lshl_b32 s{T+1}, s{T}, 7"); setpass(pi, 3456, T + 1); hstore(pi, T); p(f"s_add_u32 s{T}, s{T}, 1")
    passes = [Pass("gu", ACCA, S_G, S_U, V_DG, SG), Pass("gu", ACCB, S_G, S_U, V_DG, SG), Pass("gu", ACCA, S_G, S_U, V_DG, SG)]
    emit_main(p, passes, 16384, cfg['nsl'], cfg['sb'], [(41, 78, mk(epi_gu(ACCA, S_ST, V_T), cfg)), (81, 118, mk(epi_gu(ACCB, S_ST + 1, V_T), cfg))], cfg)
    fin(p, mk(epi_gu(ACCA, S_ST + 2, V_T), cfg))
    p.label("K1_end")
    p("s_endpgm")
    txt = finalize(p.ins, True)
    p = Prog(); p.label("K1_q")
    p(f"s_lshl_b32 s{T+1}, s{S_GP}, 8"); setpass(0, 3840, T + 1)
    p(f"s_mul_i32 s{S_ST+3}, s{S_TG}, 40960\ns_lshl_b32 s{T+9}, s{S_GP}, 13\ns_add_u32 s{S_ST+3}, s{S_ST+3}, s{T+9}\ns_add_u32 s{S_ST+3}, s{S_ST+3}, {QF}\ns_add_u32 s{S_ST+4}, s{S_ST+3}, 4096")
    p(f"s_lshl_b32 s{T}, s{S_GP}, 1\ns_add_u32 s{T}, s{T}, 8")
    for pi in (1, 2):
        p(f"s_lshl_b32 s{T+1}, s{T}, 7"); setpass(pi, 3456, T + 1); hstore(pi, T); p(f"s_add_u32 s{T}, s{T}, 1")
    passes = [Pass("q", ACCA, S_QA, S_QB, V_DQ, SQ), Pass("gu", ACCB, S_G, S_U, V_DG, SG), Pass("gu", ACCA, S_G, S_U, V_DG, SG)]
    emit_main(p, passes, 16384, cfg['nsl'], cfg['sb'], [(41, 60, mk(epi_q(ACCA, S_ST + 3, V_T), cfg)), (81, 118, mk(epi_gu(ACCB, S_ST + 1, V_T), cfg))], cfg)
    fin(p, mk(epi_gu(ACCA, S_ST + 2, V_T), cfg))
    p("s_endpgm")
    txt += finalize(p.ins, True)
    p = Prog(); p.label("K1_kv")
    p(f"s_mul_i32 s{T+1}, s{S_GP}, 160\ns_add_u32 s{T+1}, s{T+1}, 1280"); setpass(0, 3840, T + 1)
    p(f"s_lshl_b32 s{T+1}, s{S_GP}, 7"); setpass(1, 3456, T + 1); hstore(1, S_GP)
    p(f"s_movk_i32 s{T}, 3277")
    for i in range(5):
        p(f"v_add_u32 v1, {64*i}, v0\nv_mul_u32_u24 v2, s{T}, v1\nv_lshrrev_b32 v2, 16, v2")
        p("v_mul_u32_u24 v3, 20, v2\nv_sub_u32 v3, v1, v3")
        p("v_cmp_lt_u32 vcc, 9, v3\nv_mul_u32_u24 v2, 3840, v2\nv_lshl_add_u32 v2, v3, 4, v2")
        p(f"v_add_u32 v3, {1280-160}, v2\nv_cndmask_b32 v2, v2, v3, vcc")
        p(f"v_subrev_u32 v{V_D5+i}, {1024*(i&3)}, v2")
    pre = Prog()
    pre(f"v_add_u32 v{V_RD+2}, 61440, v{V_RD}\nv_add_u32 v{V_RD+3}, 61440, v{V_RD+1}")
    pre(f"s_getpc_b64 s[{T}:{T+1}]\nK1_pc:\ns_add_u32 s{T}, s{T}, K1_tab-K1_pc\ns_addc_u32 s{T+1}, s{T+1}, 0")
    for i in range(6):
        pre(f"global_load_dwordx4 v[{V_T+4*i}:{V_T+4*i+3}], v{V_L16}, s[{T}:{T+1}] offset:{1024*i if i < 4 else 0}", tag="tab")
        if i == 3: pre(f"s_add_u32 s{T}, s{T}, 4096\ns_addc_u32 s{T+1}, s{T+1}, 0")
        if i == 4: pre(f"s_add_u32 s{T}, s{T}, 1024\ns_addc_u32 s{T+1}, s{T+1}, 0")
    pre(f"s_mul_i32 s{T+2}, s{S_GP}, 3200\ns_lshl_b32 s{T+3}, s{S_W}, 10\ns_add_u32 s{T+2}, s{T+2}, s{T+3}\ns_mov_b32 s{T+8}, m0\ns_add_u32 m0, s{T+3}, {WPH}")
    pre(f"buffer_load_dwordx4 v{V_L16}, s[{S_PH}:{S_PH+3}], s{T+2} offen lds", tag="tab")
    pre(f"s_mov_b32 m0, s{T+8}")
    pre(f"v_mov_b32 v2, 0\nv_mov_b32 v3, 0\nv_mov_b32 v1, {WPH+WPH_ZERO}\nds_write_b64 v1, v[2:3]")
    VA_PW, VA_VW, VA_A, VA_B, VA_S1, VA_S3 = 221, 222, 223, 248, 249, 250
    pre(f"v_and_b32 v1, 31, v0\nv_lshl_add_u32 v1, s{S_W}, 5, v1\nv_lshrrev_b32 v4, 5, v0")
    pre(f"v_mul_u32_u24 v5, {VL_S}, v1\nv_add_u32 v5, {VL}, v5\nv_mov_b32 v2, 0x3f80\nds_write_b64 v5, v[2:3] offset:160")
    pre(f"v_lshl_add_u32 v{VA_VW}, v4, 4, v5")
    pre(f"v_mul_u32_u24 v5, {PHI_S}, v1\nv_mul_u32_u24 v6, 80, v4\nv_add3_u32 v{VA_PW}, v5, v6, v{V_T+31}".replace(f"v{V_T+31}", "0"))
    pre(f"v_add_u32 v{VA_PW}, {PHI}, v{VA_PW}")
    pre("v_bfe_u32 v1, v0, 2, 2\nv_lshlrev_b32 v1, 2, v1\nv_lshl_add_u32 v1, v4, 1, v1")
    pre("v_and_b32 v2, 1, v0\nv_bfe_u32 v3, v0, 1, 1\nv_lshl_add_u32 v2, v2, 1, v3\nv_bfe_u32 v3, v0, 4, 1\nv_lshl_add_u32 v2, v3, 2, v2")
    pre(f"v_mul_u32_u24 v5, {PHI_S}, v1\nv_lshl_add_u32 v5, v2, 3, v5\ns_mul_i32 s{T+2}, s{S_W}, 80\ns_add_u32 s{T+2}, s{T+2}, {PHI}\nv_add_u32 v{VA_A}, s{T+2}, v5")
    pre("v_and_b32 v2, 3, v0\nv_lshl_add_u32 v2, v3, 2, v2")
    pre(f"s_mul_i32 s{T+2}, s{S_W}, 40\nv_lshlrev_b32 v5, 3, v2\nv_add_u32 v5, s{T+2}, v5\nv_cmp_gt_u32 vcc, 5, v2\nv_mov_b32 v6, 160\nv_cndmask_b32 v5, v6, v5, vcc")
    pre(f"v_mul_u32_u24 v6, {VL_S}, v1\nv_add_u32 v5, v5, v6\nv_add_u32 v{VA_B}, {VL}, v5")
    pre(f"v_and_b32 v1, 31, v0\nv_mul_u32_u24 v2, 21, v4\nv_add_u32 v2, v2, v1\nv_lshlrev_b32 v2, 4, v2\nv_mov_b32 v3, {OOB}")
    pre(f"v_cmp_gt_u32 vcc, 21, v1\nv_cndmask_b32 v{VA_S1}, v3, v2, vcc\nv_cmp_gt_u32 vcc, 21, v0\nv_cndmask_b32 v{VA_S3}, v3, v2, vcc")
    pre(f"s_lshr_b32 s{T+2}, s{S_W}, 1\ns_lshl_b32 s{T+3}, s{S_GP}, 1\ns_add_u32 s{T+2}, s{T+2}, s{T+3}\ns_lshl_b32 s{T+2}, s{T+2}, 4\ns_add_u32 s{T+2}, s{T+2}, s{S_RB}")
    pre(f"s_mul_i32 s{T+2}, s{T+2}, {KVP_STRIDE}\ns_and_b32 s{T+3}, s{S_W}, 1\ns_mul_i32 s{T+3}, s{T+3}, 1680\ns_add_u32 s{T+2}, s{T+2}, s{T+3}\ns_add_u32 s{S_ST+5}, s{T+2}, {KVP}")
    cfg2 = dict(cfg); cfg2["pre"] = pre.ins
    f0 = [mkwait(vm="tab")]
    f1 = []
    for k in range(24):
        f1.append(f"v_add_u32 v{V_T+k}, {WPH}, v{V_T+k}")
        f1.append(I(f"ds_read_b64_tr_b16 a[{160+2*k}:{161+2*k}], v{V_T+k}", tag="wp"))
    KP = V_T; VP = V_T + 20 + 7
    VP = 252
    a = []
    for b in range(5):
        for e in range(8): a.append(f"v_mul_f32 v{8*b+e}, v{V_RL}, v{8*b+e}")
        for e in range(4): a.append(f"v_cvt_pk_bf16_f32 v{KP+4*b+e}, v{8*b+2*e}, v{8*b+2*e+1}")
    for tau in range(2):
        for s in range(3):
            w = 160 + 4 * ((0 * 3 + s) * 2 + tau)
            a.append(f"v_mfma_f32_32x32x16_bf16 v[{16*tau}:{16*tau+15}], a[{w}:{w+3}], v[{KP+4*s}:{KP+4*s+3}], " + ("0" if s == 0 else f"v[{16*tau}:{16*tau+15}]"))
    for b in range(5):
        o = 144 + 4 * (b & 3)
        for e in range(8): a.append(f"v_mul_f32 v{40+8*b+e}, v{V_R}, v{40+8*b+e}")
        for e in range(4): a.append(f"v_cvt_pk_bf16_f32 v{o+e}, v{40+8*b+2*e}, v{40+8*b+2*e+1}")
        a.append(f"ds_write_b128 v{VA_VW}, v[{o}:{o+3}] offset:{32*b}")
    for tau in range(2):
        for s in range(3):
            w = 160 + 4 * ((1 * 3 + s) * 2 + tau)
            a.append(f"v_mfma_f32_32x32x16_bf16 v[{32+16*tau}:{32+16*tau+15}], a[{w}:{w+3}], v[{KP+8+4*s}:{KP+8+4*s+3}], " + ("0" if s == 0 else f"v[{32+16*tau}:{32+16*tau+15}]"))
    EP = list(range(64, 80)) + [144, 145, 146, 147]
    for P in range(2):
        sm = softmax_pair(list(range(32 * P, 32 * P + 20)), EP, KP, [148, 149, 150, 151, 152, 153])
        cnt = 0
        for s_ in sm:
            a.append(s_)
            if s_.startswith("v_cvt_pk"):
                cnt += 1
                if cnt % 4 == 0:
                    ch = cnt // 4 - 1
                    a.append(f"ds_write_b128 v{VA_PW}, v[{KP+4*ch}:{KP+4*ch+3}] offset:{160*P + 16*ch}")
    bq = []
    def kvreads(kp):
        r = []; base = 32 + 12 * (kp & 1)
        for i in range(2): r.append(I(f"ds_read_b64_tr_b16 v[{base+8+2*i}:{base+9+2*i}], v{VA_B} offset:{kp*16*VL_S + i*VL_S}", tag=("kv", kp)))
        for tau in range(2):
            for i in range(2): r.append(I(f"ds_read_b64_tr_b16 v[{base+4*tau+2*i}:{base+4*tau+2*i+1}], v{VA_A} offset:{kp*16*PHI_S + i*PHI_S + tau*64}", tag=("kv", kp)))
        return r
    bq += kvreads(0)
    for kp in range(8):
        if kp + 1 < 8: bq += kvreads(kp + 1)
        bq.append(mkwait(lgkm=("kv", kp)))
        base = 32 + 12 * (kp & 1)
        for tau in range(2):
            bq.append(f"v_mfma_f32_32x32x16_bf16 v[{16*tau}:{16*tau+15}], v[{base+4*tau}:{base+4*tau+3}], v[{base+8}:{base+11}], " + ("0" if kp == 0 else f"v[{16*tau}:{16*tau+15}]"))
    bq2 = []
    for ch in range(3):
        for e in range(4): bq2.append(f"v_cvt_pk_bf16_f32 v{64+4*ch+e}, v{8*ch+2*e}, v{8*ch+2*e+1}")
        bq2.append(f"buffer_store_dwordx4 v[{64+4*ch}:{67+4*ch}], v{VA_S1 if ch < 2 else VA_S3}, s[{S_WS}:{S_WS+3}], s{S_ST+5} offen offset:{672*ch} STFLAG")
    passes = [Pass("kv", ACCA, S_QA, S_QA, V_D5, SQ), Pass("gu", ACCB, S_G, S_U, V_DG, SG)]
    kb = cfg["kv_bar"]
    emit_main(p, passes, 20480, 4, 1, [(("bar", 4, -2), ("bar", 4, 0), mk(f0, cfg)), (("bar", 4, 1), 36, mk(f1, cfg)), (41, ("bar", kb, 0), mk(a, cfg)), (("bar", kb, 1), 78, mk(bq, cfg)), (79, 80, mk(bq2, cfg))], cfg2)
    fin(p, mk(epi_gu(ACCB, S_ST + 1, V_T), cfg))
    p("s_endpgm")
    txt += finalize(p.ins, True)
    tab = wphi_table(WPH_ZERO)
    txt += ".p2align 6\n.type K1_tab,@object\nK1_tab:\n"
    for g in range(6):
        for l in range(64):
            txt += "  .long " + ", ".join(str(tab[4 * g + e][l]) for e in range(4)) + "\n"
    return kernel_text(name, txt, 256, 208, 102)

CFG = dict(pro_pieces=12, nfrag=10, lb=6, quiet=2, wait_every=2, single_until=10, nsl=6, sb=2, depth0=2, depth=5, dgap0=1, dgap=3, dma_pen=2,
           rot_a=10, rot_b=20, stflag="", kv_bar=18)
```

```python
from common import *

S_G, S_U, S_QA, S_QB, S_WS, S_X = 4, 8, 12, 16, 20, 24
S_W, S_RB, S_TG, S_ROT, S_GP = 40, 41, 42, 43, 44
S_X2 = 45
S_SO, S_BEG, S_END = 46, 50, 54
S_LW, S_LX = 58, 59
S_ST = 60
S_LW4 = 66
S_T = 70
ACCA, ACCB, FR = 0, 80, 160
V_XR, V_SEL, V_MEAN, V_CSW, V_CSR, V_S1, V_S2 = 144, 148, 152, 156, 157, 158, 159
V_DG, V_DQ, V_DX = 200, 202, 204
V_D5 = [202, 203, 206, 207, 208]
V_L16 = 209
V_R5 = 210
V_C0, V_C1, V_IR2, V_R, V_RL = 216, 217, 218, 219, 220
V_ONE = 152
V_T = 224
A_CS = 236
XRING_GQ = 98304; XRING_KV = 61440
PHI = 61440; PHI_S = 336
VL = PHI + 128 * PHI_S; VL_S = 176
WPH = VL + 128 * VL_S
WPH_ZERO = 4096
CSX = 147456
LDS_TOTAL = CSX + 5120

import re
VOP3 = ("v_fma_f32", "v_cvt_pk", "v_max3", "v_min3", "v_lshl_add", "v_add3", "v_bfe", "v_accvgpr", "v_mul_lo", "v_perm_b32", "v_pk_")
def cost(i, cfg=None):
    if i.waits is not None or i.kind == "wait": return 1.5
    if i.kind == "trans": return 8
    if i.kind == "mfma": return -24 if i.passes == 8 else -8
    if i.kind in ("dma", "vld", "vst"): return DMA_COST[0]
    if i.kind in ("dsr",): return 5
    if i.kind == "dsw": return 8
    if i.kind == "barrier": return 20
    if i.mn.startswith(VOP3): return 5
    if re.search(r"0x[0-9a-f]{3,}|[ ,]\d{3,}", i.text): return 5
    return 4
DMA_COST = [10]

class Pass:
    def __init__(self, kind, acc, srdA, srdB, vd, step, rd):
        self.kind = kind; self.nT = 5 if kind == "kv" else 4
        self.acc = acc; self.srdA = srdA; self.srdB = srdB; self.vd = vd; self.step = step; self.rd = rd

def mk(lst, cfg):
    out = []
    for x in lst:
        if isinstance(x, I): out.append(x)
        else:
            for l in x.split("\n"): out.append(I(l.replace("STFLAG", cfg["stflag"]).rstrip()))
    return out

def cs_publish(nT, pi):
    o = []
    for t in range(nT): o.append(f"v_accvgpr_read_b32 v{V_T+24+t}, a{A_CS+4*t}")
    for t in range(nT):
        r = V_T + 24 + t
        o.append(f"v_and_b32 v{V_T+30}, 0xffff0000, v{r}\nv_sub_f32 v{r}, v{r}, v{V_T+30}\nv_cvt_pk_bf16_f32 v{r}, v{V_T+30}, v{r}")
        o.append(I(f"ds_write_b32 v{V_CSW}, v{r} offset:{1024*t}", tag=("csw", pi)))
    return o

def cs_read(tiles, pi):
    return [I(f"ds_read_b128 v[{V_T+4*t}:{V_T+4*t+3}], v{V_CSR} offset:{1024*t}", tag=("cs", pi, t)) for t in tiles]

def cs_apply(tiles, acc, pi):
    o = [mkwait(lgkm=[("cs", pi, t) for t in tiles])]
    for t in tiles:
        a = acc + 16 * t
        o.append(f"v_mfma_f32_32x32x16_bf16 v[{a}:{a+15}], v[{V_T+4*t}:{V_T+4*t+3}], v[{V_MEAN}:{V_MEAN+3}], v[{a}:{a+15}]")
    return o

def stats_final():
    t = V_T + 29
    c0 = -2.0 * LOG2E * 0.7978845608028654
    o = []
    for a in (V_S1, V_S2):
        o.append(f"v_mov_b32 v{t}, v{a}\nv_permlane32_swap_b32 v{a}, v{t}\nv_add_f32 v{a}, v{a}, v{t}")
    o.append(f"v_mul_f32 v{V_S1}, {fx(-1/640)}, v{V_S1}\nv_mul_f32 v{V_S2}, {fx(1/640)}, v{V_S2}")
    o.append(f"v_fma_f32 v{V_S2}, -v{V_S1}, v{V_S1}, v{V_S2}\nv_max_f32 v{V_S2}, 0, v{V_S2}")
    o.append(f"v_cvt_pk_bf16_f32 v{V_MEAN}, v{V_S1}, v{V_S1}\nv_cvt_pk_bf16_f32 v{V_S2}, v{V_S2}, v{V_S2}")
    o.append(f"v_mov_b32 v{V_MEAN+1}, v{V_MEAN}\nv_lshlrev_b32 v{V_S2}, 16, v{V_S2}\nv_mov_b32 v{V_MEAN+2}, v{V_MEAN}")
    o.append(f"v_add_f32 v{V_S2}, {fx(1e-5)}, v{V_S2}\nv_mov_b32 v{V_MEAN+3}, v{V_MEAN}\nv_cvt_pk_bf16_f32 v{V_S2}, v{V_S2}, v{V_S2}\nv_lshlrev_b32 v{V_S2}, 16, v{V_S2}")
    o.append(f"v_sqrt_f32 v{V_S2}, v{V_S2}\nv_cvt_pk_bf16_f32 v{V_S2}, v{V_S2}, v{V_S2}\nv_lshlrev_b32 v{V_S2}, 16, v{V_S2}")
    o.append(f"v_rcp_f32 v{V_R}, v{V_S2}\nv_mul_f32 v{V_IR2}, v{V_S2}, v{V_S2}")
    o.append(f"v_mul_f32 v{V_C0}, {fx(c0)}, v{V_R}\nv_mul_f32 v{V_RL}, {fx(LOG2E)}, v{V_R}\nv_mul_f32 v{V_C1}, v{V_R}, v{V_R}")
    o.append(f"v_mul_f32 v{V_C1}, {fx(0.044715)}, v{V_C1}\nv_mul_f32 v{V_C1}, v{V_C1}, v{V_C0}")
    return o

def emit_main(p, passes, slot_stride, nsl, sb, NF, fillers, cfg):
    NS = 10 * len(passes); N = 4 * NS
    LB = cfg["lb"]; Q = cfg["quiet"]; WE = cfg["wait_every"]; XS = 3
    if LB + Q > NF: LB = NF - Q
    per_set = 65536 // slot_stride
    groups = []; s = 0
    while s < NS:
        k = 1 if s < 10 else sb
        groups.append(list(range(s, min(NS, s + k)))); s += k
    mf = []; gstart = []; marks = {}
    for gi, grp in enumerate(groups):
        gstart.append(len(mf))
        nT = passes[grp[0] // 10].nT
        ks = [4 * s + j for s in grp for j in range(4)]
        if grp[-1] % 10 == 9:
            ks = [n for n in ks if n % 4 == 0] + [n for n in ks if n % 4]
        if gi == len(groups) - 1 and cfg["stagger"]:
            k0 = [n for n in ks if n % 4 == 0]; k1 = [n for n in ks if n % 4]
            mf += [(n, t) for n in k0 for t in range(nT)]
            marks[("csdone", grp[0] // 10)] = len(mf)
            mf += [(n, t) for n in k1 for t in (0, 2)]
            marks["pair0done"] = len(mf)
            mf += [(n, t) for n in k1 for t in (1, 3)]
        else:
            for n in ks:
                mf += [(n, t) for t in range(nT)]
                if grp[-1] % 10 == 9 and n == 4 * grp[-1]: marks[("csdone", grp[0] // 10)] = len(mf)
        if grp[-1] % 10 == 9: marks[("passend", grp[0] // 10)] = len(mf)
    M = len(mf); gstart.append(M)
    kstart = {}
    for j, (n, t) in enumerate(mf): kstart.setdefault(n, j)
    def rd(j, i):
        n, t = mf[j]
        s = n // 4; kk = n % 4; P = passes[s // 10]; slot = s % nsl
        dst = FR + 4 * (j % NF) + 2 * i
        st = slot // per_set; off = (slot % per_set) * slot_stride
        if P.kind == "kv":
            return I(f"ds_read_b64_tr_b16 v[{dst}:{dst+1}], v{P.rd+kk} offset:{off + i*1280 + t*64}", tag=("fr", j))
        return I(f"ds_read_b64_tr_b16 v[{dst}:{dst+1}], v{P.rd + 8*st + 2*kk + (t & 1)} offset:{off + (t>>1)*2048 + i*512}", tag=("fr", j))
    def dma_pieces(s):
        pi = s // 10; P = passes[pi]; slot = s % nsl; tag = ("st", s)
        so = S_SO + pi
        w = []
        if P.kind == "kv":
            for i in range(5):
                pc = []
                if i == 0: pc.append(I(f"s_add_u32 m0, s{S_LW}, {slot*slot_stride}"))
                if i == 4: pc.append(I(f"s_add_u32 m0, s{S_LW}, {slot*slot_stride + 4096}"))
                pc.append(I(f"buffer_load_dwordx4 v{P.vd[i]}, s[{P.srdA}:{P.srdA+3}], s{so} offen offset:{1024*(i&3)} lds", tag=tag))
                w.append(pc)
        else:
            for i in range(4):
                pc = []
                if i == 0: pc.append(I(f"s_add_u32 m0, s{S_LW4}, {slot*slot_stride}"))
                sr_ = P.srdA if i < 2 else P.srdB
                pc.append(I(f"buffer_load_dwordx4 v{P.vd+(i&1)}, s[{sr_}:{sr_+3}], s{so} offen offset:{1024*i} lds", tag=tag))
                w.append(pc)
        if s % 10 < 9:
            w[-1] += [I(f"s_add_u32 s{so}, s{so}, {P.step}"), I(f"s_cmp_eq_u32 s{so}, s{S_END+pi}"), I(f"s_cselect_b32 s{so}, s{S_BEG+pi}, s{so}")]
        if pi == 0:
            for i in range(4):
                pc = []
                if i == 0: pc.append(I(f"s_add_u32 m0, s{S_LX}, {(s % XS)*16384}"))
                pc.append(I(f"buffer_load_dwordx4 v{V_DX+(i&1)}, s[{S_X}:{S_X+3}], s{S_SO+3 if i < 2 else S_X2} offen offset:{1024*i} lds", tag=tag))
                if i == 3 and s < 9:
                    pc += [I(f"s_add_u32 s{S_SO+3}, s{S_SO+3}, 128"), I(f"s_cmp_eq_u32 s{S_SO+3}, s{S_END+3}"), I(f"s_cselect_b32 s{S_SO+3}, s{S_BEG+3}, s{S_SO+3}"),
                           I(f"s_add_u32 s{S_X2}, s{S_SO+3}, {16*1280-2048}")]
                w.append(pc)
        return w
    gaps = [dict(pre=[], post=[], lock=False, cs=(mf[j][0] % 4 == 0)) for j in range(M)]
    pro_reads = []
    def put(g, i):
        if g < 0: pro_reads.append(i)
        else: gaps[g]["post"].append(i)
    bargap = {}; freed_at = {}
    XT = ACCB
    for gi, grp in enumerate(groups):
        j0 = gstart[gi]; j1 = gstart[gi + 1]
        b = j0 - LB
        if gi > 0:
            gaps[b]["post"] += [mkwait(vm=("st", grp[-1]), lgkm=0), I("s_barrier")]
            gaps[b]["lock"] = True
            bargap[grp[0]] = b
            for s in groups[gi - 1]: freed_at[s] = b
        G = j1 - j0
        span = G - Q if gi + 1 < len(groups) else G
        if grp[0] < 10:
            s = grp[0]
            for kk in range(4):
                put(b + 1 + 2 * kk, I(f"ds_read_b128 a[{16*s+4*kk}:{16*s+4*kk+3}], v{V_XR+kk} offset:{(s % XS)*16384}", tag=("xa", 4 * s + kk)))
        for k in range(2 * G):
            j = j0 + k // 2
            g = max(b + 1 + (k * span) // (2 * G), j - NF + 1)
            assert g <= j - 2
            put(g, rd(j, k & 1))
        if grp[0] < 10:
            for kk in range(4):
                put(b + 2 + 2 * kk, I(f"ds_read_b128 v[{XT+4*kk}:{XT+4*kk+3}], v{V_XR+kk} offset:{(s % XS)*16384}", tag=("xv", s)))
            g = b + 12
            batch = [mkwait(lgkm=("xv", s))]
            for r in range(16):
                batch += [I(f"v_dot2c_f32_bf16 v{V_S1}, v{XT+r}, v{V_ONE}"), I(f"v_dot2c_f32_bf16 v{V_S2}, v{XT+r}, v{XT+r}")]
            gaps[g]["post"] += batch
            if s == 9: marks["statsdone"] = g + 1
    lastp = len(passes) - 1
    eb = marks[("csdone", lastp)] + cfg["cs_gaps"]
    gaps[eb]["post"] = [mkwait(lgkm=("csw", lastp)), I("s_barrier")] + gaps[eb]["post"]; gaps[eb]["lock"] = True
    marks[("csbar", lastp)] = eb
    for pi in range(lastp): marks[("csbar", pi)] = bargap[10 * (pi + 1)]
    for j in range(0, M, WE):
        tags = [("fr", min(M - 1, j + WE - 1))]
        for jj in range(j, min(M, j + WE)):
            if mf[jj][0] < 40: tags.append(("xa", mf[jj][0]))
        gaps[j]["pre"].append(mkwait(lgkm=tags))
    queue = [(s, pc) for s in range(NS) for pc in dma_pieces(s) + cfg.get("extra_dma", {}).get(s, [])]
    qi = 0
    while qi < len(queue) and qi < cfg["pro_pieces"] * len(dma_pieces(0)) // 8:
        for i in queue[qi][1]: p.add(i)
        qi += 1
    for i in cfg.get("pre", []): p.add(i)
    if cfg.get("stamps"): p.add(stamp(2))
    p.wait(vm=("st", 0), lgkm=0)
    p("s_barrier")
    if cfg.get("stamps"): p.add(stamp(3))
    for i in pro_reads: p.add(i)
    nextg = 0
    gstage = []
    for gi, grp in enumerate(groups): gstage += [grp[0] + (len(grp) * k) // (gstart[gi+1] - gstart[gi]) for k in range(gstart[gi+1] - gstart[gi])]
    for g in range(M):
        if qi >= len(queue): break
        s, pc = queue[qi]
        cur = gstage[g]
        if g < nextg or gaps[g]["lock"]: continue
        if s >= nsl and g <= freed_at.get(s - nsl, 10**9): continue
        if XS <= s < 10 and g <= freed_at.get(s - XS, 10**9): continue
        if s > cur + (cfg["depth0"] if cur < 8 else cfg["depth"]): continue
        if pc[0].kind == "salu":
            gaps[g]["pre"].insert(0, pc[0]); pc = pc[1:]
        gaps[g]["post"].insert(0, pc[0])
        gaps[g]["dma"] = True
        dg = cfg["dgap0"] if cur < 10 else cfg["dgap"]
        if len(pc) > 1: gaps[g + 1 if not gaps[g + 1]["lock"] and dg > 1 else g]["post"] += pc[1:]
        marks[("dmaend", s)] = g + 1
        qi += 1
        nextg = g + dg
    assert qi == len(queue), (qi, len(queue))
    def gap_of(x):
        if isinstance(x, tuple):
            if x[0] == "bar": return bargap[x[1]] + x[2]
            if x[0] == "m": return marks[x[1]] + x[2]
            if x[0] == "end": return M + x[1]
        return kstart[x]
    DMA_COST[0] = cfg["dma_cost"]
    for (k0, k1, items) in sorted(fillers, key=lambda f: len(f[2]) > 60):
        g0, g1 = gap_of(k0), gap_of(k1)
        while gaps[g1 - 1]["lock"]: g1 -= 1
        def load(g):
            nxt = gaps[g + 1]["pre"] if g + 1 < M else []
            return sum(cost(i) for i in gaps[g]["post"]) + sum(cost(i) for i in nxt) - (8 if gaps[g]["cs"] else 0)
        def attempt(cap, commit):
            k = 0
            for g in range(g0, g1):
                if gaps[g]["lock"]: continue
                u = load(g)
                while k < len(items) and (u + cost(items[k]) <= cap or items[k].kind == "mfma"):
                    if items[k].kind == "mfma": u = max(u, cap)
                    u += cost(items[k])
                    if commit: gaps[g]["post"].append(items[k])
                    k += 1
            return k == len(items)
        cap = cfg["cap"]
        while not attempt(cap, False): cap += 1
        attempt(cap, True)
        if cfg.get("verbose"): print("filler", k0, k1, len(items), "cap", cap)
    seen = set()
    for j, g in enumerate(gaps):
        n, t = mf[j]; P = passes[n // 40]
        if cfg.get("stamps") and j in (kstart[20], kstart[40], kstart.get(80, -1)): p.add(stamp({20: 4, 40: 5, 80: 6}[n]))
        a = P.acc + 16 * t; fr = FR + 4 * (j % NF); x = 4 * (n % 40)
        c = "0" if n % 40 == 0 else f"v[{a}:{a+15}]"
        for i in g["pre"]: p.add(i)
        p(f"v_mfma_f32_32x32x16_bf16 v[{a}:{a+15}], v[{fr}:{fr+3}], a[{x}:{x+3}], {c}")
        post = list(g["post"])
        if cfg["dma_last"] and g.get("dma"):
            d = post[0]; rest = post[1:]
            sal = [i for i in rest if i.kind == "salu"]; oth = [i for i in rest if i.kind != "salu"]
            if not any(i.kind in ("dma", "vld", "vst") or i.waits is not None and i.waits[0] is not None for i in oth) and not g.get("salu_before"):
                post = oth + [d] + sal
        if cfg.get("nodma") and n >= 40: post = [I("s_nop 0") if i.kind == "dma" else i for i in post]
        if cfg.get("notrans") and n >= 40: post = [I(i.text.replace("v_exp_f32", "v_mov_b32").replace("v_rcp_f32", "v_mov_b32")) if i.kind == "trans" else i for i in post]
        if cfg.get("novalu") and n >= 40: post = [i for i in post if i.kind not in ("valu", "trans")]
        if cfg.get("nost") and n >= 40: post = [i for i in post if i.kind != "vst"]
        if cfg.get("nobar") and n >= 40: post = [i for i in post if i.kind != "barrier"]
        if n % 4 == 0:
            d = A_CS + 4 * t
            cm = I(f"v_mfma_f32_16x16x32_bf16 a[{d}:{d+3}], v[{V_SEL}:{V_SEL+3}], v[{fr}:{fr+3}], " + ("0" if n % 40 == 0 else f"a[{d}:{d+3}]"))
            k = len(post); u = sum(cost(i) for i in gaps[j + 1]["pre"]) if j + 1 < M else 0
            tot = sum(cost(i) for i in post)
            while k > 0 and not g["lock"] and tot > cfg["cap"] and u + cost(post[k - 1]) <= 9 and post[k - 1].kind != "mfma":
                k -= 1; u += cost(post[k]); tot -= cost(post[k])
            post.insert(k, cm)
        for i in post: p.add(i)

def epi_gu(acc, sst, T, halves=(0, 1)):
    o = []
    for half in halves:
        for b in range(2):
            out = T + 16 + 4 * (b & 1)
            for pr in range(2):
                el = [8 * b + 4 * pr + e for e in range(4)]
                g = [acc + 16 * half + r for r in el]; u = [acc + 32 + 16 * half + r for r in el]
                t = [T + 8 * (1 - half) * 0 + (0 if half == 0 else 4) + 8 * pr + e for e in range(4)]
                for e in range(4): o.append(f"v_mul_f32 v{t[e]}, v{g[e]}, v{g[e]}")
                for e in range(4): o.append(f"v_fma_f32 v{t[e]}, v{t[e]}, v{V_C1}, v{V_C0}")
                for e in range(4): o.append(f"v_mul_f32 v{t[e]}, v{t[e]}, v{g[e]}")
                for e in range(4):
                    o.append(f"v_exp_f32 v{t[e]}, v{t[e]}")
                    o.append(f"v_mul_f32 v{u[e]}, v{g[e]}, v{u[e]}")
                for e in range(4): o.append(f"v_fma_f32 v{t[e]}, v{t[e]}, v{V_IR2}, v{V_IR2}")
                for e in range(4): o.append(f"v_rcp_f32 v{t[e]}, v{t[e]}")
                for e in range(4): o.append(f"v_mul_f32 v{u[e]}, v{u[e]}, v{t[e]}")
                o.append(f"v_cvt_pk_bf16_f32 v{out+2*pr}, v{u[0]}, v{u[1]}")
                o.append(f"v_cvt_pk_bf16_f32 v{out+2*pr+1}, v{u[2]}, v{u[3]}")
            o.append(f"buffer_store_dwordx4 v[{out}:{out+3}], v{V_L16}, s[{S_WS}:{S_WS+3}], s{sst} offen offset:{(4*half+2*b)*512} STFLAG")
    return o

def epi_q(acc, sst, T):
    o = []
    for t in range(4):
        for b in range(2):
            out = T + 4 * ((2 * t + b) & 3)
            for e in range(8): o.append(f"v_mul_f32 v{acc+16*t+8*b+e}, v{V_RL}, v{acc+16*t+8*b+e}")
            for e in range(4): o.append(f"v_cvt_pk_bf16_f32 v{out+e}, v{acc+16*t+8*b+2*e}, v{acc+16*t+8*b+2*e+1}")
            o.append(f"buffer_store_dwordx4 v[{out}:{out+3}], v{V_L16}, s[{S_WS}:{S_WS+3}], s{sst + (t>>1)} offen offset:{(4*(t&1)+2*b)*512} STFLAG")
    return o

def std_fillers(passes, epis, cfg):
    f = []
    last = len(passes) - 1
    f.append((("m", "statsdone", 1), ("m", ("passend", 0), 2), mk(stats_final(), cfg)))
    for pi, P in enumerate(passes):
        tiles = list(range(P.nT))
        f.append((("m", ("csdone", pi), 1), ("m", ("csbar", pi), 0), mk(cs_publish(P.nT, pi), cfg)))
        if pi < last:
            f.append((("m", ("passend", pi), -2), ("m", ("passend", pi), 1), cs_read(tiles, pi)))
            f.append((("m", ("passend", pi), 3), ("m", ("passend", pi), 5), mk(cs_apply(tiles, P.acc, pi), cfg)))
            st = ("m", ("passend", pi), 7)
            for (end, nxt, items) in epis[pi]:
                f.append((st, end, mk(items, cfg))); st = nxt
        else:
            f.append((("m", ("csbar", pi), 1), ("m", ("csbar", pi), 2), cs_read(tiles, pi)))
    return f

def tail(passes, sst, cfg):
    pi = len(passes) - 1; acc = passes[pi].acc
    if cfg["stagger"]:
        f = [(("m", "pair0done", 0), ("m", "pair0done", 1), mk(cs_apply([0, 2], acc, pi), cfg))]
        e0 = mk(epi_gu(acc, sst, V_T, (0,)), cfg)
        k = cfg["tail_k"]
        f.append((("m", "pair0done", 3), ("end", 0), e0[:k]))
        return f, mk(cs_apply([1, 3], acc, pi), cfg) + e0[k:] + mk(epi_gu(acc, sst, V_T, (1,)), cfg)
    return [], mk(cs_apply([0, 1, 2, 3], acc, pi), cfg) + mk(epi_gu(acc, sst, V_T), cfg)

def gen_k1(cfg, name="k1_kernel"):
    p = Prog()
    T = S_T
    p("s_cmp_ge_u32 s2, 256\ns_cbranch_scc1 K1_end")
    if cfg.get("stamps"):
        p.add(stamp(0)); p.add(stamp(1, True)); p.add(stamp(6))
    def fin(p, tl):
        if cfg.get("stamps"): p.add(stamp(7))
        for i in tl: p.add(i)
        if cfg.get("stamps"):
            p.add(stamp(8)); p.add(stamp(9, True)); stamp_flush(p, 1, S_WS, S_W)
    if cfg.get("codepf"):
        p(f"s_getpc_b64 s[4:5]\nK1_pf:\ns_mov_b32 s6, CODE_END-K1_pf\ns_mov_b32 s7, 0x20000\ns_lshr_b32 s8, s2, 3\ns_lshl_b32 s8, s8, 12\nv_lshlrev_b32 v1, 4, v0")
        p("buffer_load_dwordx4 a[252:255], v1, s[4:7], s8 offen")
    p(f"s_load_dwordx4 s[28:31], s[0:1], {KA_X}")
    p(f"s_load_dwordx4 s[32:35], s[0:1], {KA_WG}")
    p(f"s_load_dwordx2 s[36:37], s[0:1], {KA_WS}")
    p(f"v_lshrrev_b32 v1, 6, v0\nv_and_b32 v0, 63, v0\nv_readfirstlane_b32 s{S_W}, v1")
    p(f"s_and_b32 s{T}, s2, 7\ns_lshr_b32 s{T+1}, s2, 3")
    p(f"s_and_b32 s{T+2}, s{T}, 1\ns_lshl_b32 s{T+2}, s{T+2}, 3\ns_and_b32 s{T+3}, s{T+1}, 7\ns_add_u32 s{S_RB}, s{T+2}, s{T+3}")
    p(f"s_lshr_b32 s{T+4}, s{T+1}, 3")
    p(f"s_mul_i32 s{T+5}, s{T+3}, {cfg['rot_a']}\ns_mul_i32 s{T+6}, s{T+4}, {cfg['rot_b']}\ns_add_u32 s{T+5}, s{T+5}, s{T+6}\ns_lshr_b32 s{S_ROT}, s{T+5}, 3")
    p(f"s_cmp_ge_u32 s{S_ROT}, 10\ns_cselect_b32 s{T+5}, 10, 0\ns_sub_u32 s{S_ROT}, s{S_ROT}, s{T+5}")
    p(f"s_and_b32 s{T+5}, s{T}, 6\ns_and_b32 s{T+6}, s{T+4}, 1\ns_add_u32 s{S_GP}, s{T+5}, s{T+6}")
    p(f"s_lshl_b32 s{S_TG}, s{S_RB}, 2\ns_add_u32 s{S_TG}, s{S_TG}, s{S_W}")
    p(f"s_lshl_b32 s{S_LW4}, s{S_W}, 12")
    p(f"s_mul_i32 s{S_BEG+3}, s{S_TG}, 40960\ns_add_u32 s{S_END+3}, s{S_BEG+3}, 1280")
    p(f"s_lshl_b32 s{S_SO+3}, s{S_ROT}, 7\ns_add_u32 s{S_SO+3}, s{S_SO+3}, s{S_BEG+3}\ns_add_u32 s{S_X2}, s{S_SO+3}, {16*1280-2048}")
    p("v_lshrrev_b32 v1, 3, v0\nv_and_b32 v2, 7, v0\nv_lshrrev_b32 v4, 4, v0\nv_xor_b32 v4, v2, v4\nv_mul_u32_u24 v5, 1280, v1")
    p(f"v_lshl_add_u32 v{V_DX}, v4, 4, v5\nv_xor_b32 v4, 4, v4\nv_lshl_add_u32 v4, v4, 4, v5\nv_add_u32 v{V_DX+1}, {8*1280-1024}, v4")
    p("v_bfe_u32 v3, v0, 4, 1\nv_lshlrev_b32 v3, 2, v3\nv_xor_b32 v2, v2, v3\nv_lshlrev_b32 v2, 4, v2")
    p(f"v_mul_u32_u24 v3, 3456, v1\nv_add_u32 v{V_DG}, v3, v2\nv_add_u32 v{V_DG+1}, {8*3456-1024}, v{V_DG}")
    p(f"v_mul_u32_u24 v3, 3840, v1\nv_add_u32 v{V_DQ}, v3, v2\nv_add_u32 v{V_DQ+1}, {8*3840-1024}, v{V_DQ}")
    p("s_waitcnt lgkmcnt(0)")
    srd(p, S_X, 28, X_SZ); srd(p, S_G, 32, WG_SZ); srd(p, S_U, 34, WG_SZ, -2048); srd(p, S_QA, 30, WQKV_SZ); srd(p, S_QB, 30, WQKV_SZ, 128 - 2048)
    def setpass(q, pi, pitch, colreg):
        q(f"s_mul_i32 s{S_BEG+pi}, s{S_W}, {16*pitch}\ns_add_u32 s{S_BEG+pi}, s{S_BEG+pi}, s{colreg}\ns_add_u32 s{S_END+pi}, s{S_BEG+pi}, {640*pitch}")
        q(f"s_mul_i32 s{S_SO+pi}, s{S_ROT}, {64*pitch}\ns_add_u32 s{S_SO+pi}, s{S_SO+pi}, s{S_BEG+pi}")
    def hstore(q, k, lreg):
        q(f"s_mul_i32 s{S_ST+k}, s{S_TG}, {216*512}\ns_lshl_b32 s{T+9}, s{lreg}, 12\ns_add_u32 s{S_ST+k}, s{S_ST+k}, s{T+9}\ns_add_u32 s{S_ST+k}, s{S_ST+k}, {HF}")
    def common_pre(q, rdbase, nsets, xring, kv):
        srd(q, S_WS, 36, WS_TOTAL)
        q(f"v_lshlrev_b32 v{V_L16}, 4, v0")
        q("v_and_b32 v1, 1, v0\nv_bfe_u32 v2, v0, 1, 1\nv_lshl_add_u32 v1, v1, 1, v2")
        q("v_bfe_u32 v2, v0, 4, 1\nv_lshl_add_u32 v1, v2, 2, v1\nv_lshlrev_b32 v1, 3, v1")
        q("v_bfe_u32 v2, v0, 2, 2\nv_lshrrev_b32 v3, 5, v0\nv_lshl_add_u32 v3, v3, 3, v2")
        q(f"v_lshl_add_u32 v4, v3, 7, v1\nv_bfe_u32 v5, v0, 3, 1\nv_lshl_add_u32 v4, v5, 6, v4\nv_add_u32 v{rdbase}, s{S_LW4}, v4")
        for j in range(4):
            for h in range(2):
                if j or h: q(f"v_xor_b32 v{rdbase+2*j+h}, {4096*j + 64*h}, v{rdbase}")
        if nsets == 2:
            for k in range(8): q(f"v_add_u32 v{rdbase+8+k}, 65536, v{rdbase+k}")
        if kv:
            q("v_mul_u32_u24 v4, 320, v3\nv_add_u32 v4, v4, v1")
            for j in range(4):
                q(f"s_xor_b32 s{T}, s{S_W}, {j}\ns_mul_i32 s{T}, s{T}, 5120\nv_add_u32 v{V_R5+j}, s{T}, v4")
        q(f"v_and_b32 v1, 31, v0\nv_lshrrev_b32 v2, 5, v0\nv_lshl_add_u32 v2, s{S_W}, 1, v2\nv_bfe_u32 v3, v0, 1, 3\nv_xor_b32 v2, v2, v3")
        q(f"v_lshlrev_b32 v2, 4, v2\nv_lshl_add_u32 v2, v1, 7, v2\nv_add_u32 v{V_XR}, s{S_LX}, v2")
        for j in range(1, 4): q(f"v_xor_b32 v{V_XR+j}, {32*j}, v{V_XR}")
        q(f"v_mov_b32 v{V_ONE}, 0x3f803f80\nv_and_b32 v1, 15, v0\nv_lshrrev_b32 v2, 4, v0\nv_lshlrev_b32 v2, 2, v2\nv_cmp_eq_u32 vcc, v1, v2")
        q(f"v_mov_b32 v{V_S1}, 0\nv_mov_b32 v{V_S2}, 0")
        for k in range(4): q(f"v_cndmask_b32 v{V_SEL+k}, 0, v{V_ONE}, vcc")
        q(f"v_add_u32 v{V_CSR}, {CSX}, v{V_L16}\nv_lshl_add_u32 v{V_CSW}, s{S_W}, 2, v{V_CSR}")
    if not cfg.get("allg"): p(f"s_cmp_lt_u32 s{T+4}, 2\ns_cbranch_scc1 K1_kv")
    p(f"s_add_u32 s{S_LX}, s{S_LW4}, {XRING_GQ}")
    if not cfg.get("allg"): p(f"s_cmp_lt_u32 s{S_GP}, 5\ns_cbranch_scc1 K1_q")
    head = p
    SG, SQ = 64 * 3456, 64 * 3840
    RDG = 64
    nsl, sb = cfg["nsl"], cfg["sb"]
    p = Prog(); p.ins = list(head.ins)
    p(f"s_mul_i32 s{T+7}, s{S_GP}, 3\ns_add_u32 s{T+7}, s{T+7}, 3\ns_lshl_b32 s{T+1}, s{T+7}, 7"); setpass(p, 0, 3456, T + 1)
    pre = Prog(); common_pre(pre, RDG, 2, XRING_GQ, False)
    hstore(pre, 0, T + 7)
    for pi in (1, 2):
        pre(f"s_add_u32 s{T+7}, s{T+7}, 1\ns_lshl_b32 s{T+1}, s{T+7}, 7"); setpass(pre, pi, 3456, T + 1); hstore(pre, pi, T + 7)
    passes = [Pass("gu", a, S_G, S_U, V_DG, SG, RDG) for a in (ACCA, ACCB, ACCA)]
    f = std_fillers(passes, [[(("m", ("passend", 1), -3), None, epi_gu(ACCA, S_ST, V_T))], [(("m", ("csbar", 2), 0), None, epi_gu(ACCB, S_ST + 1, V_T))]], cfg)
    tf, tl = tail(passes, S_ST + 2, cfg)
    emit_main(p, passes, 16384, nsl, sb, 10, f + tf, dict(cfg, pre=pre.ins))
    fin(p, tl)
    p.label("K1_end")
    p("s_endpgm")
    txt = finalize(p.ins, True)
    p = Prog(); p.label("K1_q")
    p(f"s_lshl_b32 s{T+1}, s{S_GP}, 8"); setpass(p, 0, 3840, T + 1)
    pre = Prog()
    pre(f"s_load_dwordx2 s[28:29], s[0:1], {KA_WO}\ns_load_dwordx2 s[30:31], s[0:1], {KA_WD}")
    common_pre(pre, RDG, 2, XRING_GQ, False)
    pre(f"s_mul_i32 s{S_ST+3}, s{S_TG}, 40960\ns_lshl_b32 s{T+9}, s{S_GP}, 13\ns_add_u32 s{S_ST+3}, s{S_ST+3}, s{T+9}\ns_add_u32 s{S_ST+3}, s{S_ST+3}, {QF}\ns_add_u32 s{S_ST+4}, s{S_ST+3}, 4096")
    pre(f"s_lshl_b32 s{T+7}, s{S_GP}, 1\ns_add_u32 s{T+7}, s{T+7}, 7")
    for pi in (1, 2):
        pre(f"s_add_u32 s{T+7}, s{T+7}, 1\ns_lshl_b32 s{T+1}, s{T+7}, 7"); setpass(pre, pi, 3456, T + 1); hstore(pre, pi, T + 7)
    RP = [210, 211, 212, 213, 214]; RPR = 215
    pre(f"s_movk_i32 s{T}, 6554")
    for i in range(5):
        pre(f"v_add_u32 v2, {64*i}, v0\nv_mul_u32_u24 v3, s{T}, v2\nv_lshrrev_b32 v3, 16, v3\nv_mul_u32_u24 v4, 10, v3\nv_sub_u32 v4, v2, v4")
        pre(f"v_mul_u32_u24 v3, 1280, v3\nv_lshl_add_u32 v3, v4, 4, v3\nv_subrev_u32 v{RP[i]}, {1024*(i&3)}, v3")
    pre("v_lshrrev_b32 v2, 4, v0\nv_bfe_u32 v3, v0, 2, 2\nv_lshl_add_u32 v2, v2, 3, v3\nv_mul_u32_u24 v2, 160, v2\nv_and_b32 v3, 3, v0\nv_lshl_add_u32 v2, v3, 3, v2")
    pre(f"s_mul_i32 s67, s{S_W}, 10240\ns_add_u32 s67, s67, {XRING_GQ}\nv_add_u32 v{RPR}, s67, v2")
    pre(f"s_mul_i32 s{T}, s{S_RB}, 5\ns_add_u32 s{T}, s{T}, s{S_GP}")
    pre("s_waitcnt lgkmcnt(0)")
    pre(f"s_cmp_lt_u32 s{T}, 20\ns_cselect_b32 s32, s28, s30\ns_cselect_b32 s33, s29, s31\ns_mov_b32 s34, {WD_SZ}\ns_cselect_b32 s34, {WO_SZ}, s34\ns_mov_b32 s35, 0x20000")
    pre(f"s_cselect_b32 s{T+1}, 0, 20\ns_sub_u32 s{T+1}, s{T}, s{T+1}\ns_mul_i32 s68, s{T+1}, 40960\ns_mul_i32 s{T+1}, s{S_W}, 160\ns_add_u32 s68, s68, s{T+1}")
    pre(f"s_mul_i32 s69, s{S_W}, 74\ns_add_u32 s69, s69, s{T}\ns_mul_i32 s69, s69, 5120\ns_add_u32 s69, s69, {W2P}")
    pre(f"s_cmp_lt_u32 s{T}, 74\ns_cselect_b32 s69, s69, {OOB}")
    grp = []
    for u in range(2):
        for i in range(5):
            pc = []
            if i in (0, 4): pc.append(I(f"s_add_u32 m0, s67, {5120*u + 1024*i}"))
            pc.append(I(f"buffer_load_dwordx4 v{RP[i]}, s[32:35], s68 offen offset:{1024*(i&3)} lds", tag=("rp", u)))
            if u == 0 and i == 4: pc.append(I("s_add_u32 s68, s68, 640"))
            grp.append(pc)
    rp2 = []
    for u in range(2):
        rp2.append(mkwait(vm=("rp", u)))
        for nt in range(5):
            for i in range(2):
                rp2.append(I(f"ds_read_b64_tr_b16 v[{V_T+4*nt+2*i}:{V_T+4*nt+2*i+1}], v{RPR} offset:{5120*u + 640*i + 32*nt}", tag=("rr", u, nt)))
        for nt in range(5):
            rp2.append(mkwait(lgkm=("rr", u, nt)))
            if nt == 4: rp2.append("s_add_u32 s69, s69, 4096")
            rp2.append(I(f"buffer_store_dwordx4 v[{V_T+4*nt}:{V_T+4*nt+3}], v{V_L16}, s[{S_WS}:{S_WS+3}], s69 offen offset:{1024*(nt&3)} {cfg['stflag']}".rstrip(), tag=("rs", u)))
        if u == 0: rp2 += [f"s_add_u32 s69, s69, {4*74*5120 - 4096}", mkwait(vm=("rs", 0))]
    passes = [Pass("q", ACCA, S_QA, S_QB, V_DQ, SQ, RDG), Pass("gu", ACCB, S_G, S_U, V_DG, SG, RDG), Pass("gu", ACCA, S_G, S_U, V_DG, SG, RDG)]
    f = std_fillers(passes, [[(54, 58, epi_q(ACCA, S_ST + 3, V_T)), (("m", ("passend", 1), -3), None, rp2)], [(("m", ("csbar", 2), 0), None, epi_gu(ACCB, S_ST + 1, V_T))]], cfg)
    tf, tl = tail(passes, S_ST + 2, cfg)
    emit_main(p, passes, 16384, nsl, sb, 10, f + tf, dict(cfg, pre=pre.ins, extra_dma={cfg["rp_after"]: grp}))
    fin(p, tl)
    p("s_endpgm")
    txt += finalize(p.ins, True)
    RDK = 192
    p = Prog(); p.label("K1_kv")
    p(f"s_add_u32 s{S_LX}, s{S_LW4}, {XRING_KV}\ns_mul_i32 s{S_LW}, s{S_W}, 5120")
    p(f"s_mul_i32 s{T+1}, s{S_GP}, 160\ns_add_u32 s{T+1}, s{T+1}, 1280"); setpass(p, 0, 3840, T + 1)
    p(f"s_movk_i32 s{T}, 3277")
    for i in range(5):
        p(f"v_add_u32 v1, {64*i}, v0\nv_mul_u32_u24 v2, s{T}, v1\nv_lshrrev_b32 v2, 16, v2")
        p("v_mul_u32_u24 v3, 20, v2\nv_sub_u32 v3, v1, v3")
        p("v_cmp_lt_u32 vcc, 9, v3\nv_mul_u32_u24 v2, 3840, v2\nv_lshl_add_u32 v2, v3, 4, v2")
        p(f"v_add_u32 v3, {1280-160}, v2\nv_cndmask_b32 v2, v2, v3, vcc")
        p(f"v_subrev_u32 v{V_D5[i]}, {1024*(i&3)}, v2")
    pre = Prog()
    pre(f"s_load_dwordx2 s[28:29], s[0:1], {KA_WPHI}")
    common_pre(pre, RDK, 1, XRING_KV, True)
    pre(f"s_lshl_b32 s{T+1}, s{S_GP}, 7"); setpass(pre, 1, 3456, T + 1); hstore(pre, 1, S_GP)
    VA_PW, VA_VW, VA_A, VA_B, VA_S1, VA_S3 = 221, 222, 223, 214, 215, 255
    pre(f"v_mov_b32 v2, 0\nv_mov_b32 v3, 0\nv_mov_b32 v1, {WPH+WPH_ZERO}\nds_write_b64 v1, v[2:3]")
    pre(f"v_and_b32 v1, 31, v0\nv_lshl_add_u32 v1, s{S_W}, 5, v1\nv_lshrrev_b32 v4, 5, v0")
    pre(f"v_mul_u32_u24 v5, {VL_S}, v1\nv_add_u32 v5, {VL}, v5\nv_lshl_add_u32 v{VA_VW}, v4, 4, v5")
    pre(f"v_mul_u32_u24 v5, {PHI_S}, v1\nv_mul_u32_u24 v6, 80, v4\nv_add_u32 v5, v5, v6\nv_add_u32 v{VA_PW}, {PHI}, v5")
    pre("v_bfe_u32 v1, v0, 2, 2\nv_lshlrev_b32 v1, 2, v1\nv_lshl_add_u32 v1, v4, 1, v1")
    pre("v_and_b32 v2, 1, v0\nv_bfe_u32 v3, v0, 1, 1\nv_lshl_add_u32 v2, v2, 1, v3\nv_bfe_u32 v3, v0, 4, 1\nv_lshl_add_u32 v2, v3, 2, v2")
    pre(f"v_mul_u32_u24 v5, {PHI_S}, v1\nv_lshl_add_u32 v5, v2, 3, v5\ns_mul_i32 s{T+2}, s{S_W}, 80\ns_add_u32 s{T+2}, s{T+2}, {PHI}\nv_add_u32 v{VA_A}, s{T+2}, v5")
    pre("v_and_b32 v2, 3, v0\nv_lshl_add_u32 v2, v3, 2, v2")
    pre(f"s_mul_i32 s{T+2}, s{S_W}, 40\nv_lshlrev_b32 v5, 3, v2\nv_add_u32 v5, s{T+2}, v5\nv_cmp_gt_u32 vcc, 5, v2\nv_mov_b32 v6, 160\nv_cndmask_b32 v5, v6, v5, vcc")
    pre(f"v_mul_u32_u24 v6, {VL_S}, v1\nv_add_u32 v5, v5, v6\nv_add_u32 v{VA_B}, {VL}, v5")
    pre(f"v_and_b32 v1, 31, v0\nv_mul_u32_u24 v2, 21, v4\nv_add_u32 v2, v2, v1\nv_lshlrev_b32 v2, 4, v2\nv_mov_b32 v3, {OOB}")
    pre(f"v_cmp_gt_u32 vcc, 21, v1\nv_cndmask_b32 v{VA_S1}, v3, v2, vcc\nv_cmp_gt_u32 vcc, 21, v0\nv_cndmask_b32 v{VA_S3}, v3, v2, vcc")
    pre(f"s_lshr_b32 s{T+2}, s{S_W}, 1\ns_lshl_b32 s{T+3}, s{S_GP}, 1\ns_add_u32 s{T+2}, s{T+2}, s{T+3}\ns_lshl_b32 s{T+2}, s{T+2}, 4\ns_add_u32 s{T+2}, s{T+2}, s{S_RB}")
    pre(f"s_mul_i32 s{T+2}, s{T+2}, {KVP_STRIDE}\ns_and_b32 s{T+3}, s{S_W}, 1\ns_mul_i32 s{T+3}, s{T+3}, 1680\ns_add_u32 s{T+2}, s{T+2}, s{T+3}\ns_add_u32 s{S_ST+5}, s{T+2}, {KVP}")
    pre(f"s_getpc_b64 s[68:69]\nK1_pc:\ns_add_u32 s68, s68, K1_tab-K1_pc+2048\ns_addc_u32 s69, s69, 0")
    pre(f"s_mul_i32 s{T+2}, s{S_GP}, 3200\ns_lshl_b32 s{T+3}, s{S_W}, 10\ns_add_u32 s{T+2}, s{T+2}, s{T+3}\ns_add_u32 s{T+3}, s{T+3}, {WPH}")
    pre("s_waitcnt lgkmcnt(0)")
    srd(pre, 32, 28, WPHI_SZ)
    fa = [I(f"global_load_dwordx4 v[{V_T+4*i}:{V_T+4*i+3}], v{V_L16}, s[68:69] offset:{1024*i-2048}", tag="tab") for i in range(6)]
    fb = [I(f"s_mov_b32 m0, s{T+3}"), I(f"buffer_load_dwordx4 v{V_L16}, s[32:35], s{T+2} offen lds", tag="tab")]
    f1 = []
    for k in range(24):
        f1.append(f"v_add_u32 v{V_T+k}, {WPH}, v{V_T+k}")
        f1.append(I(f"ds_read_b64_tr_b16 a[{160+2*k}:{161+2*k}], v{V_T+k}", tag="wp"))
    KP = V_T
    a = []
    for b in range(5):
        for e in range(8): a.append(f"v_mul_f32 v{8*b+e}, v{V_RL}, v{8*b+e}")
        for e in range(4): a.append(f"v_cvt_pk_bf16_f32 v{KP+4*b+e}, v{8*b+2*e}, v{8*b+2*e+1}")
    for tau in range(2):
        for s in range(3):
            w = 160 + 4 * ((0 * 3 + s) * 2 + tau)
            a.append(f"v_mfma_f32_32x32x16_bf16 v[{16*tau}:{16*tau+15}], a[{w}:{w+3}], v[{KP+4*s}:{KP+4*s+3}], " + ("0" if s == 0 else f"v[{16*tau}:{16*tau+15}]"))
    a.append(f"v_mov_b32 v36, 0x3f80\nv_mov_b32 v37, 0\nv_lshrrev_b32 v38, 5, v{V_L16}\nv_and_b32 v38, 16, v38\nv_sub_u32 v38, v{VA_VW}, v38")
    a.append(I("ds_write_b64 v38, v[36:37] offset:160", tag="vw"))
    for b in range(5):
        o = 40 + 8 * b
        for e in range(8): a.append(f"v_mul_f32 v{o+e}, v{V_R}, v{o+e}")
        for e in range(4): a.append(f"v_cvt_pk_bf16_f32 v{o+e}, v{o+2*e}, v{o+2*e+1}")
        a.append(I(f"ds_write_b128 v{VA_VW}, v[{o}:{o+3}] offset:{32*b}", tag="vw"))
    a.append(mkwait(lgkm="vw"))
    for tau in range(2):
        for s in range(3):
            w = 160 + 4 * ((1 * 3 + s) * 2 + tau)
            a.append(f"v_mfma_f32_32x32x16_bf16 v[{32+16*tau}:{32+16*tau+15}], a[{w}:{w+3}], v[{KP+8+4*s}:{KP+8+4*s+3}], " + ("0" if s == 0 else f"v[{32+16*tau}:{32+16*tau+15}]"))
    EP = list(range(64, 80)) + [20, 21, 22, 23]
    for P in range(2):
        sm = softmax_pair(list(range(32 * P, 32 * P + 20)), EP, KP, [24, 25, 26, 27, 28, 29])
        cnt = 0
        for s_ in sm:
            a.append(s_)
            if s_.startswith("v_cvt_pk"):
                cnt += 1
                if cnt % 4 == 0:
                    ch = cnt // 4 - 1
                    a.append(f"ds_write_b128 v{VA_PW}, v[{KP+4*ch}:{KP+4*ch+3}] offset:{160*P + 16*ch}")
    bq = []
    def kvreads(kp):
        r = []; base = 32 + 12 * (kp & 1)
        for i in range(2): r.append(I(f"ds_read_b64_tr_b16 v[{base+8+2*i}:{base+9+2*i}], v{VA_B} offset:{kp*16*VL_S + i*VL_S}", tag=("kv", kp)))
        for tau in range(2):
            for i in range(2): r.append(I(f"ds_read_b64_tr_b16 v[{base+4*tau+2*i}:{base+4*tau+2*i+1}], v{VA_A} offset:{kp*16*PHI_S + i*PHI_S + tau*64}", tag=("kv", kp)))
        return r
    bq += kvreads(0)
    for kp in range(8):
        if kp + 1 < 8: bq += kvreads(kp + 1)
        bq.append(mkwait(lgkm=("kv", kp)))
        base = 32 + 12 * (kp & 1)
        for tau in range(2):
            bq.append(f"v_mfma_f32_32x32x16_bf16 v[{16*tau}:{16*tau+15}], v[{base+4*tau}:{base+4*tau+3}], v[{base+8}:{base+11}], " + ("0" if kp == 0 else f"v[{16*tau}:{16*tau+15}]"))
    bq2 = []
    for ch in range(3):
        for e in range(4): bq2.append(f"v_cvt_pk_bf16_f32 v{64+4*ch+e}, v{8*ch+2*e}, v{8*ch+2*e+1}")
        bq2.append(f"buffer_store_dwordx4 v[{64+4*ch}:{67+4*ch}], v{VA_S1 if ch < 2 else VA_S3}, s[{S_WS}:{S_WS+3}], s{S_ST+5} offen offset:{672*ch} STFLAG")
    passes = [Pass("kv", ACCA, S_QA, S_QA, V_D5, SQ, V_R5), Pass("gu", ACCB, S_G, S_U, V_DG, SG, RDK)]
    kb = cfg["kv_bar"]
    f = std_fillers(passes, [[(("bar", kb, 0), ("bar", kb, 1), a), (("bar", 19, 1), ("bar", 19, 3), bq), (("m", ("csdone", 1), 0), None, bq2)]], cfg)
    f += [(("bar", 6, -2), ("bar", 6, 0), [mkwait(vm="tab")]), (("bar", 6, 1), 35, mk(f1, cfg))]
    tf, tl = tail(passes, S_ST + 1, cfg)
    emit_main(p, passes, 20480, 3, 1, 8, f + tf, dict(cfg, pre=pre.ins, cs_gaps=cfg["cs_gaps_kv"], extra_dma={3: [[x] for x in fa[:3]], 4: [[x] for x in fa[3:]] + [fb]}))
    fin(p, tl)
    p("s_endpgm")
    txt += finalize(p.ins, True)
    tab = wphi_table(WPH_ZERO)
    txt += ".p2align 6\n.type K1_tab,@object\nK1_tab:\n"
    for g in range(6):
        for l in range(64):
            txt += "  .long " + ", ".join(str(tab[4 * g + e][l]) for e in range(4)) + "\n"
    return kernel_text(name, txt, 256, 256, 102)

CFG = dict(pro_pieces=16, lb=7, quiet=2, wait_every=4, nsl=6, sb=2, depth0=3, depth=5, dgap0=2, dgap=3, dma_pen=2,
           rot_a=10, rot_b=20, stflag="", kv_bar=17, stagger=1, tail_k=40, cs_gaps=7, cs_gaps_kv=4, rp_after=15, cap=25, dma_cost=10, dma_last=0)
```

```python
import sys
sys.argv_saved = sys.argv
import importlib
from common import *
import k1b, k15, k2
def build3(cfg, path):
    t1, d1 = k1b.gen_k1(cfg)
    (t15, d15), l15 = k15.gen_k15(cfg)
    (t2, d2), l2 = k2.gen_k2(cfg)
    hdr = f"""; generated by gen/build3.py
; @launch kernel=k1_kernel grid=(256,1,1) block=(256,1,1) lds={k1b.LDS_TOTAL}
; @launch kernel=k15_kernel grid=(256,1,1) block=(256,1,1) lds={l15}
; @launch kernel=k2_kernel grid=(256,1,1) block=(256,1,1) lds={l2}
.amdgcn_target "amdgcn-amd-amdhsa--gfx950"
"""
    open(path, "w").write(hdr + t1 + t15 + t2 + 'CODE_END:\n' + d1 + d15 + d2)
cfg = dict(k1b.CFG); cfg.update(ldflag="", k2_depth=4, k2_rot_a=0, k2_rot_b=0)
for a in sys.argv[2:]:
    k, v = a.split("=", 1); cfg[k] = eval(v)
build3(cfg, sys.argv[1])
```

```python
from common import *

S_G, S_U, S_QA, S_QB, S_WS, S_X = 4, 8, 12, 16, 20, 24
S_W, S_RB, S_TG, S_ROT, S_GP = 40, 41, 42, 43, 44
S_X2 = 45
S_SO, S_BEG, S_END = 46, 50, 54
S_LW, S_LX = 58, 59
S_ST = 60
S_LW4 = 66
S_T = 70
S_GRP = 3
S_TAG, S_SPIN = 38, 39
S_WY, S_WB = 100, 101
F_E = 0; F_HE = 1024; F_HL = F_HE + 4096; F_O = F_HL + 4096; F_Q = F_O + 4096; F_KV = F_Q + 2048; F_W = F_KV + 2048
V_F0, V_TAG, V_PF, V_PA, V_L16B = 144, 145, 146, 158, 159
OW = 131200; KVL = OW + 4352; ZR = KVL + 3584; FT = OW; FT_S = 176
WSLOT = [160, 180, 200] + [20 * i for i in range(8)] + [220]
ACCA, ACCB, FR = 0, 80, 160
V_XR, V_SEL, V_MEAN, V_CSW, V_CSR, V_S1, V_S2 = 144, 148, 152, 156, 157, 158, 159
V_DG, V_DQ, V_DX = 200, 202, 204
V_D5 = [202, 203, 206, 207, 208]
V_L16 = 209
V_R5 = 210
V_C0, V_C1, V_IR2, V_R, V_RL = 216, 217, 218, 219, 220
V_ONE = 152
V_T = 224
A_CS = 236
XRING_GQ = 98304; XRING_KV = 61440
PHI = 61440; PHI_S = 336
VL = PHI + 128 * PHI_S; VL_S = 176
WPH = VL + 128 * VL_S
WPH_ZERO = 4096
CSX = 147456
LDS_TOTAL = CSX + 5120

import re
VOP3 = ("v_fma_f32", "v_cvt_pk", "v_max3", "v_min3", "v_lshl_add", "v_add3", "v_bfe", "v_accvgpr", "v_mul_lo", "v_perm_b32", "v_pk_")
def cost(i, cfg=None):
    if i.waits is not None or i.kind == "wait": return 1.5
    if i.kind == "trans": return 8
    if i.kind == "mfma": return -24 if i.passes == 8 else -8
    if i.kind in ("dma", "vld", "vst"): return DMA_COST[0]
    if i.kind in ("dsr",): return 5
    if i.kind == "dsw": return 8
    if i.kind == "barrier": return 20
    if i.kind == "label": return 0
    if i.mn.startswith(VOP3): return 5
    if re.search(r"0x[0-9a-f]{3,}|[ ,]\d{3,}", i.text): return 5
    return 4
DMA_COST = [10]

class Pass:
    def __init__(self, kind, acc, srdA, srdB, vd, step, rd):
        self.kind = kind; self.nT = 5 if kind == "kv" else 4
        self.acc = acc; self.srdA = srdA; self.srdB = srdB; self.vd = vd; self.step = step; self.rd = rd

def mk(lst, cfg):
    out = []
    for x in lst:
        if isinstance(x, I): out.append(x)
        else:
            for l in x.split("\n"): out.append(I(l.replace("STFLAG", cfg["stflag"]).rstrip()))
    return out

def cs_publish(nT, pi):
    o = []
    for t in range(nT): o.append(f"v_accvgpr_read_b32 v{V_T+24+t}, a{A_CS+4*t}")
    for t in range(nT):
        r = V_T + 24 + t
        o.append(f"v_and_b32 v{V_T+30}, 0xffff0000, v{r}\nv_sub_f32 v{r}, v{r}, v{V_T+30}\nv_cvt_pk_bf16_f32 v{r}, v{V_T+30}, v{r}")
        o.append(I(f"ds_write_b32 v{V_CSW}, v{r} offset:{1024*t}", tag=("csw", pi)))
    return o

def cs_read(tiles, pi):
    return [I(f"ds_read_b128 v[{V_T+4*t}:{V_T+4*t+3}], v{V_CSR} offset:{1024*t}", tag=("cs", pi, t)) for t in tiles]

def cs_apply(tiles, acc, pi):
    o = [mkwait(lgkm=[("cs", pi, t) for t in tiles])]
    for t in tiles:
        a = acc + 16 * t
        o.append(f"v_mfma_f32_32x32x16_bf16 v[{a}:{a+15}], v[{V_T+4*t}:{V_T+4*t+3}], v[{V_MEAN}:{V_MEAN+3}], v[{a}:{a+15}]")
    return o

def stats_final():
    t = V_T + 29
    c0 = -2.0 * LOG2E * 0.7978845608028654
    o = []
    for a in (V_S1, V_S2):
        o.append(f"v_mov_b32 v{t}, v{a}\nv_permlane32_swap_b32 v{a}, v{t}\nv_add_f32 v{a}, v{a}, v{t}")
    o.append(f"v_mul_f32 v{V_S1}, {fx(-1/640)}, v{V_S1}\nv_mul_f32 v{V_S2}, {fx(1/640)}, v{V_S2}")
    o.append(f"v_fma_f32 v{V_S2}, -v{V_S1}, v{V_S1}, v{V_S2}\nv_max_f32 v{V_S2}, 0, v{V_S2}")
    o.append(f"v_cvt_pk_bf16_f32 v{V_MEAN}, v{V_S1}, v{V_S1}\nv_cvt_pk_bf16_f32 v{V_S2}, v{V_S2}, v{V_S2}")
    o.append(f"v_mov_b32 v{V_MEAN+1}, v{V_MEAN}\nv_lshlrev_b32 v{V_S2}, 16, v{V_S2}\nv_mov_b32 v{V_MEAN+2}, v{V_MEAN}")
    o.append(f"v_add_f32 v{V_S2}, {fx(1e-5)}, v{V_S2}\nv_mov_b32 v{V_MEAN+3}, v{V_MEAN}\nv_cvt_pk_bf16_f32 v{V_S2}, v{V_S2}, v{V_S2}\nv_lshlrev_b32 v{V_S2}, 16, v{V_S2}")
    o.append(f"v_sqrt_f32 v{V_S2}, v{V_S2}\nv_cvt_pk_bf16_f32 v{V_S2}, v{V_S2}, v{V_S2}\nv_lshlrev_b32 v{V_S2}, 16, v{V_S2}")
    o.append(f"v_rcp_f32 v{V_R}, v{V_S2}\nv_mul_f32 v{V_IR2}, v{V_S2}, v{V_S2}")
    o.append(f"v_mul_f32 v{V_C0}, {fx(c0)}, v{V_R}\nv_mul_f32 v{V_RL}, {fx(LOG2E)}, v{V_R}\nv_mul_f32 v{V_C1}, v{V_R}, v{V_R}")
    o.append(f"v_mul_f32 v{V_C1}, {fx(0.044715)}, v{V_C1}\nv_mul_f32 v{V_C1}, v{V_C1}, v{V_C0}")
    return o

def emit_main(p, passes, slot_stride, nsl, sb, NF, fillers, cfg):
    NS = 10 * len(passes); N = 4 * NS
    LB = cfg["lb"]; Q = cfg["quiet"]; WE = cfg["wait_every"]; XS = 3
    if LB + Q > NF: LB = NF - Q
    per_set = 65536 // slot_stride
    groups = []; s = 0
    while s < NS:
        k = 1 if s < 10 else sb
        groups.append(list(range(s, min(NS, s + k)))); s += k
    mf = []; gstart = []; marks = {}
    for gi, grp in enumerate(groups):
        gstart.append(len(mf))
        nT = passes[grp[0] // 10].nT
        ks = [4 * s + j for s in grp for j in range(4)]
        if grp[-1] % 10 == 9:
            ks = [n for n in ks if n % 4 == 0] + [n for n in ks if n % 4]
        if gi == len(groups) - 1 and cfg["stagger"]:
            k0 = [n for n in ks if n % 4 == 0]; k1 = [n for n in ks if n % 4]
            mf += [(n, t) for n in k0 for t in range(nT)]
            marks[("csdone", grp[0] // 10)] = len(mf)
            mf += [(n, t) for n in k1 for t in (0, 2)]
            marks["pair0done"] = len(mf)
            mf += [(n, t) for n in k1 for t in (1, 3)]
        else:
            for n in ks:
                mf += [(n, t) for t in range(nT)]
                if grp[-1] % 10 == 9 and n == 4 * grp[-1]: marks[("csdone", grp[0] // 10)] = len(mf)
        if grp[-1] % 10 == 9: marks[("passend", grp[0] // 10)] = len(mf)
    M = len(mf); gstart.append(M)
    kstart = {}
    for j, (n, t) in enumerate(mf): kstart.setdefault(n, j)
    def rd(j, i):
        n, t = mf[j]
        s = n // 4; kk = n % 4; P = passes[s // 10]; slot = s % nsl
        dst = FR + 4 * (j % NF) + 2 * i
        st = slot // per_set; off = (slot % per_set) * slot_stride
        if P.kind == "kv":
            return I(f"ds_read_b64_tr_b16 v[{dst}:{dst+1}], v{P.rd+kk} offset:{off + i*1280 + t*64}", tag=("fr", j))
        return I(f"ds_read_b64_tr_b16 v[{dst}:{dst+1}], v{P.rd + 8*st + 2*kk + (t & 1)} offset:{off + (t>>1)*2048 + i*512}", tag=("fr", j))
    def dma_pieces(s):
        pi = s // 10; P = passes[pi]; slot = s % nsl; tag = ("st", s)
        so = S_SO + pi
        w = []
        if P.kind == "kv":
            for i in range(5):
                pc = []
                if i == 0: pc.append(I(f"s_add_u32 m0, s{S_LW}, {slot*slot_stride}"))
                if i == 4: pc.append(I(f"s_add_u32 m0, s{S_LW}, {slot*slot_stride + 4096}"))
                pc.append(I(f"buffer_load_dwordx4 v{P.vd[i]}, s[{P.srdA}:{P.srdA+3}], s{so} offen offset:{1024*(i&3)} lds", tag=tag))
                w.append(pc)
        else:
            for i in range(4):
                pc = []
                if i == 0: pc.append(I(f"s_add_u32 m0, s{S_LW4}, {slot*slot_stride}"))
                sr_ = P.srdA if i < 2 else P.srdB
                pc.append(I(f"buffer_load_dwordx4 v{P.vd+(i&1)}, s[{sr_}:{sr_+3}], s{so} offen offset:{1024*i} lds", tag=tag))
                w.append(pc)
        if s % 10 < 9:
            w[-1] += [I(f"s_add_u32 s{so}, s{so}, {P.step}"), I(f"s_cmp_eq_u32 s{so}, s{S_END+pi}"), I(f"s_cselect_b32 s{so}, s{S_BEG+pi}, s{so}")]
        if pi == 0:
            for i in range(4):
                pc = []
                if i == 0: pc.append(I(f"s_add_u32 m0, s{S_LX}, {(s % XS)*16384}"))
                pc.append(I(f"buffer_load_dwordx4 v{V_DX+(i&1)}, s[{S_X}:{S_X+3}], s{S_SO+3 if i < 2 else S_X2} offen offset:{1024*i} lds", tag=tag))
                if i == 3 and s < 9:
                    pc += [I(f"s_add_u32 s{S_SO+3}, s{S_SO+3}, 128"), I(f"s_cmp_eq_u32 s{S_SO+3}, s{S_END+3}"), I(f"s_cselect_b32 s{S_SO+3}, s{S_BEG+3}, s{S_SO+3}"),
                           I(f"s_add_u32 s{S_X2}, s{S_SO+3}, {16*1280-2048}")]
                w.append(pc)
        return w
    gaps = [dict(pre=[], post=[], lock=False, cs=(mf[j][0] % 4 == 0)) for j in range(M)]
    pro_reads = []
    def put(g, i):
        if g < 0: pro_reads.append(i)
        else: gaps[g]["post"].append(i)
    bargap = {}; freed_at = {}
    XT = passes[1].acc
    for gi, grp in enumerate(groups):
        j0 = gstart[gi]; j1 = gstart[gi + 1]
        b = j0 - LB
        if gi > 0:
            gaps[b]["post"] += [mkwait(vm=("st", grp[-1]), lgkm=0), I("s_barrier")]
            gaps[b]["lock"] = True
            bargap[grp[0]] = b
            for s in groups[gi - 1]: freed_at[s] = b
        G = j1 - j0
        span = G - Q if gi + 1 < len(groups) else G
        if grp[0] < 10:
            s = grp[0]
            for kk in range(4):
                put(b + 1 + 2 * kk, I(f"ds_read_b128 a[{16*s+4*kk}:{16*s+4*kk+3}], v{V_XR+kk} offset:{(s % XS)*16384}", tag=("xa", 4 * s + kk)))
        for k in range(2 * G):
            j = j0 + k // 2
            g = max(b + 1 + (k * span) // (2 * G), j - NF + 1)
            assert g <= j - 2
            put(g, rd(j, k & 1))
        if grp[0] < 10:
            for kk in range(4):
                put(b + 2 + 2 * kk, I(f"ds_read_b128 v[{XT+4*kk}:{XT+4*kk+3}], v{V_XR+kk} offset:{(s % XS)*16384}", tag=("xv", s)))
            g = b + 12
            batch = [mkwait(lgkm=("xv", s))]
            for r in range(16):
                batch += [I(f"v_dot2c_f32_bf16 v{V_S1}, v{XT+r}, v{V_ONE}"), I(f"v_dot2c_f32_bf16 v{V_S2}, v{XT+r}, v{XT+r}")]
            gaps[g]["post"] += batch
            if s == 9: marks["statsdone"] = g + 1
    lastp = len(passes) - 1
    eb = marks[("csdone", lastp)] + cfg["cs_gaps"]
    gaps[eb]["post"] = [mkwait(lgkm=("csw", lastp)), I("s_barrier")] + gaps[eb]["post"]; gaps[eb]["lock"] = True
    marks[("csbar", lastp)] = eb
    for pi in range(lastp): marks[("csbar", pi)] = bargap[10 * (pi + 1)]
    for j in range(0, M, WE):
        tags = [("fr", min(M - 1, j + WE - 1))]
        for jj in range(j, min(M, j + WE)):
            if mf[jj][0] < 40: tags.append(("xa", mf[jj][0]))
        gaps[j]["pre"].append(mkwait(lgkm=tags))
    queue = [(s, pc) for s in range(NS) for pc in dma_pieces(s) + cfg.get("extra_dma", {}).get(s, [])]
    qi = 0
    while qi < len(queue) and qi < cfg["pro_pieces"] * len(dma_pieces(0)) // 8:
        for i in queue[qi][1]: p.add(i)
        qi += 1
    for i in cfg.get("pre", []): p.add(i)
    p.wait(vm=("st", 0), lgkm=0)
    p("s_barrier")
    if cfg.get("stamps") == 2: p.add(stamp(2))
    for i in pro_reads: p.add(i)
    nextg = 0
    gstage = []
    for gi, grp in enumerate(groups): gstage += [grp[0] + (len(grp) * k) // (gstart[gi+1] - gstart[gi]) for k in range(gstart[gi+1] - gstart[gi])]
    for g in range(M):
        if qi >= len(queue): break
        s, pc = queue[qi]
        cur = gstage[g]
        if g < nextg or gaps[g]["lock"]: continue
        if s >= nsl and g <= freed_at.get(s - nsl, 10**9): continue
        if XS <= s < 10 and g <= freed_at.get(s - XS, 10**9): continue
        if s > cur + (cfg["depth0"] if cur < 8 else cfg["depth"]): continue
        if pc[0].kind == "salu":
            gaps[g]["pre"].insert(0, pc[0]); pc = pc[1:]
        gaps[g]["post"].insert(0, pc[0])
        gaps[g]["dma"] = True
        dg = cfg["dgap0"] if cur < 10 else cfg["dgap"]
        if len(pc) > 1: gaps[g + 1 if not gaps[g + 1]["lock"] and dg > 1 else g]["post"] += pc[1:]
        marks[("dmaend", s)] = g + 1
        qi += 1
        nextg = g + dg
    assert qi == len(queue), (qi, len(queue))
    def gap_of(x):
        if isinstance(x, tuple):
            if x[0] == "bar": return bargap[x[1]] + x[2]
            if x[0] == "m": return marks[x[1]] + x[2]
            if x[0] == "end": return M + x[1]
        return kstart[x]
    DMA_COST[0] = cfg["dma_cost"]
    g = gap_of(cfg["wpf_start"])
    lastuse = {}
    for j, (n, t) in enumerate(mf):
        if n // 40 == lastp: lastuse[n % 40] = j
    wleft = []
    for slot in range(11):
        for pc in wload(slot):
            ld = [i for i in pc if i.kind == "vld"][0]
            a0 = ld.dst[0][1]
            lo = lastuse[a0 // 4] + 1 if a0 < 160 else 0
            while g < M and (g < lo or gaps[g]["lock"] or gaps[g].get("dma")): g += 1
            if g >= M or wleft: wleft += pc; continue
            gaps[g]["post"] = pc + gaps[g]["post"]; gaps[g]["dma"] = True
            g += cfg["wgap"]
    for (k0, k1, items) in sorted(fillers, key=lambda f: len(f[2]) > 60):
        g0, g1 = gap_of(k0), gap_of(k1)
        while gaps[g1 - 1]["lock"]: g1 -= 1
        def load(g):
            nxt = gaps[g + 1]["pre"] if g + 1 < M else []
            return sum(cost(i) for i in gaps[g]["post"]) + sum(cost(i) for i in nxt) - (8 if gaps[g]["cs"] else 0)
        def attempt(cap, commit):
            k = 0
            for g in range(g0, g1):
                if gaps[g]["lock"]: continue
                u = load(g)
                while k < len(items) and (u + cost(items[k]) <= cap or items[k].kind == "mfma"):
                    if items[k].kind == "mfma": u = max(u, cap)
                    u += cost(items[k])
                    if commit: gaps[g]["post"].append(items[k])
                    k += 1
            return k == len(items)
        cap = cfg["cap"]
        while not attempt(cap, False): cap += 1
        attempt(cap, True)
        if cfg.get("verbose"): print("filler", k0, k1, len(items), "cap", cap)
    for (tag, items) in cfg.get("pubs", []):
        last = max(g for g in range(M) for i in gaps[g]["post"] if i.tag == tag)
        g = last + cfg["pub_delay"]
        while g < M and gaps[g]["lock"]: g += 1
        assert g < M, tag
        gaps[g]["post"] += [mkwait(vm=tag)] + items
        if cfg.get("pub_before_poll"):
            first = min(k for k in range(M) for i in gaps[k]["post"] if i.mn == "v_pk_blob")
            assert g < first, ("publication after the first poll", tag, g, first)
    for j, g in enumerate(gaps):
        n, t = mf[j]; P = passes[n // 40]
        if cfg.get("stamps") == 1 and j == kstart[40]: p.add(stamp(2))
        a = P.acc + 16 * t; fr = FR + 4 * (j % NF); x = 4 * (n % 40)
        c = "0" if n % 40 == 0 else f"v[{a}:{a+15}]"
        for i in g["pre"]: p.add(i)
        p(f"v_mfma_f32_32x32x16_bf16 v[{a}:{a+15}], v[{fr}:{fr+3}], a[{x}:{x+3}], {c}")
        post = list(g["post"])
        if cfg["dma_last"] and g.get("dma"):
            d = post[0]; rest = post[1:]
            sal = [i for i in rest if i.kind == "salu"]; oth = [i for i in rest if i.kind != "salu"]
            if not any(i.kind in ("dma", "vld", "vst") or i.waits is not None and i.waits[0] is not None for i in oth) and not g.get("salu_before"):
                post = oth + [d] + sal
        if cfg.get("nodma") and n >= 40: post = [I("s_nop 0") if i.kind == "dma" else i for i in post]
        if cfg.get("notrans") and n >= 40: post = [I(i.text.replace("v_exp_f32", "v_mov_b32").replace("v_rcp_f32", "v_mov_b32")) if i.kind == "trans" else i for i in post]
        if cfg.get("novalu") and n >= 40: post = [i for i in post if i.kind not in ("valu", "trans")]
        if cfg.get("nost") and n >= 40: post = [i for i in post if i.kind != "vst"]
        if cfg.get("nobar") and n >= 40: post = [i for i in post if i.kind != "barrier"]
        if n % 4 == 0:
            d = A_CS + 4 * t
            cm = I(f"v_mfma_f32_16x16x32_bf16 a[{d}:{d+3}], v[{V_SEL}:{V_SEL+3}], v[{fr}:{fr+3}], " + ("0" if n % 40 == 0 else f"a[{d}:{d+3}]"))
            k = len(post); u = sum(cost(i) for i in gaps[j + 1]["pre"]) if j + 1 < M else 0
            tot = sum(cost(i) for i in post)
            while k > 0 and not g["lock"] and tot > cfg["cap"] and u + cost(post[k - 1]) <= 9 and post[k - 1].kind != "mfma":
                k -= 1; u += cost(post[k]); tot -= cost(post[k])
            post.insert(k, cm)
        for i in post: p.add(i)
    for i in wleft: p.add(i)

def wload(step):
    a = WSLOT[step % 12]; o = []
    for nt in range(5):
        pc = [I(f"buffer_load_dwordx4 a[{a+4*nt}:{a+4*nt+3}], v{V_L16 if nt < 4 else V_L16B}, s[{S_WS}:{S_WS+3}], s{S_WY} offen offset:{1024*(nt&3)} sc1", tag=("w2", step))]
        if nt == 4:
            if step == 4: pc += [I(f"s_add_u32 s{S_WY}, s{S_WY}, 20480"), I(f"s_cmp_lt_u32 s{S_W}, 2"), I(f"s_cselect_b32 s{S_WY}, s{S_WY}, {OOB}")]
            elif step == 5: pc += [I(f"s_add_u32 s{S_WY}, s{S_WB}, {42*5120}")]
            elif step == 13: pc += [I(f"s_mov_b32 s{S_WY}, s{S_WB}")]
            else: pc += [I(f"s_add_u32 s{S_WY}, s{S_WY}, 20480")]
        o.append(pc)
    return o

SLOW = []
def flag_store(sreg):
    return I(f"buffer_store_dword v{V_TAG}, v{V_F0}, s[{S_WS}:{S_WS+3}], s{sreg} offen sc1")
def poll_load(name, sreg, n=1):
    r = f"v{V_PF}" if n == 1 else f"v[{V_PF}:{V_PF+1}]"
    return I(f"buffer_load_dword{'' if n == 1 else 'x2'} {r}, v{V_PA}, s[{S_WS}:{S_WS+3}], s{sreg} offen sc1", tag=("poll", name))
def poll_check(name, sreg, n=1, pending=()):
    if n == 2: c = f"v_xor_b32 v{V_PF}, v{V_PF}, v{V_TAG}\n    v_xor_b32 v{V_PF+1}, v{V_PF+1}, v{V_TAG}\n    v_or_b32 v{V_PF}, v{V_PF}, v{V_PF+1}\n    v_cmp_ne_u32 vcc, 0, v{V_PF}"
    else: c = f"v_cmp_ne_u32 vcc, v{V_PF}, v{V_TAG}"
    blob = I(f"v_xor_b32 v{V_PF}, v{V_PF}, v{V_TAG}")
    blob.text = f"s_nop 0\nP_{name}_chk:\n    {c}\n    s_nop 4\n    s_cbranch_vccnz P_{name}_slow\nP_{name}_done:"
    blob.mn = "v_pk_blob"
    o = [mkwait(vm=("poll", name)), blob]
    t = f"P_{name}_slow:\n"
    if pending:
        t += "    s_waitcnt vmcnt(0)\n" + "".join("    " + flag_store(r).text + "\n" for r in pending)
    t += f"    s_cmp_eq_u32 s{S_SPIN}, 0\n    s_cbranch_scc1 P_{name}_done\n    s_sub_u32 s{S_SPIN}, s{S_SPIN}, 1\n    s_sleep 1\n"
    t += "    " + poll_load(name, sreg, n).text + f"\n    s_waitcnt vmcnt(0)\n    s_branch P_{name}_chk\n"
    SLOW.append(t)
    return o

def epi_gu(acc, sst, T, halves=(0, 1), tag=None):
    o = []
    for half in halves:
        for b in range(2):
            out = T + 16 + 4 * (b & 1)
            for pr in range(2):
                el = [8 * b + 4 * pr + e for e in range(4)]
                g = [acc + 16 * half + r for r in el]; u = [acc + 32 + 16 * half + r for r in el]
                t = [T + 8 * (1 - half) * 0 + (0 if half == 0 else 4) + 8 * pr + e for e in range(4)]
                for e in range(4): o.append(f"v_mul_f32 v{t[e]}, v{g[e]}, v{g[e]}")
                for e in range(4): o.append(f"v_fma_f32 v{t[e]}, v{t[e]}, v{V_C1}, v{V_C0}")
                for e in range(4): o.append(f"v_mul_f32 v{t[e]}, v{t[e]}, v{g[e]}")
                for e in range(4):
                    o.append(f"v_exp_f32 v{t[e]}, v{t[e]}")
                    o.append(f"v_mul_f32 v{u[e]}, v{g[e]}, v{u[e]}")
                for e in range(4): o.append(f"v_fma_f32 v{t[e]}, v{t[e]}, v{V_IR2}, v{V_IR2}")
                for e in range(4): o.append(f"v_rcp_f32 v{t[e]}, v{t[e]}")
                for e in range(4): o.append(f"v_mul_f32 v{u[e]}, v{u[e]}, v{t[e]}")
                o.append(f"v_cvt_pk_bf16_f32 v{out+2*pr}, v{u[0]}, v{u[1]}")
                o.append(f"v_cvt_pk_bf16_f32 v{out+2*pr+1}, v{u[2]}, v{u[3]}")
            o.append(I(f"buffer_store_dwordx4 v[{out}:{out+3}], v{V_L16}, s[{S_WS}:{S_WS+3}], s{sst} offen offset:{(4*half+2*b)*512} sc1", tag=tag))
    return o

def epi_q(acc, sst, T):
    o = []
    for t in range(4):
        for b in range(2):
            out = T + 4 * ((2 * t + b) & 3)
            for e in range(8): o.append(f"v_mul_f32 v{acc+16*t+8*b+e}, v{V_RL}, v{acc+16*t+8*b+e}")
            for e in range(4): o.append(f"v_cvt_pk_bf16_f32 v{out+e}, v{acc+16*t+8*b+2*e}, v{acc+16*t+8*b+2*e+1}")
            o.append(I(f"buffer_store_dwordx4 v[{out}:{out+3}], v{V_L16}, s[{S_WS}:{S_WS+3}], s{sst + (t>>1)} offen offset:{(4*(t&1)+2*b)*512} sc1", tag="qst"))
    return o

def std_fillers(passes, epis, cfg):
    f = []
    last = len(passes) - 1
    f.append((("m", "statsdone", 1), ("m", ("passend", 0), 2), mk(stats_final(), cfg)))
    for pi, P in enumerate(passes):
        tiles = list(range(P.nT))
        f.append((("m", ("csdone", pi), 1), ("m", ("csbar", pi), 0), mk(cs_publish(P.nT, pi), cfg)))
        if pi < last:
            f.append((("m", ("passend", pi), -2), ("m", ("passend", pi), 1), cs_read(tiles, pi)))
            f.append((("m", ("passend", pi), 3), ("m", ("passend", pi), 5), mk(cs_apply(tiles, P.acc, pi), cfg)))
            st = ("m", ("passend", pi), 7)
            for (end, nxt, items) in epis[pi]:
                f.append((st, end, mk(items, cfg))); st = nxt
        else:
            f.append((("m", ("csbar", pi), 1), ("m", ("csbar", pi), 2), cs_read(tiles, pi)))
    return f


def tail_fill(passes, cfg):
    pi = len(passes) - 1
    e0 = mk(epi_gu(ACCA, S_ST + 2, V_T, (0,)), cfg)
    return [(("m", "pair0done", 0), ("m", "pair0done", 1), mk(cs_apply([0, 2], ACCA, pi), cfg)),
            (("m", "pair0done", 3), ("end", 0), e0[:cfg["tail_k"]])]

S_FHE, S_FHL, S_FO = 46, 47, 48
S_PQ, S_PKV, S_PH, S_PW = 36, 50, 51, 37
S_PAIR, S_TGO, S_RB64, S_CB = 52, 53, 54, 55
S_A, S_B, S_HS = 56, 57, 58

def sync_setup(typ, cfg):
    T = S_T
    o = [f"v_mov_b32 v{V_TAG}, s{S_TAG}", f"v_mov_b32 v{V_F0}, {OOB}", f"v_cmp_eq_u32 vcc, 0, v{V_L16}", f"v_add_u32 v{V_L16B}, 4096, v{V_L16}",
         f"v_lshrrev_b32 v{V_PA}, 1, v{V_L16}", f"v_cndmask_b32 v{V_F0}, v{V_F0}, v{V_L16}, vcc", f"v_min_u32 v{V_PA}, 312, v{V_PA}"]
    return o

def wpoll(typ):
    a = [poll_load("w" + typ, S_PW, 2)]
    b = poll_check("w" + typ, S_PW, 2)
    c = [f"v_lshrrev_b32 v{V_PA}, 2, v{V_L16}", f"v_min_u32 v{V_PA}, 16, v{V_PA}"]
    return a, b, c

def common(cfg):
    p = Prog(); T = S_T
    p.label("KP_join")
    mark = I("s_nop 0", tag="prejoin"); mark.kind = "vst"; p.add(mark)
    mark = I("s_nop 0", tag="prejoinl"); mark.kind = "dsw"; p.add(mark)
    if cfg.get("stamps"): p.add(stamp(3))
    VT4 = 208
    p.wait(lgkm="prejoinl")
    for t in (1, 3):
        a = ACCA + 16 * t
        p(f"v_mfma_f32_32x32x16_bf16 v[{a}:{a+15}], v[{V_T+4*t}:{V_T+4*t+3}], v[{V_MEAN}:{V_MEAN+3}], v[{a}:{a+15}]")
    p(f"s_and_b32 s{T}, s2, 7\ns_lshr_b32 s{T+1}, s2, 3\ns_and_b32 s{T+2}, s{T+1}, 1\ns_lshl_b32 s{S_PAIR}, s{T}, 1\ns_add_u32 s{S_PAIR}, s{S_PAIR}, s{T+2}")
    p(f"s_lshr_b32 s{S_TGO}, s{T+1}, 1\ns_lshl_b32 s{S_TGO}, s{S_TGO}, 2\ns_add_u32 s{S_TGO}, s{S_TGO}, s{S_W}")
    p(f"v_and_b32 v{VT4}, 0x1f0, v{V_L16}\nv_lshrrev_b32 v{V_PA}, 2, v{VT4}")
    p(f"s_lshl_b32 s{S_PKV}, s{S_PAIR}, 7\ns_add_u32 s{S_PKV}, s{S_PKV}, {FLAGS+F_KV}")
    p(f"s_mul_i32 s{S_A}, s{S_TGO}, 40960\ns_mul_i32 s{S_B}, s{S_PAIR}, 2560\ns_add_u32 s{S_A}, s{S_A}, s{S_B}\ns_add_u32 s{S_B}, s{S_A}, {OF}\ns_add_u32 s{S_A}, s{S_A}, {QF}")
    p(f"s_getpc_b64 s[68:69]\nKP_pc:\ns_add_u32 s68, s68, K1_tab-KP_pc\ns_addc_u32 s69, s69, 0")
    srd(p, 32, 28, WPHI_SZ)
    p(f"s_mul_i32 s{T+3}, s{S_PAIR}, 1600\ns_lshl_b32 s{T+4}, s{S_W}, 10\ns_add_u32 s{T+3}, s{T+3}, s{T+4}\ns_add_u32 m0, s{T+4}, {OW}")
    e0 = mk(epi_gu(ACCA, S_ST + 2, V_T, (0,), tag="hl"), cfg)[cfg["tail_k"]:]
    e1 = mk(epi_gu(ACCA, S_ST + 2, V_T, (1,), tag="hl"), cfg)
    tl = e0 + e1
    ld = [I(f"global_load_dwordx4 v[{160+4*i}:{163+4*i}], v{V_L16}, s[68:69] offset:{1024*i}", tag="tab") for i in range(3)]
    ld += [I(f"buffer_load_dwordx4 v{V_L16}, s[32:35], s{T+3} offen lds", tag="tab"),
           I(f"buffer_load_dwordx4 v[172:175], v{V_L16}, s[{S_WS}:{S_WS+3}], s{S_A} offen sc1", tag="q"),
           I(f"buffer_load_dwordx4 v[176:179], v{V_L16}, s[{S_WS}:{S_WS+3}], s{S_A} offen offset:1024 sc1", tag="q"),
           I(f"buffer_load_dwordx4 v[180:183], v{VT4}, s[{S_WS}:{S_WS+3}], s{S_A} offen offset:2048 sc1", tag="q"),
           poll_load("kv", S_PKV)]
    first_st = [k for k, i in enumerate(tl) if i.kind == "vst"][0]
    w11 = wload(11)
    for k, i in enumerate(tl):
        while ld and (k == first_st or (8 - len(ld)) * first_st <= k * 8): p.add(ld.pop(0))
        p.add(i)
        if k > first_st and k % 24 == 0 and w11:
            for x in w11.pop(0): p.add(x)
    assert not w11
    if cfg.get("stamps"): p.add(stamp(4))
    p(f"s_and_b32 s{T+2}, s{T+1}, 3\ns_lshl_b32 s{S_RB64}, s{T}, 2\ns_add_u32 s{S_RB64}, s{S_RB64}, s{T+2}\ns_lshr_b32 s{S_CB}, s{T+1}, 2")
    p(f"s_lshl_b32 s{S_FHE}, s{S_TG}, 4\ns_add_u32 s{S_FHE}, s{S_FHE}, s{S_GRP}\ns_lshl_b32 s{S_FHE}, s{S_FHE}, 2\ns_add_u32 s{S_FHE}, s{S_FHE}, {FLAGS+F_HE}\ns_add_u32 s{S_FHL}, s{S_FHE}, {F_HL-F_HE}")
    p(f"v_mov_b32 v210, 0\nv_mov_b32 v211, 0\nv_lshrrev_b32 v212, 1, v{V_L16}\ns_lshl_b32 s{T}, s{S_W}, 9\ns_add_u32 s{T}, s{T}, {ZR}\nv_add_u32 v212, s{T}, v212\nds_write_b64 v212, v[210:211]")
    p(f"v_mov_b32 v212, {OW+WPH_ZERO}\nds_write_b64 v212, v[210:211]")
    p.wait(vm="tab")
    p.add(flag_store(S_FHE))
    for k in range(12): p(f"v_add_u32 v{160+k}, {OW}, v{160+k}")
    p.wait(lgkm=0)
    p("s_barrier")
    for k in range(12): p(f"ds_read_b64_tr_b16 v[{184+2*k}:{185+2*k}], v{160+k}", tag="wp")
    p(f"s_lshl_b32 s{S_FO}, s{S_TGO}, 4\ns_add_u32 s{S_FO}, s{S_FO}, s{S_PAIR}\ns_lshl_b32 s{S_FO}, s{S_FO}, 2\ns_add_u32 s{S_FO}, s{S_FO}, {FLAGS+F_O}")
    p(f"s_lshl_b32 s{S_PH}, s{S_RB64}, 7\ns_add_u32 s{S_PH}, s{S_PH}, {FLAGS+F_HE}")
    srd(p, S_G, 30, X_SZ)
    for i in poll_check("kv", S_PKV, pending=(S_FHL,)): p.add(i)
    p(f"s_lshl_b32 s{T}, s{S_W}, 10\nv_add_u32 v213, s{T}, v{V_L16}\nv_mov_b32 v214, {OOB}\nv_cmp_gt_u32 vcc, 3360, v213\nv_cndmask_b32 v214, v214, v213, vcc")
    p(f"s_mul_i32 s{T}, s{S_PAIR}, {16*KVP_STRIDE}\ns_add_u32 s{T}, s{T}, {KVP}")
    p.wait(vm="q", lgkm="wp")
    kvl = []
    for r in range(16):
        kvl.append([I(f"buffer_load_dwordx4 v[{80+4*r}:{83+4*r}], v214, s[{S_WS}:{S_WS+3}], s{T} offen sc1", tag=("kv", r))] + ([I(f"s_add_u32 s{T}, s{T}, {KVP_STRIDE}")] if r < 15 else []))
    n = 0
    for tau in range(2):
        for s_ in range(3):
            w = 184 + 4 * (s_ * 2 + tau); d = 16 * tau
            p(f"v_mfma_f32_32x32x16_bf16 v[{d}:{d+15}], v[{w}:{w+3}], v[{172+4*s_}:{175+4*s_}], " + ("0" if s_ == 0 else f"v[{d}:{d+15}]"))
            for pc in kvl[n:n+2]:
                for i in pc: p.add(i)
            n += 2
    for pc in kvl[n:]:
        for i in pc: p.add(i)
    p(f"v_bfe_u32 v32, v{V_L16}, 6, 1\nv_lshrrev_b32 v33, 9, v{V_L16}\nv_bfe_u32 v34, v{V_L16}, 4, 2\nv_bfe_u32 v35, v{V_L16}, 7, 2\nv_lshl_add_u32 v34, v35, 2, v34")
    p("v_lshl_add_u32 v35, v32, 2, v34\nv_mul_u32_u24 v36, 105, v32")
    p(f"v_add_u32 v35, v35, v36\nv_lshlrev_b32 v35, 4, v35\nv_add_u32 v35, {KVL}, v35")
    p("v_lshlrev_b32 v37, 4, v32\nv_sub_u32 v37, 16, v37\nv_add_u32 v37, v37, v34\nv_cmp_gt_u32 vcc, 4, v34\nv_cndmask_b32 v37, 20, v37, vcc")
    p(f"v_add_u32 v37, v37, v36\nv_lshlrev_b32 v37, 4, v37\nv_add_u32 v37, {KVL}, v37")
    p(f"v_mov_b32 v36, {ZR}\nv_cmp_eq_u32 vcc, v32, v33\nv_cndmask_b32 v216, v36, v35, vcc\nv_cndmask_b32 v217, v36, v37, vcc")
    p(f"v_mul_u32_u24 v218, 1536, v33\nv_add_u32 v218, v218, v{VT4}\nv_lshl_add_u32 v219, v33, 3, v{VT4}")
    for t in softmax_pair(list(range(0, 20)), list(range(32, 52)), 60, [52, 53, 54, 55, 56, 57]): p(t)
    p(f"v_or_b32 v{V_PA}, 32, v{V_PA}")
    p.add(poll_load("he", S_PH))
    p.wait(vm="hl")
    p.add(flag_store(S_FHL))
    p("v_mov_b32 v210, 0x00003f80\nv_mov_b32 v211, 0x3f800000")
    for e in range(8): p(f"v_mov_b32 v{32+e}, 0")
    for r in range(16):
        p.wait(vm=("kv", r))
        for e in range(4): p(f"v_dot2c_f32_bf16 v{32+2*e}, v{80+4*r+e}, v210\nv_dot2c_f32_bf16 v{33+2*e}, v{80+4*r+e}, v211")
    for e in range(4): p(f"v_cvt_pk_bf16_f32 v{40+e}, v{32+2*e}, v{33+2*e}")
    p(f"v_min_u32 v213, {3584-16}, v213\nv_add_u32 v213, {KVL}, v213\nds_write_b128 v213, v[40:43]")
    V_HA, V_OA = 148, 152
    p(f"v_and_b32 v32, 0xf0, v{V_L16}\nv_lshrrev_b32 v33, 8, v{V_L16}\nv_lshl_add_u32 v32, v33, 9, v32")
    for tt in range(4):
        p(f"s_xor_b32 s{T}, s{S_W}, {tt}\ns_lshr_b32 s{T+1}, s{T}, 1\ns_and_b32 s{T}, s{T}, 1\ns_lshl_b32 s{T}, s{T}, 8")
        p(f"s_mul_i32 s{T+2}, s{T+1}, 110592\ns_add_u32 s{T+2}, s{T+2}, s{T}\nv_add_u32 v{V_HA+tt}, s{T+2}, v32")
        p(f"s_mul_i32 s{T+2}, s{T+1}, 40960\ns_add_u32 s{T+2}, s{T+2}, s{T}\nv_add_u32 v{V_OA+tt}, s{T+2}, v32")
    p(f"s_mul_i32 s{S_A}, s{S_RB64}, {2*110592}\ns_lshl_b32 s{T}, s{S_W}, 11\ns_add_u32 s{S_A}, s{S_A}, s{T}\ns_add_u32 s{S_A}, s{S_A}, {HF}\ns_mov_b32 s{S_HS}, s{S_A}")
    p.wait(lgkm=0)
    p("s_barrier")
    for s_ in range(5):
        for tau in range(2):
            p(f"ds_read_b128 v[{160+8*s_+4*tau}:{163+8*s_+4*tau}], v{216+tau} offset:{336*s_}", tag=("a", s_))
    RING = [80, 96, 112, 128, 224, 240, 160, 176, 192]
    def aload(step):
        b = RING[step % 9]; o = []
        for tt in range(4):
            pc = [I(f"buffer_load_dwordx4 v[{b+4*tt}:{b+4*tt+3}], v{(V_HA if step < 14 else V_OA)+tt}, s[{S_WS}:{S_WS+3}], s{S_HS} offen sc1", tag=("act", step))]
            if tt == 3:
                if step == 4: pc += [I(f"s_add_u32 s{S_HS}, s{S_HS}, 8192"), I(f"s_cmp_lt_u32 s{S_W}, 2"), I(f"s_cselect_b32 s{S_HS}, s{S_HS}, {OOB}")]
                elif step == 5: pc += [I(f"s_add_u32 s{S_HS}, s{S_A}, {22*2048}")]
                elif step == 13: pc += [I(f"s_mul_i32 s{S_HS}, s{S_RB64}, 81920"), I(f"s_lshl_b32 s{T}, s{S_W}, 11"), I(f"s_add_u32 s{S_HS}, s{S_HS}, s{T}"), I(f"s_add_u32 s{S_HS}, s{S_HS}, {OF}")]
                else: pc += [I(f"s_add_u32 s{S_HS}, s{S_HS}, 8192")]
            o.append(pc)
        return o
    for i in poll_check("he", S_PH): p.add(i)
    early = [pc for i in range(6) for pc in aload(i)]
    for s_ in range(5):
        p.wait(lgkm=("a", s_))
        for tau in range(2):
            d = 16 * tau
            p(f"v_mfma_f32_32x32x16_bf16 v[{d}:{d+15}], v[{160+8*s_+4*tau}:{163+8*s_+4*tau}], v[{60+4*s_}:{63+4*s_}], " + ("0" if s_ == 0 else f"v[{d}:{d+15}]"))
            for x in early.pop(0): p.add(x)
    for x in early.pop(0) + early.pop(0): p.add(x)
    p(f"v_add_f32 v20, {fx(1e-6)}, v20\nv_rcp_f32 v20, v20")
    for e in range(20): p(f"v_mul_f32 v{e}, v{e}, v20")
    for e in range(10): p(f"v_cvt_pk_bf16_f32 v{196+e}, v{2*e}, v{2*e+1}")
    for k in range(cfg["early_pre"] - 12):
        for x in early.pop(0): p.add(x)
    p(f"buffer_store_dwordx4 v[196:199], v218, s[{S_WS}:{S_WS+3}], s{S_B} offen sc1", tag="ost")
    p(f"buffer_store_dwordx4 v[200:203], v218, s[{S_WS}:{S_WS+3}], s{S_B} offen offset:512 sc1", tag="ost")
    p(f"buffer_store_dwordx2 v[204:205], v219, s[{S_WS}:{S_WS+3}], s{S_B} offen offset:1024 sc1", tag="ost")
    if cfg.get("stamps"): p.add(stamp(5))
    p(f"v_lshrrev_b32 v{V_PA}, 2, v{VT4}\ns_add_u32 s{S_PH}, s{S_PH}, {F_HL-F_HE}")
    SACC = 80
    def step(i, extra):
        b = RING[i % 9]; a = WSLOT[i % 12]
        p.wait(vm=[("act", i)] + ([("w2", i)] if i >= 11 else []))
        k = 0
        for tt in range(4):
            for nt in range(5):
                c = 4 * (5 * tt + nt)
                if i < 14: dreg = f"v[{c}:{c+3}]"
                else: dreg = f"a[{SACC+c}:{SACC+c+3}]"
                p(f"v_mfma_f32_16x16x32_bf16 {dreg}, a[{a+4*nt}:{a+4*nt+3}], v[{b+4*tt}:{b+4*tt+3}], " + ("0" if i in (0, 14) else dreg))
                m = 5 * tt + nt
                while k < len(extra) and k * 19 <= m * len(extra):
                    for x in extra[k]: p.add(x)
                    k += 1
    D0 = cfg["p2_first"]
    for i in range(6):
        ex = early[:8]; early = early[8:]
        if i >= 1: ex = ex + wload(11 + i)
        if i == cfg["fo_step"]: ex = ex + [[mkwait(vm="ost"), flag_store(S_FO)]]
        if i == 5: ex = [[poll_load("hl", S_PH)]] + ex
        step(i, ex)
    if cfg.get("stamps"): p.add(stamp(6))
    for i in poll_check("hl", S_PH): p.add(i)
    p(f"s_add_u32 s{S_PH}, s{S_PH}, {F_O-F_HL}")
    for i in range(6, 6 + D0):
        for pc in aload(i):
            for x in pc: p.add(x)
    XW, XR_, XA = 210, 213, 214
    xa = []
    for tt in range(1, 4):
        xa.append([I(f"s_xor_b32 s{T+4}, s{S_W}, {tt}"), I(f"s_mul_i32 s{T+4}, s{T+4}, 15360"), I(f"s_add_u32 s{T+4}, s{T+4}, {5120*(tt-1)}"), I(f"v_add_u32 v{XW+tt-1}, s{T+4}, v{V_L16}")])
    xa.append([I(f"s_mul_i32 s{T+4}, s{S_W}, 15360"), I(f"v_add_u32 v{XR_}, s{T+4}, v{V_L16}")])
    xa.append([I(f"s_movk_i32 s{T+5}, 6554"), I(f"v_lshrrev_b32 v220, 4, v{V_L16}"), I(f"s_movk_i32 s{T+6}, 160")])
    for u in range(3):
        xa.append([I(f"v_add_u32 v221, {64*u}, v220"), I(f"v_mul_u32_u24 v222, s{T+5}, v221"), I(f"v_lshrrev_b32 v222, 16, v222")])
        xa.append([I(f"v_mul_u32_u24 v223, 70, v222"), I(f"v_add_u32 v223, v223, v221"), I(f"v_lshlrev_b32 v{XA+u}, 4, v223")])
        xa.append([I(f"v_add_u32 v223, v222, v221"), I(f"v_lshlrev_b32 v{XA+3+u}, 4, v223")])
    xa.append([I(f"v_cmp_gt_u32 vcc, s{T+6}, v221"), I(f"v_mov_b32 v223, {OOB}"), I("s_nop 0"), I(f"v_cndmask_b32 v{XA+2}, v223, v{XA+2}, vcc")])
    xa.append([I(f"s_lshl_b32 s{S_B}, s{S_RB64}, 2"), I(f"s_add_u32 s{S_B}, s{S_B}, s{S_W}"), I(f"s_mul_i32 s{S_B}, s{S_B}, 20480"), I(f"s_mul_i32 s{T+4}, s{S_CB}, 160"), I(f"s_add_u32 s{S_B}, s{S_B}, s{T+4}")])
    xa.append([I(f"s_mul_i32 s{T+4}, s{S_W}, {20*FT_S}"), I(f"s_add_u32 s{T+4}, s{T+4}, {FT}")] + [I(f"v_add_u32 v{XA+3+u}, s{T+4}, v{XA+3+u}") for u in range(3)])
    xa.append([I(f"v_bfe_u32 v221, v{V_L16}, 4, 4"), I(f"v_mul_u32_u24 v221, {FT_S}, v221"), I(f"v_lshrrev_b32 v222, 8, v{V_L16}"), I(f"v_lshl_add_u32 v221, v222, 3, v221"), I(f"v_add_u32 v220, s{T+4}, v221")])
    opoll = cfg["o_poll"]
    nxt = 6 + D0
    for i in range(6, 14):
        ex = []
        if i in (6, 7): ex += wload(11 + i)
        if i == 8: ex += xa
        if i == opoll - 1: ex = [[poll_load("o", S_PH)]] + ex
        if i == opoll:
            for x in poll_check("o", S_PH): p.add(x)
        lim = 14 if i < opoll else 19
        cnt = 0
        while nxt < lim and nxt - 9 < i and cnt < cfg["p2_rate"]:
            ex = ex + aload(nxt); nxt += 1; cnt += 1
        step(i, ex)
    if cfg.get("stamps"): p.add(stamp(7))
    XD = 112
    yw = [[I(f"ds_write_b128 v{XW+tt-1}, v[{4*(5*tt+nt)}:{4*(5*tt+nt)+3}] offset:{1024*nt}")] for tt in range(1, 4) for nt in range(5)]
    for i in range(14, 19):
        ex = []
        while nxt < 19: ex = ex + aload(nxt); nxt += 1
        if i == 14: ex += [[I(f"buffer_load_dwordx4 v[{XD+4*u}:{XD+4*u+3}], v{XA+u}, s[{S_X}:{S_X+3}], s{S_B} offen", tag="x")] for u in range(3)]
        if i >= 15: ex += yw[4*(i-15):4*(i-15)+4]
        step(i, ex)
    for tt in range(1, 4): p(f"v_add_u32 v{XW+tt-1}, 61440, v{XW+tt-1}")
    for tt in range(1, 4):
        for nt in range(5):
            c = SACC + 4 * (5 * tt + nt)
            p(f"ds_write_b128 v{XW+tt-1}, a[{c}:{c+3}] offset:{1024*nt}")
    for e in range(20): p(f"v_accvgpr_read_b32 v{224+e}, a{SACC+e}")
    p(f"v_add_u32 v222, 61440, v{XR_}")
    p.wait(lgkm=0)
    p("s_barrier")
    for nt in range(5):
        for src in range(3): p(f"ds_read_b128 v[{20+12*nt+4*src}:{23+12*nt+4*src}], v{XR_} offset:{5120*src+1024*nt}", tag=("fy", nt))
    for nt in range(5):
        p.wait(lgkm=("fy", nt))
        b = 20 + 12 * nt; y = 4 * nt
        for src in range(3):
            p(f"v_pk_add_f32 v[{y}:{y+1}], v[{y}:{y+1}], v[{b+4*src}:{b+4*src+1}]\nv_pk_add_f32 v[{y+2}:{y+3}], v[{y+2}:{y+3}], v[{b+4*src+2}:{b+4*src+3}]")
        for src in range(3): p(f"ds_read_b128 v[{128+12*nt+4*src}:{131+12*nt+4*src}], v222 offset:{5120*src+1024*nt}", tag=("fs", nt))
        for e in range(4): p(f"v_mul_f32 v{b+e}, {fx(-LOG2E)}, v{y+e}")
        for e in range(4): p(f"v_exp_f32 v{b+e}, v{b+e}")
        for e in range(4): p(f"v_add_f32 v{b+e}, 1.0, v{b+e}")
        for e in range(4): p(f"v_rcp_f32 v{b+e}, v{b+e}")
        p(f"v_pk_mul_f32 v[{y}:{y+1}], v[{y}:{y+1}], v[{b}:{b+1}]\nv_pk_mul_f32 v[{y+2}:{y+3}], v[{y+2}:{y+3}], v[{b+2}:{b+3}]")
    for nt in range(5):
        p.wait(lgkm=("fs", nt))
        b = 128 + 12 * nt; s0 = 224 + 4 * nt; y = 4 * nt
        for src in range(3):
            p(f"v_pk_add_f32 v[{s0}:{s0+1}], v[{s0}:{s0+1}], v[{b+4*src}:{b+4*src+1}]\nv_pk_add_f32 v[{s0+2}:{s0+3}], v[{s0+2}:{s0+3}], v[{b+4*src+2}:{b+4*src+3}]")
        p(f"v_pk_mul_f32 v[{y}:{y+1}], v[{y}:{y+1}], v[{s0}:{s0+1}]\nv_pk_mul_f32 v[{y+2}:{y+3}], v[{y+2}:{y+3}], v[{s0+2}:{s0+3}]")
        p(f"v_cvt_pk_bf16_f32 v{y}, v{y}, v{y+1}\nv_cvt_pk_bf16_f32 v{y+1}, v{y+2}, v{y+3}")
        p(f"ds_write_b64 v220, v[{y}:{y+1}] offset:{32*nt}", tag="ft")
    p("v_mov_b32 v60, 0xffff0000")
    p.wait(lgkm="ft")
    for u in range(3): p(f"ds_read_b128 v[{20+4*u}:{23+4*u}], v{XA+3+u}", tag=("fr", u))
    p.wait(vm="x")
    for u in range(3):
        p.wait(lgkm=("fr", u))
        for e in range(4):
            a = 20 + 4 * u + e; x = XD + 4 * u + e
            p(f"v_lshlrev_b32 v40, 16, v{a}\nv_and_b32 v41, v60, v{a}\nv_lshlrev_b32 v42, 16, v{x}\nv_and_b32 v43, v60, v{x}")
            p(f"v_pk_add_f32 v[40:41], v[40:41], v[42:43]\nv_cvt_pk_bf16_f32 v{a}, v40, v41")
        p(f"buffer_store_dwordx4 v[{20+4*u}:{23+4*u}], v{XA+u}, s[{S_G}:{S_G+3}], s{S_B} offen")
    if cfg.get("stamps"):
        p.add(stamp(8)); p.add(stamp(9, True)); stamp_flush(p, 1, S_WS, S_W)
    p(f"s_or_b32 s{T}, s2, s{S_W}\ns_cmp_lg_u32 s{T}, 0\ns_cbranch_scc1 KP_end")
    txt = finalize(p.ins, True)
    txt += f"""    s_mov_b32 s{T}, {FLAGS+F_HL}
    v_mov_b32 v17, s{S_TAG}
KP_ep:
"""
    for i in range(4): txt += f"    buffer_load_dwordx4 v[{4*i}:{4*i+3}], v{V_L16}, s[{S_WS}:{S_WS+3}], s{T} offen offset:{1024*i} sc1\n"
    txt += "    s_waitcnt vmcnt(0)\n    v_mov_b32 v16, 0\n"
    for i in range(16): txt += f"    v_xor_b32 v{i}, v{i}, v17\n    v_or_b32 v16, v16, v{i}\n"
    txt += f"""    v_cmp_ne_u32 vcc, 0, v16
    s_nop 4
    s_cbranch_vccz KP_ep2
    s_cmp_eq_u32 s{S_SPIN}, 0
    s_cbranch_scc1 KP_end
    s_sub_u32 s{S_SPIN}, s{S_SPIN}, 1
    s_sleep 1
    s_branch KP_ep
KP_ep2:
    s_mov_b32 s{T}, {FLAGS+F_E}
    v_mov_b32 v16, 0
    buffer_store_dword v17, v16, s[{S_WS}:{S_WS+3}], s{T} offen sc1
KP_end:
    s_endpgm
"""
    return txt

def gen(cfg, name):
    SLOW.clear()
    p = Prog()
    T = S_T
    p("s_cmp_ge_u32 s2, 256\ns_cbranch_scc1 KP_end")
    if cfg.get("stamps"):
        p.add(stamp(0)); p.add(stamp(1, True))
    if cfg.get("codepf"):
        p(f"s_getpc_b64 s[4:5]\nK1_pf:\ns_mov_b32 s6, CODE_END-K1_pf\ns_mov_b32 s7, 0x20000\ns_lshr_b32 s8, s2, 3\ns_lshl_b32 s8, s8, 12\nv_lshlrev_b32 v1, 4, v0")
        p("buffer_load_dwordx4 a[252:255], v1, s[4:7], s8 offen")
    p(f"s_load_dwordx4 s[28:31], s[0:1], {KA_X}")
    p(f"s_load_dwordx4 s[32:35], s[0:1], {KA_WG}")
    p(f"s_load_dwordx2 s[36:37], s[0:1], {KA_WS}")
    p(f"v_lshrrev_b32 v1, 6, v0\nv_and_b32 v0, 63, v0\nv_readfirstlane_b32 s{S_W}, v1")
    p(f"s_and_b32 s{T}, s2, 7\ns_lshr_b32 s{T+1}, s2, 3")
    p(f"s_and_b32 s{T+2}, s{T}, 1\ns_lshl_b32 s{T+2}, s{T+2}, 3\ns_and_b32 s{T+3}, s{T+1}, 7\ns_add_u32 s{S_RB}, s{T+2}, s{T+3}")
    p(f"s_lshr_b32 s{T+4}, s{T+1}, 3")
    p(f"s_mul_i32 s{T+5}, s{T+3}, {cfg['rot_a']}\ns_mul_i32 s{T+6}, s{T+4}, {cfg['rot_b']}\ns_add_u32 s{T+5}, s{T+5}, s{T+6}\ns_lshr_b32 s{S_ROT}, s{T+5}, 3")
    p(f"s_cmp_ge_u32 s{S_ROT}, 10\ns_cselect_b32 s{T+5}, 10, 0\ns_sub_u32 s{S_ROT}, s{S_ROT}, s{T+5}")
    p(f"s_and_b32 s{T+5}, s{T}, 6\ns_and_b32 s{T+6}, s{T+4}, 1\ns_add_u32 s{S_GP}, s{T+5}, s{T+6}")
    p(f"s_and_b32 s{S_GRP}, s{T+4}, 2\ns_lshl_b32 s{S_GRP}, s{S_GRP}, 2\ns_add_u32 s{S_GRP}, s{S_GRP}, s{S_GP}")
    p(f"s_lshl_b32 s{S_TG}, s{S_RB}, 2\ns_add_u32 s{S_TG}, s{S_TG}, s{S_W}")
    p(f"s_lshl_b32 s{S_LW4}, s{S_W}, 12")
    p(f"s_mul_i32 s{S_BEG+3}, s{S_TG}, 40960\ns_add_u32 s{S_END+3}, s{S_BEG+3}, 1280")
    p(f"s_lshl_b32 s{S_SO+3}, s{S_ROT}, 7\ns_add_u32 s{S_SO+3}, s{S_SO+3}, s{S_BEG+3}\ns_add_u32 s{S_X2}, s{S_SO+3}, {16*1280-2048}")
    p("v_lshrrev_b32 v1, 3, v0\nv_and_b32 v2, 7, v0\nv_lshrrev_b32 v4, 4, v0\nv_xor_b32 v4, v2, v4\nv_mul_u32_u24 v5, 1280, v1")
    p(f"v_lshl_add_u32 v{V_DX}, v4, 4, v5\nv_xor_b32 v4, 4, v4\nv_lshl_add_u32 v4, v4, 4, v5\nv_add_u32 v{V_DX+1}, {8*1280-1024}, v4")
    p("v_bfe_u32 v3, v0, 4, 1\nv_lshlrev_b32 v3, 2, v3\nv_xor_b32 v2, v2, v3\nv_lshlrev_b32 v2, 4, v2")
    p(f"v_mul_u32_u24 v3, 3456, v1\nv_add_u32 v{V_DG}, v3, v2\nv_add_u32 v{V_DG+1}, {8*3456-1024}, v{V_DG}")
    p(f"v_mul_u32_u24 v3, 3840, v1\nv_add_u32 v{V_DQ}, v3, v2\nv_add_u32 v{V_DQ+1}, {8*3840-1024}, v{V_DQ}")
    p("s_waitcnt lgkmcnt(0)")
    srd(p, S_X, 28, X_SZ); srd(p, S_G, 32, WG_SZ); srd(p, S_U, 34, WG_SZ, -2048); srd(p, S_QA, 30, WQKV_SZ); srd(p, S_QB, 30, WQKV_SZ, 128 - 2048)
    def setpass(q, pi, pitch, colreg):
        q(f"s_mul_i32 s{S_BEG+pi}, s{S_W}, {16*pitch}\ns_add_u32 s{S_BEG+pi}, s{S_BEG+pi}, s{colreg}\ns_add_u32 s{S_END+pi}, s{S_BEG+pi}, {640*pitch}")
        q(f"s_mul_i32 s{S_SO+pi}, s{S_ROT}, {64*pitch}\ns_add_u32 s{S_SO+pi}, s{S_SO+pi}, s{S_BEG+pi}")
    def hstore(q, k, lreg):
        q(f"s_mul_i32 s{S_ST+k}, s{S_TG}, {216*512}\ns_lshl_b32 s{T+9}, s{lreg}, 12\ns_add_u32 s{S_ST+k}, s{S_ST+k}, s{T+9}\ns_add_u32 s{S_ST+k}, s{S_ST+k}, {HF}")
    def common_pre(q, rdbase, nsets, xring, kv):
        srd(q, S_WS, 36, WS_TOTAL)
        q(f"s_add_u32 s36, s36, {FLAGS+F_E}\ns_addc_u32 s37, s37, 0\ns_load_dword s{S_TAG}, s[36:37], 0")
        q(f"v_lshlrev_b32 v{V_L16}, 4, v0")
        q("v_and_b32 v1, 1, v0\nv_bfe_u32 v2, v0, 1, 1\nv_lshl_add_u32 v1, v1, 1, v2")
        q("v_bfe_u32 v2, v0, 4, 1\nv_lshl_add_u32 v1, v2, 2, v1\nv_lshlrev_b32 v1, 3, v1")
        q("v_bfe_u32 v2, v0, 2, 2\nv_lshrrev_b32 v3, 5, v0\nv_lshl_add_u32 v3, v3, 3, v2")
        q(f"v_lshl_add_u32 v4, v3, 7, v1\nv_bfe_u32 v5, v0, 3, 1\nv_lshl_add_u32 v4, v5, 6, v4\nv_add_u32 v{rdbase}, s{S_LW4}, v4")
        for j in range(4):
            for h in range(2):
                if j or h: q(f"v_xor_b32 v{rdbase+2*j+h}, {4096*j + 64*h}, v{rdbase}")
        if nsets == 2:
            for k in range(8): q(f"v_add_u32 v{rdbase+8+k}, 65536, v{rdbase+k}")
        if kv:
            q("v_mul_u32_u24 v4, 320, v3\nv_add_u32 v4, v4, v1")
            for j in range(4):
                q(f"s_xor_b32 s{T}, s{S_W}, {j}\ns_mul_i32 s{T}, s{T}, 5120\nv_add_u32 v{V_R5+j}, s{T}, v4")
        q(f"v_and_b32 v1, 31, v0\nv_lshrrev_b32 v2, 5, v0\nv_lshl_add_u32 v2, s{S_W}, 1, v2\nv_bfe_u32 v3, v0, 1, 3\nv_xor_b32 v2, v2, v3")
        q(f"v_lshlrev_b32 v2, 4, v2\nv_lshl_add_u32 v2, v1, 7, v2\nv_add_u32 v{V_XR}, s{S_LX}, v2")
        for j in range(1, 4): q(f"v_xor_b32 v{V_XR+j}, {32*j}, v{V_XR}")
        q(f"v_mov_b32 v{V_ONE}, 0x3f803f80\nv_and_b32 v1, 15, v0\nv_lshrrev_b32 v2, 4, v0\nv_lshlrev_b32 v2, 2, v2\nv_cmp_eq_u32 vcc, v1, v2")
        q(f"v_mov_b32 v{V_S1}, 0\nv_mov_b32 v{V_S2}, 0")
        for k in range(4): q(f"v_cndmask_b32 v{V_SEL+k}, 0, v{V_ONE}, vcc")
        q(f"v_add_u32 v{V_CSR}, {CSX}, v{V_L16}\nv_lshl_add_u32 v{V_CSW}, s{S_W}, 2, v{V_CSR}")
    def post_pre(q):
        q(f"s_load_dwordx2 s[28:29], s[0:1], {KA_WPHI}\ns_load_dwordx2 s[30:31], s[0:1], {KA_OUT}")
        q("s_waitcnt lgkmcnt(0)")
        q(f"s_mul_i32 s{S_TAG}, s{S_TAG}, 0x9E3779B1\ns_add_u32 s{S_TAG}, s{S_TAG}, 0x7F4A7C15\ns_mov_b32 s{S_SPIN}, {cfg['spin']}")
        q(f"s_lshr_b32 s76, s2, 5\ns_and_b32 s77, s76, 3\ns_mul_i32 s{S_PW}, s77, 320\ns_add_u32 s{S_PW}, s{S_PW}, {FLAGS+F_W}")
        q(f"s_mul_i32 s{S_WB}, s76, 74\ns_add_u32 s{S_WB}, s{S_WB}, s{S_W}\ns_mul_i32 s{S_WB}, s{S_WB}, 5120\ns_add_u32 s{S_WB}, s{S_WB}, {W2P}\ns_add_u32 s{S_WY}, s{S_WB}, {20*5120}")
        q(f"s_lshr_b32 s76, s2, 4\ns_lshl_b32 s76, s76, 2\ns_add_u32 s76, s76, s{S_W}\ns_lshl_b32 s76, s76, 5\ns_add_u32 s{S_PQ}, s76, {FLAGS+F_Q}")
    def sync_fill(typ, k0):
        a, b, c = wpoll(typ); pk = cfg["poll_k"]
        return [(42, 46, mk(sync_setup(typ, cfg), cfg)), (k0, k0 + 1, a), (k0 + pk, k0 + pk + 1, b + mk(c, cfg) + [poll_load("q" + typ, S_PQ)]),
                (k0 + 2 * pk + 1, k0 + 2 * pk + 2, poll_check("q" + typ, S_PQ))]
    p(f"s_cmp_lt_u32 s{T+4}, 2\ns_cbranch_scc1 K1_kv")
    p(f"s_add_u32 s{S_LX}, s{S_LW4}, {XRING_GQ}")
    p(f"s_cmp_lt_u32 s{S_GP}, 5\ns_cbranch_scc1 K1_q")
    head = p
    SG, SQ = 64 * 3456, 64 * 3840
    RDG = 64
    nsl, sb = cfg["nsl"], cfg["sb"]
    p = Prog(); p.ins = list(head.ins)
    p(f"s_sub_u32 s{T+7}, s{S_GP}, 5\ns_lshl_b32 s{T+1}, s{T+7}, 7"); setpass(p, 0, 3456, T + 1)
    pre = Prog(); common_pre(pre, RDG, 2, XRING_GQ, False)
    hstore(pre, 0, T + 7)
    for pi, inc in ((1, 3), (2, 8)):
        pre(f"s_add_u32 s{T+7}, s{T+7}, {inc}\ns_lshl_b32 s{T+1}, s{T+7}, 7"); setpass(pre, pi, 3456, T + 1); hstore(pre, pi, T + 7)
    post_pre(pre)
    passes = [Pass("gu", a, S_G, S_U, V_DG, SG, RDG) for a in (ACCA, ACCB, ACCA)]
    f = std_fillers(passes, [[(("m", ("passend", 1), -3), None, epi_gu(ACCA, S_ST, V_T))], [(("m", ("csbar", 2), 0), None, epi_gu(ACCB, S_ST + 1, V_T))]], cfg)
    kw = cfg["wpoll_gq"]
    emit_main(p, passes, 16384, nsl, sb, 10, f + tail_fill(passes, cfg) + sync_fill("g", kw), dict(cfg, pre=pre.ins, wpf_start=kw + cfg["poll_k"] + 1))
    p("s_branch KP_join")
    txt = finalize(p.ins, True)
    p = Prog(); p.label("K1_q")
    p(f"s_lshl_b32 s{T+1}, s{S_GP}, 8"); setpass(p, 0, 3840, T + 1)
    pre = Prog()
    pre(f"s_load_dwordx2 s[28:29], s[0:1], {KA_WO}\ns_load_dwordx2 s[30:31], s[0:1], {KA_WD}")
    common_pre(pre, RDG, 2, XRING_GQ, False)
    pre(f"s_mul_i32 s{S_ST+3}, s{S_TG}, 40960\ns_lshl_b32 s{T+9}, s{S_GP}, 13\ns_add_u32 s{S_ST+3}, s{S_ST+3}, s{T+9}\ns_add_u32 s{S_ST+3}, s{S_ST+3}, {QF}\ns_add_u32 s{S_ST+4}, s{S_ST+3}, 4096")
    pre(f"s_mov_b32 s{T+7}, s{S_GP}")
    for pi, inc in ((1, 6), (2, 8)):
        pre(f"s_add_u32 s{T+7}, s{T+7}, {inc}\ns_lshl_b32 s{T+1}, s{T+7}, 7"); setpass(pre, pi, 3456, T + 1); hstore(pre, pi, T + 7)
    RP = [210, 211, 212, 213, 214]; RPR = 215
    pre(f"s_movk_i32 s{T}, 6554")
    for i in range(5):
        pre(f"v_add_u32 v2, {64*i}, v0\nv_mul_u32_u24 v3, s{T}, v2\nv_lshrrev_b32 v3, 16, v3\nv_mul_u32_u24 v4, 10, v3\nv_sub_u32 v4, v2, v4")
        pre(f"v_mul_u32_u24 v3, 1280, v3\nv_lshl_add_u32 v3, v4, 4, v3\nv_subrev_u32 v{RP[i]}, {1024*(i&3)}, v3")
    pre("v_lshrrev_b32 v2, 4, v0\nv_bfe_u32 v3, v0, 2, 2\nv_lshl_add_u32 v2, v2, 3, v3\nv_mul_u32_u24 v2, 160, v2\nv_and_b32 v3, 3, v0\nv_lshl_add_u32 v2, v3, 3, v2")
    pre(f"s_mul_i32 s67, s{S_W}, 10240\ns_add_u32 s67, s67, {XRING_GQ}\nv_add_u32 v{RPR}, s67, v2")
    pre(f"s_mul_i32 s{T}, s{S_RB}, 5\ns_add_u32 s{T}, s{T}, s{S_GP}")
    pre("s_waitcnt lgkmcnt(0)")
    pre(f"s_cmp_lt_u32 s{T}, 20\ns_cselect_b32 s32, s28, s30\ns_cselect_b32 s33, s29, s31\ns_mov_b32 s34, {WD_SZ}\ns_cselect_b32 s34, {WO_SZ}, s34\ns_mov_b32 s35, 0x20000")
    pre(f"s_cselect_b32 s{T+1}, 0, 20\ns_sub_u32 s{T+1}, s{T}, s{T+1}\ns_mul_i32 s68, s{T+1}, 40960\ns_mul_i32 s{T+1}, s{S_W}, 160\ns_add_u32 s68, s68, s{T+1}")
    pre(f"s_mul_i32 s69, s{S_W}, 74\ns_add_u32 s69, s69, s{T}\ns_mul_i32 s69, s69, 5120\ns_add_u32 s69, s69, {W2P}")
    pre(f"s_cmp_lt_u32 s{T}, 74\ns_cselect_b32 s69, s69, {OOB}")
    pre(f"s_mul_i32 s74, s{S_W}, 80\ns_add_u32 s74, s74, s{T}\ns_lshl_b32 s74, s74, 2\ns_add_u32 s74, s74, {FLAGS+F_W}")
    pre(f"s_lshl_b32 s75, s{S_TG}, 3\ns_add_u32 s75, s75, s{S_GP}\ns_lshl_b32 s75, s75, 2\ns_add_u32 s75, s75, {FLAGS+F_Q}")
    post_pre(pre)
    grp = []
    for u in range(2):
        for i in range(5):
            pc = []
            if i in (0, 4): pc.append(I(f"s_add_u32 m0, s67, {5120*u + 1024*i}"))
            pc.append(I(f"buffer_load_dwordx4 v{RP[i]}, s[32:35], s68 offen offset:{1024*(i&3)} lds", tag=("rp", u)))
            if u == 0 and i == 4: pc.append(I("s_add_u32 s68, s68, 640"))
            grp.append(pc)
    rp2 = []
    for u in range(2):
        RB_ = ACCA + 20 * u
        rp2.append(mkwait(vm=("rp", u)))
        for nt in range(5):
            for i in range(2):
                rp2.append(I(f"ds_read_b64_tr_b16 v[{RB_+4*nt+2*i}:{RB_+4*nt+2*i+1}], v{RPR} offset:{5120*u + 640*i + 32*nt}", tag=("rr", u, nt)))
        for nt in range(5):
            rp2.append(mkwait(lgkm=("rr", u, nt)))
            if nt == 4: rp2.append("s_add_u32 s69, s69, 4096")
            rp2.append(I(f"buffer_store_dwordx4 v[{RB_+4*nt}:{RB_+4*nt+3}], v{V_L16}, s[{S_WS}:{S_WS+3}], s69 offen offset:{1024*(nt&3)} sc1", tag="rs"))
        if u == 0: rp2 += [f"s_add_u32 s69, s69, {4*74*5120 - 4096}"]
    passes = [Pass("q", ACCA, S_QA, S_QB, V_DQ, SQ, RDG), Pass("gu", ACCB, S_G, S_U, V_DG, SG, RDG), Pass("gu", ACCA, S_G, S_U, V_DG, SG, RDG)]
    f = std_fillers(passes, [[(cfg["q_end"], cfg["rp_k"], epi_q(ACCA, S_ST + 3, V_T)), (cfg["rp_end"], None, rp2)], [(("m", ("csbar", 2), 0), None, epi_gu(ACCB, S_ST + 1, V_T))]], cfg)
    emit_main(p, passes, 16384, nsl, sb, 10, f + tail_fill(passes, cfg) + sync_fill("q", kw),
              dict(cfg, pre=pre.ins, extra_dma={cfg["rp_after"]: grp}, wpf_start=kw + cfg["poll_k"] + 1, pubs=[("qst", [flag_store(75)]), ("rs", [flag_store(74)])], pub_before_poll=1))
    p("s_branch KP_join")
    txt += finalize(p.ins, True)
    RDK = 192
    p = Prog(); p.label("K1_kv")
    p(f"s_add_u32 s{S_LX}, s{S_LW4}, {XRING_KV}\ns_mul_i32 s{S_LW}, s{S_W}, 5120")
    p(f"s_mul_i32 s{T+1}, s{S_GP}, 160\ns_add_u32 s{T+1}, s{T+1}, 1280"); setpass(p, 0, 3840, T + 1)
    p(f"s_movk_i32 s{T}, 3277")
    for i in range(5):
        p(f"v_add_u32 v1, {64*i}, v0\nv_mul_u32_u24 v2, s{T}, v1\nv_lshrrev_b32 v2, 16, v2")
        p("v_mul_u32_u24 v3, 20, v2\nv_sub_u32 v3, v1, v3")
        p("v_cmp_lt_u32 vcc, 9, v3\nv_mul_u32_u24 v2, 3840, v2\nv_lshl_add_u32 v2, v3, 4, v2")
        p(f"v_add_u32 v3, {1280-160}, v2\nv_cndmask_b32 v2, v2, v3, vcc")
        p(f"v_subrev_u32 v{V_D5[i]}, {1024*(i&3)}, v2")
    pre = Prog()
    common_pre(pre, RDK, 1, XRING_KV, True)
    pre(f"s_add_u32 s{T+7}, s{S_GP}, 19\ns_lshl_b32 s{T+1}, s{T+7}, 7"); setpass(pre, 1, 3456, T + 1); hstore(pre, 2, T + 7)
    VA_PW, VA_VW, VA_A, VA_B, VA_S1, VA_S3 = 221, 222, 223, 214, 215, 255
    pre(f"v_mov_b32 v2, 0\nv_mov_b32 v3, 0\nv_mov_b32 v1, {WPH+WPH_ZERO}\nds_write_b64 v1, v[2:3]")
    pre(f"v_and_b32 v1, 31, v0\nv_lshl_add_u32 v1, s{S_W}, 5, v1\nv_lshrrev_b32 v4, 5, v0")
    pre(f"v_mul_u32_u24 v5, {VL_S}, v1\nv_add_u32 v5, {VL}, v5\nv_lshl_add_u32 v{VA_VW}, v4, 4, v5")
    pre(f"v_mul_u32_u24 v5, {PHI_S}, v1\nv_mul_u32_u24 v6, 80, v4\nv_add_u32 v5, v5, v6\nv_add_u32 v{VA_PW}, {PHI}, v5")
    pre("v_bfe_u32 v1, v0, 2, 2\nv_lshlrev_b32 v1, 2, v1\nv_lshl_add_u32 v1, v4, 1, v1")
    pre("v_and_b32 v2, 1, v0\nv_bfe_u32 v3, v0, 1, 1\nv_lshl_add_u32 v2, v2, 1, v3\nv_bfe_u32 v3, v0, 4, 1\nv_lshl_add_u32 v2, v3, 2, v2")
    pre(f"v_mul_u32_u24 v5, {PHI_S}, v1\nv_lshl_add_u32 v5, v2, 3, v5\ns_mul_i32 s{T+2}, s{S_W}, 80\ns_add_u32 s{T+2}, s{T+2}, {PHI}\nv_add_u32 v{VA_A}, s{T+2}, v5")
    pre("v_and_b32 v2, 3, v0\nv_lshl_add_u32 v2, v3, 2, v2")
    pre(f"s_mul_i32 s{T+2}, s{S_W}, 40\nv_lshlrev_b32 v5, 3, v2\nv_add_u32 v5, s{T+2}, v5\nv_cmp_gt_u32 vcc, 5, v2\nv_mov_b32 v6, 160\nv_cndmask_b32 v5, v6, v5, vcc")
    pre(f"v_mul_u32_u24 v6, {VL_S}, v1\nv_add_u32 v5, v5, v6\nv_add_u32 v{VA_B}, {VL}, v5")
    pre(f"v_and_b32 v1, 31, v0\nv_mul_u32_u24 v2, 21, v4\nv_add_u32 v2, v2, v1\nv_lshlrev_b32 v2, 4, v2\nv_mov_b32 v3, {OOB}")
    pre(f"v_cmp_gt_u32 vcc, 21, v1\nv_cndmask_b32 v{VA_S1}, v3, v2, vcc\nv_cmp_gt_u32 vcc, 21, v0\nv_cndmask_b32 v{VA_S3}, v3, v2, vcc")
    pre(f"s_lshr_b32 s{T+2}, s{S_W}, 1\ns_lshl_b32 s{T+3}, s{S_GP}, 1\ns_add_u32 s{T+2}, s{T+2}, s{T+3}\ns_lshl_b32 s{T+2}, s{T+2}, 4\ns_add_u32 s{T+2}, s{T+2}, s{S_RB}")
    pre(f"s_mul_i32 s{T+2}, s{T+2}, {KVP_STRIDE}\ns_and_b32 s{T+3}, s{S_W}, 1\ns_mul_i32 s{T+3}, s{T+3}, 1680\ns_add_u32 s{T+2}, s{T+2}, s{T+3}\ns_add_u32 s{S_ST+5}, s{T+2}, {KVP}")
    pre(f"s_getpc_b64 s[68:69]\nK1_pc:\ns_add_u32 s68, s68, K1_tab-K1_pc+2048\ns_addc_u32 s69, s69, 0")
    pre(f"s_mul_i32 s{T+2}, s{S_GP}, 3200\ns_lshl_b32 s{T+3}, s{S_W}, 10\ns_add_u32 s{T+2}, s{T+2}, s{T+3}\ns_add_u32 s{T+3}, s{T+3}, {WPH}")
    pre(f"s_lshl_b32 s74, s{S_GP}, 2\ns_add_u32 s74, s74, s{S_W}\ns_lshl_b32 s74, s74, 4\ns_add_u32 s74, s74, s{S_RB}\ns_lshl_b32 s74, s74, 2\ns_add_u32 s74, s74, {FLAGS+F_KV}")
    post_pre(pre)
    srd(pre, 32, 28, WPHI_SZ)
    fa = [I(f"global_load_dwordx4 v[{V_T+4*i}:{V_T+4*i+3}], v{V_L16}, s[68:69] offset:{1024*i-2048}", tag="tab") for i in range(6)]
    fb = [I(f"s_mov_b32 m0, s{T+3}"), I(f"buffer_load_dwordx4 v{V_L16}, s[32:35], s{T+2} offen lds", tag="tab")]
    f1 = []
    for k in range(24):
        f1.append(f"v_add_u32 v{V_T+k}, {WPH}, v{V_T+k}")
        f1.append(I(f"ds_read_b64_tr_b16 a[{160+2*k}:{161+2*k}], v{V_T+k}", tag="wp"))
    KP = V_T; K0 = 64
    a = []
    for b in range(5):
        for e in range(8): a.append(f"v_mul_f32 v{K0+8*b+e}, v{V_RL}, v{K0+8*b+e}")
        for e in range(4): a.append(f"v_cvt_pk_bf16_f32 v{KP+4*b+e}, v{K0+8*b+2*e}, v{K0+8*b+2*e+1}")
    for tau in range(2):
        for s in range(3):
            w = 160 + 4 * ((0 * 3 + s) * 2 + tau); d = K0 + 16 * tau
            a.append(f"v_mfma_f32_32x32x16_bf16 v[{d}:{d+15}], a[{w}:{w+3}], v[{KP+4*s}:{KP+4*s+3}], " + ("0" if s == 0 else f"v[{d}:{d+15}]"))
    a.append(f"v_mov_b32 v{K0+36}, 0x3f80\nv_mov_b32 v{K0+37}, 0\nv_lshrrev_b32 v{K0+38}, 5, v{V_L16}\nv_and_b32 v{K0+38}, 16, v{K0+38}\nv_sub_u32 v{K0+38}, v{VA_VW}, v{K0+38}")
    a.append(I(f"ds_write_b64 v{K0+38}, v[{K0+36}:{K0+37}] offset:160", tag="vw"))
    for b in range(5):
        o = K0 + 40 + 8 * b
        for e in range(8): a.append(f"v_mul_f32 v{o+e}, v{V_R}, v{o+e}")
        for e in range(4): a.append(f"v_cvt_pk_bf16_f32 v{o+e}, v{o+2*e}, v{o+2*e+1}")
        a.append(I(f"ds_write_b128 v{VA_VW}, v[{o}:{o+3}] offset:{32*b}", tag="vw"))
    a.append(mkwait(lgkm="vw"))
    for tau in range(2):
        for s in range(3):
            w = 160 + 4 * ((1 * 3 + s) * 2 + tau); d = K0 + 32 + 16 * tau
            a.append(f"v_mfma_f32_32x32x16_bf16 v[{d}:{d+15}], a[{w}:{w+3}], v[{KP+8+4*s}:{KP+8+4*s+3}], " + ("0" if s == 0 else f"v[{d}:{d+15}]"))
    a1 = a; a = []
    EP = [K0 + r for r in list(range(64, 80)) + [20, 21, 22, 23]]
    for P in range(2):
        sm = softmax_pair(list(range(K0 + 32 * P, K0 + 32 * P + 20)), EP, KP, [K0 + r for r in (24, 25, 26, 27, 28, 29)])
        cnt = 0
        for s_ in sm:
            a.append(s_)
            if s_.startswith("v_cvt_pk"):
                cnt += 1
                if cnt % 4 == 0:
                    ch = cnt // 4 - 1
                    a.append(f"ds_write_b128 v{VA_PW}, v[{KP+4*ch}:{KP+4*ch+3}] offset:{160*P + 16*ch}")
    bq = []
    def kvreads(kp):
        r = []; base = K0 + 32 + 12 * (kp & 1)
        for i in range(2): r.append(I(f"ds_read_b64_tr_b16 v[{base+8+2*i}:{base+9+2*i}], v{VA_B} offset:{kp*16*VL_S + i*VL_S}", tag=("kv", kp)))
        for tau in range(2):
            for i in range(2): r.append(I(f"ds_read_b64_tr_b16 v[{base+4*tau+2*i}:{base+4*tau+2*i+1}], v{VA_A} offset:{kp*16*PHI_S + i*PHI_S + tau*64}", tag=("kv", kp)))
        return r
    bq += kvreads(0)
    for kp in range(8):
        if kp + 1 < 8: bq += kvreads(kp + 1)
        bq.append(mkwait(lgkm=("kv", kp)))
        base = K0 + 32 + 12 * (kp & 1)
        for tau in range(2):
            d = K0 + 16 * tau
            bq.append(f"v_mfma_f32_32x32x16_bf16 v[{d}:{d+15}], v[{base+4*tau}:{base+4*tau+3}], v[{base+8}:{base+11}], " + ("0" if kp == 0 else f"v[{d}:{d+15}]"))
    bq2 = []
    for ch in range(3):
        for e in range(4): bq2.append(f"v_cvt_pk_bf16_f32 v{K0+64+4*ch+e}, v{K0+8*ch+2*e}, v{K0+8*ch+2*e+1}")
        bq2.append(I(f"buffer_store_dwordx4 v[{K0+64+4*ch}:{K0+67+4*ch}], v{VA_S1 if ch < 2 else VA_S3}, s[{S_WS}:{S_WS+3}], s{S_ST+5} offen offset:{672*ch} sc1", tag="kvs"))
    passes = [Pass("kv", K0, S_QA, S_QA, V_D5, SQ, V_R5), Pass("gu", ACCA, S_G, S_U, V_DG, SG, RDK)]
    kb = cfg["kv_bar"]; kw = cfg["wpoll_kv"]; ka = cfg["kv_a1"]
    assert kw + cfg["poll_k"] + 1 > ka
    f = std_fillers(passes, [[(ka, ka, a1), (("bar", kb, 0), ("bar", kb, 1), a), (("bar", kb, cfg["kv_bq"]), ("bar", kb, cfg["kv_bq"] + 2), bq), (("bar", kb, cfg["kv_bq"] + 6), None, bq2)]], cfg)
    f += [(("bar", 6, -2), ("bar", 6, 0), [mkwait(vm="tab")]), (("bar", 6, 1), 35, mk(f1, cfg))]
    emit_main(p, passes, 20480, 3, 1, 8, f + tail_fill(passes, cfg) + sync_fill("k", kw),
              dict(cfg, pre=pre.ins, cs_gaps=cfg["cs_gaps_kv"], extra_dma={3: [[x] for x in fa[:3]], 4: [[x] for x in fa[3:]] + [fb]},
                   wpf_start=kw + cfg["poll_k"] + 1, wgap=cfg["wgap_kv"], pub_delay=cfg["pub_delay_kv"], pubs=[("kvs", [flag_store(74)])]))
    txt += finalize(p.ins, True)
    txt += common(cfg)
    txt += "".join(SLOW)
    tab = wphi_table(WPH_ZERO)
    txt += ".p2align 6\n.type K1_tab,@object\nK1_tab:\n"
    for g in range(6):
        for l in range(64):
            txt += "  .long " + ", ".join(str(tab[4 * g + e][l]) for e in range(4)) + "\n"
    return kernel_text(name, txt, 256, 256, 102)

CFG = dict(pro_pieces=16, lb=7, quiet=2, wait_every=4, nsl=6, sb=2, depth0=3, depth=5, dgap0=2, dgap=3,
           rot_a=10, rot_b=20, stflag="sc1", kv_bar=16, kv_a1=48, kv_bq=14, stagger=1, tail_k=40, cs_gaps=7, cs_gaps_kv=4, rp_after=15,
           cap=25, dma_cost=10, dma_last=0, codepf=1, spin=20000, poll_k=4, wpoll_gq=84, wpoll_kv=56, wgap=2, wgap_kv=1,
           pub_delay=40, pub_delay_kv=30, q_end=54, rp_k=58, rp_end=68, early_pre=24, fo_step=3, p2_first=3, p2_rate=2, o_poll=10)
```

```python
import sys
from common import *
import kp
KN = "recurrent_scan__linear_kernel_hedgehog__glu_gated_geglu__prompt_kernel"
cfg = dict(kp.CFG)
for a in sys.argv[2:]:
    k, v = a.split("=", 1); cfg[k] = eval(v)
t, d = kp.gen(cfg, KN)
hdr = f"""; generated by gen/buildp.py : one persistent kernel, one workgroup per CU
; @launch grid=(256,1,1) block=(256,1,1) lds={kp.LDS_TOTAL}
.amdgcn_target "amdgcn-amd-amdhsa--gfx950"
"""
open(sys.argv[1], "w").write(hdr + t + "CODE_END:\n" + d)
```

```python
import re

import os
LENIENT = bool(os.environ.get('LENIENT'))
TRANS = ("v_exp_f32", "v_log_f32", "v_rcp_f32", "v_rsq_f32", "v_sqrt_f32", "v_sin_f32", "v_cos_f32")

def regs_of(op):
    op = op.strip()
    neg = op.startswith("-")
    if neg: op = op[1:]
    if op.startswith("abs(") : op = op[4:-1]
    if op.startswith("|"): op = op.strip("|")
    m = re.fullmatch(r"([vas])\[(\d+):(\d+)\]", op)
    if m: return [(m.group(1), i) for i in range(int(m.group(2)), int(m.group(3)) + 1)]
    m = re.fullmatch(r"([vas])(\d+)", op)
    if m: return [(m.group(1), int(m.group(2)))]
    if op in ("vcc", "exec", "m0", "scc", "vcc_lo", "vcc_hi", "exec_lo", "exec_hi"):
        return [("x", op.split("_")[0])]
    return []

class I:
    __slots__ = ("text", "tag", "kind", "mn", "dst", "src", "passes", "srcC", "srcAB", "waits", "cost", "sub")
    def __init__(self, text, tag=None):
        self.text = text; self.tag = tag; self.waits = None; self.sub = None
        self.parse()
    def parse(self):
        t = self.text.split(";")[0].strip()
        self.dst = []; self.src = []; self.passes = 0; self.srcC = []; self.srcAB = []
        if not t or t.endswith(":") or t.startswith("."):
            self.kind = "label" if t.endswith(":") else "dir"; self.mn = t; return
        parts = t.split(None, 1)
        mn = parts[0]; self.mn = mn
        rest = parts[1] if len(parts) > 1 else ""
        ops = [o.strip() for o in re.sub(r"(op_sel|op_sel_hi|neg_lo|neg_hi):\[[^\]]*\]", "", rest).split(",")] if rest else []
        clean = []
        for o in ops:
            clean.append(o.split()[0] if o else o)
        mods = rest.split()
        R = [regs_of(o) for o in clean]
        flat = lambda L: [r for x in L for r in x]
        if mn.startswith("v_mfma") or mn.startswith("v_smfmac"):
            self.kind = "mfma"
            self.passes = 8 if "32x32" in mn else (4 if "16x16" in mn else 2)
            self.dst = R[0]; self.srcAB = R[1] + R[2]; self.srcC = R[3]; self.src = self.srcAB + self.srcC
        elif mn.startswith("ds_read") or mn.startswith("ds_bpermute") or mn.startswith("ds_permute") or mn.startswith("ds_swizzle"):
            self.kind = "dsr"; self.dst = R[0]; self.src = flat(R[1:])
        elif mn.startswith("ds_write") or mn.startswith("ds_add"):
            self.kind = "dsw"; self.src = flat(R)
        elif mn.startswith("buffer_load") or mn.startswith("global_load"):
            if "lds" in mods or "_lds_" in mn:
                self.kind = "dma"; self.src = flat(R) + [("x", "m0")]
            else:
                self.kind = "vld"; self.dst = R[0]; self.src = flat(R[1:])
        elif mn.startswith("buffer_store") or mn.startswith("global_store"):
            self.kind = "vst"; self.src = flat(R)
        elif mn.startswith("buffer_atomic") or mn.startswith("global_atomic"):
            self.kind = "vst"; self.src = flat(R)
            if "sc0" in mods: self.dst = R[0]
        elif mn in ("buffer_wbl2", "buffer_inv"):
            self.kind = "vst"
        elif mn.startswith("s_load") or mn.startswith("s_buffer_load") or mn in ("s_memtime", "s_memrealtime"):
            self.kind = "smem"; self.dst = R[0]; self.src = flat(R[1:])
        elif mn == "s_waitcnt": self.kind = "wait"
        elif mn == "s_barrier": self.kind = "barrier"
        elif mn == "s_nop": self.kind = "nop"
        elif mn.startswith("s_cbranch") or mn in ("s_branch", "s_endpgm", "s_setpc_b64", "s_swappc_b64"):
            self.kind = "branch"; self.src = flat(R)
        elif mn.startswith("s_"):
            self.kind = "salu"
            if mn.startswith("s_cmp") or mn in ("s_sleep", "s_setprio", "s_bitcmp0_b32", "s_bitcmp1_b32"):
                self.src = flat(R)
            else:
                self.dst = R[0]; self.src = flat(R[1:])
                if "saveexec" in mn: self.dst = self.dst + [("x", "exec")]
        elif mn.startswith("v_"):
            base = mn.replace("_e32", "").replace("_e64", "").replace("_dpp", "").replace("_sdwa", "")
            self.kind = "trans" if base in TRANS else "valu"
            self.dst = R[0]; self.src = flat(R[1:])
            if base.startswith("v_permlane") and "swap" in base:
                self.dst = R[0] + R[1]; self.src = R[0] + R[1]
            if base in ("v_fmac_f32", "v_dot2c_f32_bf16", "v_pk_fmac_f16") or "_dpp" in mn or "row_" in rest or "quad_perm" in rest:
                self.src = self.src + R[0]
            if base.startswith("v_add_co") or base.startswith("v_addc_co") or base.startswith("v_sub_co"):
                self.dst = R[0] + R[1]; self.src = flat(R[2:])
            if base == "v_cndmask_b32" and len(R) == 3: self.src = self.src + [("x", "vcc")]
        else:
            raise ValueError("unknown instr: " + self.text)

class Prog:
    def __init__(self):
        self.ins = []
    def __call__(self, text, tag=None):
        for line in text.split("\n"):
            if line.strip():
                self.ins.append(I(line.strip(), tag))
        return self
    def add(self, i): self.ins.append(i)
    def wait(self, vm=None, lgkm=None):
        self.ins.append(mkwait(vm, lgkm))
    def label(self, name): self.ins.append(I(name + ":"))

def mkwait(vm=None, lgkm=None):
    i = I("s_waitcnt vmcnt(0)"); i.waits = (vm, lgkm); return i

def resolve_waits(ins):
    out = []
    vmq = []; lgq = []
    vm_done = 0; lg_done = 0
    smem_out = False
    waited = set()
    for i in ins:
        if i.waits is not None:
            vm, lg = i.waits
            for w in (vm, lg):
                if w is not None and not isinstance(w, int):
                    for t in (w if isinstance(w, list) else [w]): waited.add(t)
            parts = []
            if vm is not None:
                if vm == 0 and isinstance(vm, int): need = len(vmq)
                else:
                    tags = vm if isinstance(vm, list) else [vm]
                    need = 0
                    for t in tags:
                        idx = [k for k, x in enumerate(vmq) if x == t]
                        if not idx and LENIENT: continue
                        assert idx, f"vm tag {t} not issued before its wait"
                        need = max(need, idx[-1] + 1)
                if need > vm_done:
                    n = len(vmq) - need
                    n = min(n, 63)
                    parts.append(f"vmcnt({n})"); vm_done = len(vmq) - n
            if lg is not None:
                if lg == 0 and isinstance(lg, int): need = len(lgq)
                else:
                    tags = lg if isinstance(lg, list) else [lg]
                    need = 0
                    for t in tags:
                        idx = [k for k, x in enumerate(lgq) if x == t]
                        assert idx, f"lgkm tag {t} not issued before its wait"
                        need = max(need, idx[-1] + 1)
                if need > lg_done:
                    n = len(lgq) - need
                    if smem_out: n = 0
                    n = min(n, 15)
                    parts.append(f"lgkmcnt({n})"); lg_done = len(lgq) - n
                    if n == 0: smem_out = False
            if parts:
                out.append(I("s_waitcnt " + " ".join(parts)))
            continue
        assert i.tag is None or i.tag not in waited, f"op tagged {i.tag} issued after a wait on that tag: {i.text}"
        if i.kind in ("vld", "vst", "dma"): vmq.append(i.tag)
        elif i.kind in ("dsr", "dsw"): lgq.append(i.tag)
        elif i.kind == "smem": lgq.append(i.tag); smem_out = True
        elif i.kind == "wait":
            m = re.search(r"vmcnt\((\d+)\)", i.text)
            if m: vm_done = max(vm_done, len(vmq) - int(m.group(1)))
            m = re.search(r"lgkmcnt\((\d+)\)", i.text)
            if m:
                if not smem_out or int(m.group(1)) == 0:
                    lg_done = max(lg_done, len(lgq) - int(m.group(1)))
                if int(m.group(1)) == 0: smem_out = False
        out.append(i)
    return out

def states(i):
    if i.kind in ("label", "dir") or i.text.startswith(";"): return 0
    if i.kind == "nop": return int(i.text.split()[1], 0) + 1
    return 1

def need_states(p, c):
    ov = lambda a, b: bool(set(a) & set(b))
    n = 0
    pv = p.kind in ("valu", "trans")
    cv = c.kind in ("valu", "trans")
    if pv:
        vd = [r for r in p.dst if r[0] in "va"]
        sd = [r for r in p.dst if r[0] in "sx"]
        if c.kind == "mfma" and ov(vd, c.src): n = max(n, 2)
        if p.kind == "trans" and c.kind == "valu" and ov(vd, c.src): n = max(n, 1)
        if cv and ("permlane" in c.mn or "dpp" in c.mn or "row_" in c.text or "quad_perm" in c.text) and ov(vd, c.src): n = max(n, 2)
        if cv and ("readlane" in c.mn or "readfirstlane" in c.mn) and ov(vd, c.src): n = max(n, 1)
        if cv and ov(sd, c.src): n = max(n, 4 if ("readlane" in c.mn or "writelane" in c.mn) else 2)
        if c.kind in ("vld", "vst", "dma") and ov(sd, c.src): n = max(n, 5)
        if c.kind in ("salu", "branch", "smem") and ov(sd, c.src): n = max(n, 2)
        if p.mn.startswith("v_dot") and (ov(vd, c.src) or ov(vd, c.dst)):
            same = c.mn == p.mn and ov(vd, c.dst) and not ov(vd, [r for r in c.src if r not in c.dst])
            if not same: n = max(n, 3)
        if ("sdwa" in p.mn or ("op_sel" in p.text and not p.mn.startswith("v_pk_"))) and cv and ov(vd, c.src): n = max(n, 1)
        if ("x", "vcc") in p.dst and c.kind == "branch" and "vcc" in c.mn: n = max(n, 5)
    if p.kind == "mfma":
        big = {8: 12, 4: 8, 2: 5}[p.passes]
        if c.kind == "mfma":
            if ov(p.dst, c.srcAB): n = max(n, big)
            if ov(p.dst, c.srcC):
                if not (p.dst == c.srcC and p.mn == c.mn): n = max(n, {8: 10, 4: 6, 2: 4}[p.passes])
                elif p.passes == 2: n = max(n, 2)
            if ov(p.dst, c.dst) and p.passes != c.passes: n = max(n, big)
        elif cv:
            if ov(p.dst, c.src) or ov(p.dst, c.dst): n = max(n, big)
            if ov(p.srcC, c.dst): n = max(n, {8: 7, 4: 3, 2: 1}[p.passes])
        elif c.kind in ("vld", "vst", "dma", "dsr", "dsw"):
            if ov(p.dst, c.src) or ov(p.dst, c.dst): n = max(n, big)
            if ov(p.srcC, c.dst): n = max(n, {8: 7, 4: 3, 2: 1}[p.passes])
    if p.kind == "vst" and ("x4" in p.mn or "x3" in p.mn):
        if ov([r for r in p.src if r[0] in "va"], c.dst): n = max(n, 2)
    if p.kind == "salu" and ("x", "m0") in p.dst and c.kind == "dma": n = max(n, 1)
    return n

def fix_hazards(ins, verbose=False):
    out = []
    nn = 0
    for c in ins:
        if c.kind in ("label", "dir"):
            out.append(c); continue
        need = 0; dist = 0
        for p in reversed(out):
            if dist >= 20: break
            r = need_states(p, c) - dist
            if r > need: need = r
            dist += states(p)
        while need > 0:
            k = min(need, 16)
            out.append(I(f"s_nop {k-1}")); need -= k; nn += 1
        out.append(c)
    if verbose: print("nops inserted:", nn)
    return out

def finalize(ins, verbose=False):
    ins = resolve_waits(ins)
    ins = fix_hazards(ins, verbose)
    return "\n".join(("" if i.kind == "label" else "    ") + i.text for i in ins) + "\n"

def vr(b, n=1, f="v"):
    return f"{f}{b}" if n == 1 else f"{f}[{b}:{b+n-1}]"
def ar(b, n=1): return vr(b, n, "a")
def sr(b, n=1): return vr(b, n, "s")

def ghost(kind, tag):
    i = I("s_nop 0", tag=tag); i.kind = kind; i.text = "; (outstanding)"; return i
```

```python
from asmlib import *
from layout import *
import struct
def f2u(x): return struct.unpack("<I", struct.pack("<f", x))[0]
def fx(x): return "0x%08x" % f2u(x)
LOG2E = 1.4426950408889634

def srd(p, d, lo, size, add=0):
    if add > 0:
        p(f"s_add_u32 s{d}, s{lo}, {add}\ns_addc_u32 s{d+1}, s{lo+1}, 0")
    elif add < 0:
        p(f"s_sub_u32 s{d}, s{lo}, {-add}\ns_subb_u32 s{d+1}, s{lo+1}, 0")
    else:
        p(f"s_mov_b32 s{d}, s{lo}\ns_mov_b32 s{d+1}, s{lo+1}")
    p(f"s_mov_b32 s{d+2}, {size - add}\ns_mov_b32 s{d+3}, 0x20000")

def kernel_text(name, body, vgpr, agpr, sgpr=100):
    acc = (vgpr + 3) // 4 * 4
    nfv = acc + agpr if agpr else vgpr
    head = f".text\n.globl {name}\n.p2align 8\n.type {name},@function\n{name}:\n"
    desc = f""".section .rodata,"a"
.p2align 6
.amdhsa_kernel {name}
  .amdhsa_next_free_vgpr {nfv}
  .amdhsa_next_free_sgpr {sgpr}
  .amdhsa_accum_offset {acc}
  .amdhsa_group_segment_fixed_size 0
  .amdhsa_kernarg_size 88
  .amdhsa_user_sgpr_count 2
  .amdhsa_user_sgpr_kernarg_segment_ptr 1
  .amdhsa_system_sgpr_workgroup_id_x 1
  .amdhsa_float_denorm_mode_32 3
.end_amdhsa_kernel
"""
    return head + body, desc

def swap2(c): return ((c & 1) << 1) | (c >> 1)

def wphi_table(zero_off):
    tab = []
    for P in range(2):
        for s in range(3):
            for tau in range(2):
                for i in range(2):
                    row = []
                    for l in range(64):
                        G = l >> 4; r = (l & 15) >> 2; c = l & 3
                        hhk = G >> 1; q = 4 * (G & 1) + c
                        hd = q & 1; rho = q >> 1
                        f0 = 16 * tau + 4 * rho
                        head = 2 * P + hd
                        col = 16 * (2 * P + s) + 8 * hhk + 4 * i + r
                        if col // 20 == head and f0 < 20:
                            row.append(head * 800 + (col % 20) * 40 + f0 * 2)
                        else:
                            row.append(zero_off)
                    tab.append(row)
    return tab

def softmax_pair(P, EP, OUT, T):
    o = []
    mx, mn, sp, sn, sp2, sn2 = T
    o.append(f"v_max3_f32 v{mx}, v{P[0]}, v{P[1]}, v{P[2]}")
    o.append(f"v_min3_f32 v{mn}, v{P[0]}, v{P[1]}, v{P[2]}")
    for i in range(3, 19, 2):
        o.append(f"v_max3_f32 v{mx}, v{mx}, v{P[i]}, v{P[i+1]}")
        o.append(f"v_min3_f32 v{mn}, v{mn}, v{P[i]}, v{P[i+1]}")
    o.append(f"v_max_f32 v{mx}, v{mx}, v{P[19]}")
    o.append(f"v_min_f32 v{mn}, v{mn}, v{P[19]}")
    for i in range(20):
        o.append(f"v_sub_f32 v{EP[i]}, v{P[i]}, v{mx}")
        o.append(f"v_sub_f32 v{P[i]}, v{mn}, v{P[i]}")
        o.append(f"v_exp_f32 v{EP[i]}, v{EP[i]}")
        o.append(f"v_exp_f32 v{P[i]}, v{P[i]}")
        if i == 2:
            o.append(f"v_add_f32 v{sp}, v{EP[0]}, v{EP[1]}")
            o.append(f"v_add_f32 v{sn}, v{P[0]}, v{P[1]}")
        elif i > 2:
            o.append(f"v_add_f32 v{sp}, v{sp}, v{EP[i-1]}")
            o.append(f"v_add_f32 v{sn}, v{sn}, v{P[i-1]}")
    o.append(f"v_add_f32 v{sp}, v{sp}, v{EP[19]}")
    o.append(f"v_add_f32 v{sn}, v{sn}, v{P[19]}")
    o.append(f"v_rcp_f32 v{sp}, v{sp}")
    o.append(f"v_rcp_f32 v{sn}, v{sn}")
    allv = [(EP[i], sp) for i in range(20)] + [(P[i], sn) for i in range(20)]
    for j in range(20):
        a, sa = allv[2 * j]; b, sb = allv[2 * j + 1]
        o.append(f"v_mul_f32 v{a}, v{a}, v{sa}")
        o.append(f"v_mul_f32 v{b}, v{b}, v{sb}")
        o.append(f"v_cvt_pk_bf16_f32 v{OUT + j}, v{a}, v{b}")
    return o

S_STAMP = 80
import os
def stamp(k, cyc=False):
    if os.environ.get("CYC"): cyc = not cyc
    return I(f"{'s_memtime' if cyc else 's_memrealtime'} s[{S_STAMP+2*k}:{S_STAMP+2*k+1}]")
def stamp_flush(p, kern, srdws, swave, n=10):
    p("s_waitcnt lgkmcnt(0)")
    p(f"s_lshl_b32 s78, s2, 2\ns_add_u32 s78, s78, s{swave}\ns_lshl_b32 s78, s78, 7\ns_add_u32 s78, s78, {STAMP + kern*256*4*128}")
    p("v_mov_b32 v0, 0")
    for k in range(n):
        p(f"v_mov_b32 v1, s{S_STAMP+2*k}\nbuffer_store_dword v1, v0, s[{srdws}:{srdws+3}], s78 offen offset:{4*k}\ns_nop 1")

def softmax_pair_pk(P, EP, OUT, T):
    o = []
    mx, mn = T, T + 1
    o.append(f"v_max3_f32 v{mx}, v{P}, v{P+1}, v{P+2}")
    o.append(f"v_min3_f32 v{mn}, v{P}, v{P+1}, v{P+2}")
    for i in range(3, 19, 2):
        o.append(f"v_max3_f32 v{mx}, v{mx}, v{P+i}, v{P+i+1}")
        o.append(f"v_min3_f32 v{mn}, v{mn}, v{P+i}, v{P+i+1}")
    o.append(f"v_max_f32 v{mx}, v{mx}, v{P+19}")
    o.append(f"v_min_f32 v{mn}, v{mn}, v{P+19}")
    pr = lambda b: f"v[{b}:{b+1}]"
    for i in range(0, 20, 2):
        o.append(f"v_pk_add_f32 {pr(EP+i)}, {pr(P+i)}, {pr(T)} op_sel_hi:[1,0] neg_lo:[0,1] neg_hi:[0,1]")
        o.append(f"v_pk_add_f32 {pr(P+i)}, {pr(T)}, {pr(P+i)} op_sel:[1,0] neg_lo:[0,1] neg_hi:[0,1]")
        for r in (EP + i, EP + i + 1, P + i, P + i + 1): o.append(f"v_exp_f32 v{r}, v{r}")
        if i == 4:
            o.append(f"v_pk_add_f32 {pr(T+2)}, {pr(EP)}, {pr(EP+2)}")
            o.append(f"v_pk_add_f32 {pr(T+4)}, {pr(P)}, {pr(P+2)}")
        elif i > 4:
            o.append(f"v_pk_add_f32 {pr(T+2)}, {pr(T+2)}, {pr(EP+i-2)}")
            o.append(f"v_pk_add_f32 {pr(T+4)}, {pr(T+4)}, {pr(P+i-2)}")
    o.append(f"v_pk_add_f32 {pr(T+2)}, {pr(T+2)}, {pr(EP+18)}")
    o.append(f"v_pk_add_f32 {pr(T+4)}, {pr(T+4)}, {pr(P+18)}")
    o.append(f"v_add_f32 v{T+2}, v{T+2}, v{T+3}")
    o.append(f"v_add_f32 v{T+4}, v{T+4}, v{T+5}")
    o.append(f"v_rcp_f32 v{T+2}, v{T+2}")
    o.append(f"v_rcp_f32 v{T+4}, v{T+4}")
    for j in range(20):
        b, s_ = (EP + 2 * j, T + 2) if j < 10 else (P + 2 * (j - 10), T + 4)
        o.append(f"v_pk_mul_f32 {pr(b)}, {pr(b)}, {pr(s_)} op_sel_hi:[1,0]")
    for j in range(20):
        b = EP + 2 * j if j < 10 else P + 2 * (j - 10)
        o.append(f"v_cvt_pk_bf16_f32 v{OUT[j] if isinstance(OUT, list) else OUT+j}, v{b}, v{b+1}")
    return o
```

```python
from common import *

S_G, S_U, S_QA, S_QB, S_WS, S_X = 4, 8, 12, 16, 20, 24
S_W, S_RB, S_TG, S_ROT, S_GP = 40, 41, 42, 43, 44
S_X2 = 45
S_W2 = 45
S_SO, S_BEG, S_END = 46, 50, 54
S_LW, S_LX = 58, 59
S_ST = 60
S_LW4 = 66
S_T = 70
S_GRP = 3
S_TAG, S_SPIN = 38, 39
S_WY, S_WB = 100, 101
F_E = 0; F_S = 1024; F_HE = 2048; F_HL = F_HE + 65536; F_O = F_HL + 65536; F_Q = F_O + 65536; F_KV = F_Q + 8192; F_ST = F_KV + 16384; F_W = F_ST + 16384
S_WO, S_FS = 0, 1
S_RP = 96
A_PW = 232
V_F0, V_TAG, V_PF, V_PA, V_L16B = 144, 145, 146, 158, 159
CT = 152576; ZR = CT + 6144; OW = CT + 8192; KVL = 147456; FT = 122880; FT_S = 176
WST = {12: 102400, 13: 122880, 14: 0, 15: 20480, 16: 40960, 17: 61440, 18: 81920}
WSLOT = [160, 180, 200] + [20 * i for i in range(8)] + [220]
ACCA, ACCB, FR = 0, 80, 160
V_XR, V_SEL, V_MEAN, V_CSW, V_CSR, V_S1, V_S2 = 144, 148, 152, 156, 157, 158, 159
V_DG, V_DQ, V_DX = 200, 202, 204
V_D5 = [202, 203, 206, 207, 208]
V_L16 = 209
V_R5 = 210
V_C0, V_C1, V_IR2, V_R, V_RL = 216, 217, 218, 219, 220
V_ONE = 152
V_T = 224
A_CS = 236
XRING_GQ = 98304; XRING_KV = 61440
PHI = 61440; PHI_S = 336
VL = PHI + 128 * PHI_S; VL_S = 176
WPH = VL + 128 * VL_S
WPH_ZERO = 4096
CSX = 147456
LDS_TOTAL = 163840

import re
VOP3 = ("v_fma_f32", "v_cvt_pk", "v_max3", "v_min3", "v_lshl_add", "v_add3", "v_bfe", "v_accvgpr", "v_mul_lo", "v_perm_b32", "v_pk_")
def cost(i, cfg=None):
    if i.waits is not None or i.kind == "wait": return 1.5
    if i.kind == "trans": return 8
    if i.kind == "mfma": return -24 if i.passes == 8 else -8
    if i.kind in ("dma", "vld", "vst"): return DMA_COST[0]
    if i.kind in ("dsr",): return 5
    if i.kind == "dsw": return 8
    if i.kind == "barrier": return 20
    if i.kind == "label": return 0
    if i.mn.startswith(VOP3): return 5
    if re.search(r"0x[0-9a-f]{3,}|[ ,]\d{3,}", i.text): return 5
    return 4
DMA_COST = [10]

def st(p, cfg, name):
    sp = cfg.get("sp", []) if cfg.get("stamps") else []
    if name in sp: p.add(stamp(2 + sp.index(name)))
    if name + "!" in sp: p(f"s_mov_b32 s{S_STAMP + 2*(2 + sp.index(name + '!'))}, s{S_SPIN}")

class Pass:
    def __init__(self, kind, acc, srdA, srdB, vd, step, rd):
        self.kind = kind; self.nT = 5 if kind == "kv" else 4
        self.acc = acc; self.srdA = srdA; self.srdB = srdB; self.vd = vd; self.step = step; self.rd = rd

def mk(lst, cfg):
    out = []
    for x in lst:
        if isinstance(x, I): out.append(x)
        else:
            for l in x.split("\n"): out.append(I(l.replace("STFLAG", cfg["stflag"]).rstrip()))
    return out

def cs_publish(nT, pi):
    o = []
    for t in range(nT): o.append(f"v_accvgpr_read_b32 v{V_T+24+t}, a{A_CS+4*t}")
    for t in range(nT):
        r = V_T + 24 + t
        o.append(f"v_and_b32 v{V_T+30}, 0xffff0000, v{r}\nv_sub_f32 v{r}, v{r}, v{V_T+30}\nv_cvt_pk_bf16_f32 v{r}, v{V_T+30}, v{r}")
        o.append(I(f"ds_write_b32 v{V_CSW}, v{r} offset:{1024*t}", tag=("csw", pi)))
    return o

def cs_read(tiles, pi):
    return [I(f"ds_read_b128 v[{V_T+4*t}:{V_T+4*t+3}], v{V_CSR} offset:{1024*t}", tag=("cs", pi, t)) for t in tiles]

def cs_apply(tiles, acc, pi):
    o = [mkwait(lgkm=[("cs", pi, t) for t in tiles])]
    for t in tiles:
        a = acc + 16 * t
        o.append(f"v_mfma_f32_32x32x16_bf16 v[{a}:{a+15}], v[{V_T+4*t}:{V_T+4*t+3}], v[{V_MEAN}:{V_MEAN+3}], v[{a}:{a+15}]")
    return o

def stats_final():
    c0 = -2.0 * LOG2E * 0.7978845608028654
    o = [f"v_and_b32 v{V_S2}, 0xffff0000, v{V_S1}", f"v_and_b32 v{V_MEAN}, 0xffff, v{V_S1}", f"v_rcp_f32 v{V_R}, v{V_S2}",
         f"v_lshl_or_b32 v{V_MEAN}, v{V_S1}, 16, v{V_MEAN}", f"v_mul_f32 v{V_IR2}, v{V_S2}, v{V_S2}"]
    o += [f"v_mov_b32 v{V_MEAN+k}, v{V_MEAN}" for k in (1, 2, 3)]
    o.append(f"v_mul_f32 v{V_C0}, {fx(c0)}, v{V_R}\nv_mul_f32 v{V_RL}, {fx(LOG2E)}, v{V_R}\nv_mul_f32 v{V_C1}, v{V_R}, v{V_R}")
    o.append(f"v_mul_f32 v{V_C1}, {fx(0.044715)}, v{V_C1}\nv_mul_f32 v{V_C1}, v{V_C1}, v{V_C0}")
    return o

def emit_main(p, passes, slot_stride, nsl, sb, NF, fillers, cfg):
    NS = 10 * len(passes); N = 4 * NS
    LB = cfg["lb"]; Q = cfg["quiet"]; WE = cfg["wait_every"]; XS = 3
    if LB + Q > NF: LB = NF - Q
    per_set = 65536 // slot_stride
    slotmap = list(cfg.get("slot_head", []))
    while len(slotmap) < NS: slotmap.append((slotmap[-1] + 1) % nsl if slotmap else 0)
    prevuser = {s: max([u for u in range(s) if slotmap[u] == slotmap[s]], default=None) for s in range(NS)}
    groups = []; s = 0
    while s < NS:
        k = 1 if s < 10 else sb
        groups.append(list(range(s, min(NS, s + k)))); s += k
    mf = []; gstart = []; marks = {}
    for gi, grp in enumerate(groups):
        gstart.append(len(mf))
        nT = passes[grp[0] // 10].nT
        ks = [4 * s + j for s in grp for j in range(4)]
        if grp[-1] % 10 == 9:
            ks = [n for n in ks if n % 4 == 0] + [n for n in ks if n % 4]
        if gi == len(groups) - 1 and cfg["stagger"]:
            k0 = [n for n in ks if n % 4 == 0]; k1 = [n for n in ks if n % 4]
            mf += [(n, t) for n in k0 for t in range(nT)]
            marks[("csdone", grp[0] // 10)] = len(mf)
            mf += [(n, t) for n in k1 for t in (0, 2)]
            marks["pair0done"] = len(mf)
            mf += [(n, t) for n in k1 for t in (1, 3)]
        else:
            for n in ks:
                mf += [(n, t) for t in range(nT)]
                if grp[-1] % 10 == 9 and n == 4 * grp[-1]: marks[("csdone", grp[0] // 10)] = len(mf)
        if grp[-1] % 10 == 9: marks[("passend", grp[0] // 10)] = len(mf)
    M = len(mf); gstart.append(M)
    kstart = {}
    for j, (n, t) in enumerate(mf): kstart.setdefault(n, j)
    def rd(j, i):
        n, t = mf[j]
        s = n // 4; kk = n % 4; P = passes[s // 10]; slot = slotmap[s]
        dst = FR + 4 * (j % NF) + 2 * i
        st = slot // per_set; off = (slot % per_set) * slot_stride
        if P.kind == "kv":
            return I(f"ds_read_b64_tr_b16 v[{dst}:{dst+1}], v{P.rd+kk} offset:{off + i*1280 + t*64}", tag=("fr", j))
        return I(f"ds_read_b64_tr_b16 v[{dst}:{dst+1}], v{P.rd + 8*st + 2*kk + (t & 1)} offset:{off + (t>>1)*2048 + i*512}", tag=("fr", j))
    def dma_pieces(s):
        pi = s // 10; P = passes[pi]; slot = slotmap[s]; tag = ("st", s)
        so = S_SO + pi
        w = []
        if P.kind == "kv":
            for i in range(5):
                pc = []
                if i == 0: pc.append(I(f"s_add_u32 m0, s{S_LW}, {slot*slot_stride}"))
                if i == 4: pc.append(I(f"s_add_u32 m0, s{S_LW}, {slot*slot_stride + 4096}"))
                pc.append(I(f"buffer_load_dwordx4 v{P.vd[i]}, s[{P.srdA}:{P.srdA+3}], s{so} offen offset:{1024*(i&3)} lds", tag=tag))
                w.append(pc)
        else:
            for i in range(4):
                pc = []
                if i == 0: pc.append(I(f"s_add_u32 m0, s{S_LW4}, {slot*slot_stride}"))
                sr_ = P.srdA if i < 2 else P.srdB
                pc.append(I(f"buffer_load_dwordx4 v{P.vd+(i&1)}, s[{sr_}:{sr_+3}], s{so} offen offset:{1024*i} lds", tag=tag))
                w.append(pc)
        if s % 10 < 9:
            w[-1] += [I(f"s_add_u32 s{so}, s{so}, {P.step}"), I(f"s_cmp_eq_u32 s{so}, s{S_END+pi}"), I(f"s_cselect_b32 s{so}, s{S_BEG+pi}, s{so}")]
        if pi == 0:
            for i in range(4):
                pc = []
                if i == 0: pc.append(I(f"s_add_u32 m0, s{S_LX}, {(s % XS)*16384}"))
                pc.append(I(f"buffer_load_dwordx4 v{V_DX+(i&1)}, s[{S_X}:{S_X+3}], s{S_SO+3 if i < 2 else S_X2} offen offset:{1024*i} lds", tag=tag))
                if i == 3 and s < 9:
                    pc += [I(f"s_add_u32 s{S_SO+3}, s{S_SO+3}, 128"), I(f"s_cmp_eq_u32 s{S_SO+3}, s{S_END+3}"), I(f"s_cselect_b32 s{S_SO+3}, s{S_BEG+3}, s{S_SO+3}"),
                           I(f"s_add_u32 s{S_X2}, s{S_SO+3}, {16*1280-2048}")]
                w.append(pc)
        return w
    gaps = [dict(pre=[], post=[], lock=False, cs=(mf[j][0] % 4 == 0)) for j in range(M)]
    pro_reads = []
    def put(g, i):
        if g < 0: pro_reads.append(i)
        else: gaps[g]["post"].append(i)
    bargap = {}; freed_at = {}
    XT = passes[1].acc
    for gi, grp in enumerate(groups):
        j0 = gstart[gi]; j1 = gstart[gi + 1]
        b = j0 - LB
        if gi > 0:
            gaps[b]["post"] += [mkwait(vm=("st", grp[-1]), lgkm=0), I("s_barrier")]
            gaps[b]["lock"] = True
            bargap[grp[0]] = b
            for s in groups[gi - 1]: freed_at[s] = b
        G = j1 - j0
        span = G - Q if gi + 1 < len(groups) else G
        if grp[0] < 10:
            s = grp[0]
            for kk in range(4):
                put(b + 1 + 2 * kk, I(f"ds_read_b128 a[{16*s+4*kk}:{16*s+4*kk+3}], v{V_XR+kk} offset:{(s % XS)*16384}", tag=("xa", 4 * s + kk)))
        for k in range(2 * G):
            j = j0 + k // 2
            g = max(b + 1 + (k * span) // (2 * G), j - NF + 1)
            assert g <= j - 2
            put(g, rd(j, k & 1))
    lastp = len(passes) - 1
    eb = marks[("csdone", lastp)] + cfg["cs_gaps"]
    gaps[eb]["post"] = [mkwait(lgkm=("csw", lastp)), I("s_barrier")] + gaps[eb]["post"]; gaps[eb]["lock"] = True
    marks[("csbar", lastp)] = eb
    for pi in range(lastp): marks[("csbar", pi)] = bargap[10 * (pi + 1)]
    for j in range(0, M, WE):
        tags = [("fr", min(M - 1, j + WE - 1))]
        for jj in range(j, min(M, j + WE)):
            if mf[jj][0] < 40: tags.append(("xa", mf[jj][0]))
        gaps[j]["pre"].append(mkwait(lgkm=tags))
    queue = [(s, pc) for s in range(NS) for pc in dma_pieces(s) + cfg.get("extra_dma", {}).get(s, [])]
    qi = 0
    st(p, cfg, "typ")
    while qi < len(queue) and qi < cfg["pro_pieces"] * len(dma_pieces(0)) // 8:
        for i in queue[qi][1]: p.add(i)
        qi += 1
        if qi == len(dma_pieces(0)):
            st(p, cfg, "iss8")
            for i in cfg.get("pre", []): p.add(i)
            st(p, cfg, "pre")
    st(p, cfg, "issued")
    p.wait(vm=("st", 0), lgkm=0)
    p("s_barrier")
    st(p, cfg, "first")
    for i in pro_reads: p.add(i)
    def gap_of(x):
        if isinstance(x, tuple):
            if x[0] == "bar": return bargap[x[1]] + x[2]
            if x[0] == "m": return marks[x[1]] + x[2]
            if x[0] == "end": return M + x[1]
        return kstart[x]
    nextg = 0
    gstage = []
    for gi, grp in enumerate(groups): gstage += [grp[0] + (len(grp) * k) // (gstart[gi+1] - gstart[gi]) for k in range(gstart[gi+1] - gstart[gi])]
    for g in range(M):
        if qi >= len(queue): break
        s, pc = queue[qi]
        cur = gstage[g]
        if g < nextg or gaps[g]["lock"]: continue
        if prevuser[s] is not None and g <= freed_at.get(prevuser[s], 10**9): continue
        if prevuser[s] is None and slotmap[s] >= 4 and "slot_free" in cfg and g <= bargap[cfg["slot_free"]]: continue
        if XS <= s < 10 and g <= freed_at.get(s - XS, 10**9): continue
        if s > cur + (cfg["depth0"] if cur < 8 else cfg["depth"]): continue
        if any(isinstance(i.tag, tuple) and i.tag[0] == "rp" for i in pc) and g <= bargap[10]: continue
        if any(isinstance(i.tag, tuple) and i.tag[0] == "wl" for i in pc) and g < gap_of(cfg["wl_start"]): continue
        k = 0
        while pc[k].kind == "salu": k += 1
        gaps[g]["pre"] = pc[:k] + gaps[g]["pre"]; pc = pc[k:]
        gaps[g]["post"].insert(0, pc[0])
        gaps[g]["dma"] = True
        dg = cfg["dgap0"] if cur < 10 else cfg["dgap"]
        if isinstance(pc[0].tag, tuple) and pc[0].tag[0] in ("rp", "wl"): dg = 2
        if cur < cfg["fast_until"]: dg = 1
        if len(pc) > 1: gaps[g + 1 if not gaps[g + 1]["lock"] and dg > 1 else g]["post"] += pc[1:]
        marks[("dmaend", s)] = g + 1
        qi += 1
        nextg = g + dg
    assert qi == len(queue), (qi, len(queue))
    DMA_COST[0] = cfg["dma_cost"]
    g = gap_of(cfg["wpf_start"])
    lastuse = {}
    for j, (n, t) in enumerate(mf):
        if n // 40 == lastp: lastuse[n % 40] = j
    wleft = []
    for slot in range(11):
        for pc in wload(slot):
            ld = [i for i in pc if i.kind == "vld"][0]
            a0 = ld.dst[0][1]
            lo = lastuse[a0 // 4] + 1 if a0 < 160 else 0
            while g < M and (g < lo or gaps[g]["lock"] or gaps[g].get("dma")): g += 1
            if g >= M or wleft: wleft += pc; continue
            gaps[g]["post"] = pc + gaps[g]["post"]; gaps[g]["dma"] = True
            g += cfg["wgap"]
    for (k0, k1, items) in sorted(fillers, key=lambda f: len(f[2]) > 60):
        g0, g1 = gap_of(k0), gap_of(k1)
        while gaps[g1 - 1]["lock"]: g1 -= 1
        def load(g):
            nxt = gaps[g + 1]["pre"] if g + 1 < M else []
            return sum(cost(i) for i in gaps[g]["post"]) + sum(cost(i) for i in nxt) - (8 if gaps[g]["cs"] else 0)
        def attempt(cap, commit):
            k = 0
            for g in range(g0, g1):
                if gaps[g]["lock"]: continue
                u = load(g)
                while k < len(items) and (u + cost(items[k]) <= cap or items[k].kind == "mfma"):
                    if items[k].kind == "mfma": u = max(u, cap)
                    u += cost(items[k])
                    if commit: gaps[g]["post"].append(items[k])
                    k += 1
            return k == len(items)
        cap = cfg["cap"]
        while not attempt(cap, False): cap += 1
        attempt(cap, True)
        if cfg.get("verbose"): print("filler", k0, k1, len(items), "cap", cap)
    for (tag, items) in cfg.get("pubs", []):
        last = max([g for g in range(M) for i in gaps[g]["post"] if i.tag == tag], default=None)
        g = last + (cfg["pub0"] if tag == "rs" else cfg["pub_delay"])
        while g < M and gaps[g]["lock"]: g += 1
        assert g < M, tag
        gaps[g]["post"] += [mkwait(vm=tag)] + items
        if cfg.get("pub_before_poll"):
            first = min(k for k in range(M) for i in gaps[k]["post"] if i.mn == "v_pk_blob" and "P_q" in i.text)
            assert g < first, ("publication after the first poll", tag, g, first)
    for j, g in enumerate(gaps):
        n, t = mf[j]; P = passes[n // 40]
        if j == kstart[n]:
            st(p, cfg, f"k{n}"); st(p, cfg, f"l{n - 40 * lastp}")
        a = P.acc + 16 * t; fr = FR + 4 * (j % NF); x = 4 * (n % 40)
        c = "0" if n % 40 == 0 else f"v[{a}:{a+15}]"
        for i in g["pre"]: p.add(i)
        p(f"v_mfma_f32_32x32x16_bf16 v[{a}:{a+15}], v[{fr}:{fr+3}], a[{x}:{x+3}], {c}")
        post = list(g["post"])
        if cfg["dma_last"] and g.get("dma"):
            d = post[0]; rest = post[1:]
            sal = [i for i in rest if i.kind == "salu"]; oth = [i for i in rest if i.kind != "salu"]
            if not any(i.kind in ("dma", "vld", "vst") or i.waits is not None and i.waits[0] is not None for i in oth) and not g.get("salu_before"):
                post = oth + [d] + sal
        if cfg.get("nodma") and n >= 40: post = [I("s_nop 0") if i.kind == "dma" else i for i in post]
        if cfg.get("notrans") and n >= 40: post = [I(i.text.replace("v_exp_f32", "v_mov_b32").replace("v_rcp_f32", "v_mov_b32")) if i.kind == "trans" else i for i in post]
        if cfg.get("novalu") and n >= 40: post = [i for i in post if i.kind not in ("valu", "trans")]
        if cfg.get("nost") and n >= 40: post = [i for i in post if i.kind != "vst"]
        if cfg.get("nobar") and n >= 40: post = [i for i in post if i.kind != "barrier"]
        if n % 4 == 0:
            d = A_CS + 4 * t
            cm = I(f"v_mfma_f32_16x16x32_bf16 a[{d}:{d+3}], v[{V_SEL}:{V_SEL+3}], v[{fr}:{fr+3}], " + ("0" if n % 40 == 0 else f"a[{d}:{d+3}]"))
            k = len(post); u = sum(cost(i) for i in gaps[j + 1]["pre"]) if j + 1 < M else 0
            tot = sum(cost(i) for i in post)
            while k > 0 and not g["lock"] and tot > cfg["cap"] and u + cost(post[k - 1]) <= 9 and post[k - 1].kind != "mfma":
                k -= 1; u += cost(post[k]); tot -= cost(post[k])
            post.insert(k, cm)
        for i in post: p.add(i)
    for i in wleft: p.add(i)

def wload(step):
    a = WSLOT[step % 12]; o = []
    for nt in range(5):
        pc = [I(f"buffer_load_dwordx4 a[{a+4*nt}:{a+4*nt+3}], v{V_L16 if nt < 4 else V_L16B}, s[{S_WS}:{S_WS+3}], s{S_WY} offen offset:{1024*(nt&3)} sc1", tag=("w2", step))]
        if nt == 4:
            if step == 3: pc += [I(f"s_add_u32 s{S_WY}, s{S_WY}, 5120"), I(f"s_cmp_lt_u32 s{S_W}, 3"), I(f"s_cselect_b32 s{S_WY}, s{S_WY}, {OOB}")]
            elif step == 5: pc += [I(f"s_mov_b32 s{S_WY}, s{S_WB}")]
            else: pc += [I(f"s_add_u32 s{S_WY}, s{S_WY}, 5120")]
        o.append(pc)
    return o

def wstage(step):
    base, ks = (S_WB, step - 6) if step < 14 else (S_WO, step - 14)
    o = []
    for nt in range(5):
        pc = []
        if nt == 0: pc += [I(f"s_add_u32 s{S_W2}, s{base}, {ks*5120}"), I(f"s_add_u32 m0, s{S_LW}, {WST[step]}")]
        if nt == 4: pc += [I(f"s_add_u32 m0, s{S_LW}, {WST[step]+4096}")]
        pc.append(I(f"buffer_load_dwordx4 v{V_L16 if nt < 4 else V_L16B}, s[{S_WS}:{S_WS+3}], s{S_W2} offen offset:{1024*(nt&3)} sc1 lds", tag=("wl", step)))
        o.append(pc)
    return o

def sample_check(name, n, regs):
    if n == 2: c = f"v_xor_b32 v{V_PF}, v{V_PF}, v{V_TAG}\n    v_xor_b32 v{V_PF+1}, v{V_PF+1}, v{V_TAG}\n    v_or_b32 v{V_PF}, v{V_PF}, v{V_PF+1}\n    v_cmp_ne_u32 vcc, 0, v{V_PF}"
    else: c = f"v_cmp_ne_u32 vcc, v{V_PF}, v{V_TAG}"
    blob = I(f"v_xor_b32 v{V_PF}, v{V_PF}, v{V_TAG}")
    blob.text = c + "\n    s_nop 3\n    " + ("s_cmp_eq_u32 s2, 999" if FORCE_FB[0] else "s_cmp_eq_u64 vcc, 0") + "\n" + "\n".join(f"    s_cselect_b32 s{r}, s{r}, {OOB}" for r in regs)
    blob.mn = "v_pk_samp"
    return [mkwait(vm=("poll", name)), blob]

SLOW = []
SLEEP = [4]
FORCE_FB = [0]
def flag_store(sreg, vt=V_TAG, vf=V_F0):
    return I(f"buffer_store_dword v{vt}, v{vf}, s[{S_WS}:{S_WS+3}], s{sreg} offen sc1")
def poll_load(name, sreg, n=1, regs=None):
    pf, pa, _ = regs or (V_PF, V_PA, V_TAG)
    r = f"v{pf}" if n == 1 else f"v[{pf}:{pf+1}]"
    return I(f"buffer_load_dword{'' if n == 1 else 'x2'} {r}, v{pa}, s[{S_WS}:{S_WS+3}], s{sreg} offen sc1", tag=("poll", name))
def poll_check(name, sreg, n=1, pending=(), regs=None):
    pf, pa, tg = regs or (V_PF, V_PA, V_TAG)
    c = f"v_cmp_ne_u32 vcc, v{pf + n - 1}, v{tg}"
    blob = I(f"v_xor_b32 v{V_PF}, v{V_PF}, v{V_TAG}")
    blob.text = f"s_nop 0\nP_{name}_chk:\n    {c}\n    s_nop 4\n    s_cbranch_vccnz P_{name}_slow\nP_{name}_done:"
    blob.mn = "v_pk_blob"
    o = [mkwait(vm=("poll", name)), blob]
    t = f"P_{name}_slow:\n"
    if pending:
        t += "    s_waitcnt vmcnt(0)\n" + "".join("    " + flag_store(r).text + "\n" for r in pending)
    t += f"    s_cmp_eq_u32 s{S_SPIN}, 0\n    s_cbranch_scc1 P_{name}_done\n    s_sub_u32 s{S_SPIN}, s{S_SPIN}, 1\n    s_sleep {SLEEP[0]}\n"
    t += "    " + poll_load(name, sreg, n, regs).text + f"\n    s_waitcnt vmcnt(0)\n    s_branch P_{name}_chk\n"
    SLOW.append(t)
    return o

def epi_gu(acc, sst, T, halves=(0, 1), tag=None):
    o = []
    for half in halves:
        for b in range(2):
            out = T + 16 + 4 * (b & 1)
            for pr in range(2):
                el = [8 * b + 4 * pr + e for e in range(4)]
                g = [acc + 16 * half + r for r in el]; u = [acc + 32 + 16 * half + r for r in el]
                t = [T + 8 * (1 - half) * 0 + (0 if half == 0 else 4) + 8 * pr + e for e in range(4)]
                for e in range(4): o.append(f"v_mul_f32 v{t[e]}, v{g[e]}, v{g[e]}")
                for e in range(4): o.append(f"v_fma_f32 v{t[e]}, v{t[e]}, v{V_C1}, v{V_C0}")
                for e in range(4): o.append(f"v_mul_f32 v{t[e]}, v{t[e]}, v{g[e]}")
                for e in range(4):
                    o.append(f"v_exp_f32 v{t[e]}, v{t[e]}")
                    o.append(f"v_mul_f32 v{u[e]}, v{g[e]}, v{u[e]}")
                for e in range(4): o.append(f"v_fma_f32 v{t[e]}, v{t[e]}, v{V_IR2}, v{V_IR2}")
                for e in range(4): o.append(f"v_rcp_f32 v{t[e]}, v{t[e]}")
                for e in range(4): o.append(f"v_mul_f32 v{u[e]}, v{u[e]}, v{t[e]}")
                o.append(f"v_cvt_pk_bf16_f32 v{out+2*pr}, v{u[0]}, v{u[1]}")
                o.append(f"v_cvt_pk_bf16_f32 v{out+2*pr+1}, v{u[2]}, v{u[3]}")
            o.append(I(f"buffer_store_dwordx4 v[{out}:{out+3}], v{V_L16}, s[{S_WS}:{S_WS+3}], s{sst} offen offset:{(4*half+2*b)*512} sc1", tag=tag))
    return o

def epi_gu_pk(acc, sst, T, blocks, tag):
    o = []
    pr2 = lambda r: f"v[{r}:{r+1}]"
    for (half, b, pr) in blocks:
        out = T + 16 + 4 * (b & 1)
        g = acc + 16 * half + 8 * b + 4 * pr; u = g + 32; t = T + (0 if half == 0 else 4) + 8 * pr
        for e in (0, 2): o.append(f"v_pk_mul_f32 {pr2(t+e)}, {pr2(g+e)}, {pr2(g+e)}")
        for e in (0, 2): o.append(f"v_pk_fma_f32 {pr2(t+e)}, {pr2(t+e)}, {pr2(V_C0)}, {pr2(V_C0)} op_sel:[0,1,0] op_sel_hi:[1,1,0]")
        for e in (0, 2): o.append(f"v_pk_mul_f32 {pr2(t+e)}, {pr2(t+e)}, {pr2(g+e)}")
        for e in range(4): o.append(f"v_exp_f32 v{t+e}, v{t+e}")
        for e in (0, 2): o.append(f"v_pk_mul_f32 {pr2(u+e)}, {pr2(g+e)}, {pr2(u+e)}")
        for e in (0, 2): o.append(f"v_pk_fma_f32 {pr2(t+e)}, {pr2(t+e)}, {pr2(V_IR2)}, {pr2(V_IR2)} op_sel_hi:[1,0,0]")
        for e in range(4): o.append(f"v_rcp_f32 v{t+e}, v{t+e}")
        for e in (0, 2): o.append(f"v_pk_mul_f32 {pr2(u+e)}, {pr2(u+e)}, {pr2(t+e)}")
        o.append(f"v_cvt_pk_bf16_f32 v{out+2*pr}, v{u}, v{u+1}")
        o.append(f"v_cvt_pk_bf16_f32 v{out+2*pr+1}, v{u+2}, v{u+3}")
        if pr == 1: o.append(I(f"buffer_store_dwordx4 v[{out}:{out+3}], v{V_L16}, s[{S_WS}:{S_WS+3}], s{sst} offen offset:{(4*half+2*b)*512} sc1", tag=tag))
    return o

def epi_q(acc, sst, T):
    o = []
    for t in range(4):
        for b in range(2):
            out = T + 4 * ((2 * t + b) & 3)
            for e in range(8): o.append(f"v_mul_f32 v{acc+16*t+8*b+e}, v{V_RL}, v{acc+16*t+8*b+e}")
            for e in range(4): o.append(f"v_cvt_pk_bf16_f32 v{out+e}, v{acc+16*t+8*b+2*e}, v{acc+16*t+8*b+2*e+1}")
            o.append(I(f"buffer_store_dwordx4 v[{out}:{out+3}], v{V_L16}, s[{S_WS}:{S_WS+3}], s{sst + (t>>1)} offen offset:{(4*(t&1)+2*b)*512} sc1", tag="qst"))
    return o

def std_fillers(passes, epis, cfg):
    f = []
    last = len(passes) - 1
    for pi, P in enumerate(passes):
        tiles = list(range(P.nT))
        f.append((("m", ("csdone", pi), 1), ("m", ("csbar", pi), 0), mk(cs_publish(P.nT, pi), cfg)))
        if pi < last:
            f.append((("m", ("passend", pi), -2), ("m", ("passend", pi), 1), cs_read(tiles, pi)))
            f.append((("m", ("passend", pi), 3), ("m", ("passend", pi), 5), mk(cs_apply(tiles, P.acc, pi), cfg)))
            st = ("m", ("passend", pi), 7)
            for (end, nxt, items) in epis[pi]:
                f.append((st, end, mk(items, cfg))); st = nxt
        else:
            f.append((("m", ("csbar", pi), 1), ("m", ("csbar", pi), 2), cs_read(tiles, pi)))
    return f


def tail_fill(passes, cfg):
    pi = len(passes) - 1
    e0 = mk(epi_gu(ACCA, S_ST + 2, V_T, (0,)), cfg)
    return [(("m", "pair0done", 0), ("m", "pair0done", 1), mk(cs_apply([0, 2], ACCA, pi), cfg)),
            (("m", "pair0done", 3), ("end", 0), e0[:34 * cfg["tail_b"]])]

S_FHE, S_FHL, S_FO = 43, 47, 28
S_PQ, S_PKV, S_PH, S_PW = 36, 79, 51, 37
S_PAIR, S_TGO, S_RB64, S_CB = 52, 53, 54, 55
S_A, S_B, S_HS = 76, 57, 59

def sync_setup(typ, cfg):
    T = S_T
    o = [f"v_mov_b32 v{V_TAG}, s{S_TAG}", f"v_mov_b32 v{V_F0}, {OOB}", f"v_cmp_eq_u32 vcc, 0, v{V_L16}", f"v_add_u32 v{V_L16B}, 4096, v{V_L16}",
         f"v_accvgpr_read_b32 v{V_PA}, a{A_PW}", f"v_cndmask_b32 v{V_F0}, v{V_F0}, v{V_L16}, vcc", flag_store(S_FS)]
    return o

def wflag_addr(q, d, t, st_):
    q(f"v_lshrrev_b32 v{t}, 4, v{V_L16}\nv_min_u32 v{t}, 18, v{t}")
    q(f"s_mul_i32 s{st_}, s{S_W}, 6\nv_add_u32 v{d}, s{st_}, v{t}\nv_min_u32 v{d}, 21, v{d}\nv_add_u32 v{d}, 20, v{d}")
    q(f"s_lshl_b32 s{st_}, s{S_W}, 3\ns_add_u32 s{st_}, s{st_}, 36\nv_add_u32 v{t+1}, s{st_}, v{t}\nv_cmp_lt_u32 vcc, 5, v{t}\nv_cndmask_b32 v{d}, v{d}, v{t+1}, vcc")
    q(f"s_mul_i32 s{st_}, s{S_W}, 5\ns_sub_u32 s{st_}, s{st_}, 14\nv_add_u32 v{t+1}, s{st_}, v{t}\nv_cmp_lt_u32 vcc, 13, v{t}\nv_cndmask_b32 v{d}, v{d}, v{t+1}, vcc")
    q(f"v_lshlrev_b32 v{d}, 7, v{d}")
def wbases(q, cbreg):
    q(f"s_mul_i32 s{S_WO}, s{cbreg}, {74*5120}\ns_add_u32 s{S_WO}, s{S_WO}, {W2P}")
    q(f"s_mul_i32 s{S_WY}, s{S_LW}, 6\ns_add_u32 s{S_WY}, s{S_WY}, s{S_WO}\ns_add_u32 s{S_WY}, s{S_WY}, {20*5120}")
    q(f"s_lshl_b32 s{S_WB}, s{S_LW}, 3\ns_add_u32 s{S_WB}, s{S_WB}, s{S_WO}\ns_add_u32 s{S_WB}, s{S_WB}, {42*5120}")
    q(f"s_mul_i32 s{cbreg}, s{S_LW}, 5\ns_add_u32 s{S_WO}, s{S_WO}, s{cbreg}")
def kvflag_addr(d):
    return f"v_bfe_u32 v{d}, v{V_L16}, 6, 3\nv_lshlrev_b32 v{d}, 7, v{d}\nv_bfe_u32 v{V_PF+1}, v{V_L16}, 4, 2\nv_lshl_add_u32 v{d}, v{V_PF+1}, 2, v{d}"

def wpoll(typ):
    a = [poll_load("w" + typ, S_PW)]
    b = sample_check("w" + typ, 1, (S_WB, S_WY, S_WO))
    c = [f"v_lshrrev_b32 v{V_PA}, 2, v{V_L16}", f"v_min_u32 v{V_PA}, 16, v{V_PA}"]
    return a, b, c

S_KVB = 77
def common(cfg):
    p = Prog(); T = S_T
    bg = []; clock = [0.0]
    def fg(items, gap=None):
        gap = gap or cfg["bg_gap"]
        for i in mk(items, cfg):
            p.add(i)
            clock[0] += 32 if (i.kind == "mfma" and i.passes == 8) else max(cost(i), 0)
            if i.kind in ("vld", "vst", "dma"): clock[0] = min(clock[0], gap) - gap
            if bg and clock[0] >= gap:
                for x in bg.pop(0): p.add(x)
                clock[0] = 0
    def flush(tagpred):
        idx = [k for k, pc in enumerate(bg) if any(tagpred(x.tag) for x in pc)]
        if idx:
            for _ in range(idx[-1] + 1):
                for x in bg.pop(0): p.add(x)
            clock[0] = 0
    p.label("KP_join")
    mark = I("s_nop 0", tag="prejoin"); mark.kind = "vst"; p.add(mark)
    mark = I("s_nop 0", tag="prejoinl"); mark.kind = "dsw"; p.add(mark)
    st(p, cfg, "join")
    VT4, VKV, VKW, VCT = 208, 214, 213, 212
    p.wait(lgkm="prejoinl")
    a = ACCA + 16
    p(f"v_mfma_f32_32x32x16_bf16 v[{a}:{a+15}], v[{V_T+4}:{V_T+7}], v[{V_MEAN}:{V_MEAN+3}], v[{a}:{a+15}]")
    p("s_barrier")
    p(f"buffer_load_dwordx4 v[172:175], v{V_L16}, s[{S_WS}:{S_WS+3}], s{S_A} offen sc1", tag="q")
    p(f"v_add_u32 v{VCT}, {CT}, v{V_L16}")
    a = ACCA + 48
    p(f"v_mfma_f32_32x32x16_bf16 v[{a}:{a+15}], v[{V_T+12}:{V_T+15}], v[{V_MEAN}:{V_MEAN+3}], v[{a}:{a+15}]")
    for i in range(3): p(f"ds_read_b128 v[{160+4*i}:{163+4*i}], v{VCT} offset:{1024*i}", tag="ct")
    p(f"v_and_b32 v{VT4}, 0x1f0, v{V_L16}\ns_lshl_b32 s{T}, s{S_W}, 10\nv_add_u32 v{VKW}, s{T}, v{V_L16}\nv_mov_b32 v{VKV}, {OOB}\nv_cmp_gt_u32 vcc, 3360, v{VKW}")
    p(f"buffer_load_dwordx4 v[176:179], v{V_L16}, s[{S_WS}:{S_WS+3}], s{S_A} offen offset:1024 sc1", tag="q")
    p(f"v_cndmask_b32 v{VKV}, v{VKV}, v{VKW}, vcc")
    bg.append([I(f"buffer_load_dwordx4 v[180:183], v{VT4}, s[{S_WS}:{S_WS+3}], s{S_A} offen offset:2048 sc1", tag="q")])
    def kvloads(tagged):
        return [[I(f"buffer_load_dwordx4 v[{80+4*r}:{83+4*r}], v{VKV}, s[{S_WS}:{S_WS+3}], s{S_KVB} offen sc1", tag=("kv", r) if tagged else None)] +
                ([I(f"s_add_u32 s{S_KVB}, s{S_KVB}, {KVP_STRIDE}")] if r < 15 else []) for r in range(16)]
    bg += kvloads(True) + wload(11)
    for stp in range(14, 19): bg += wstage(stp)
    blocks = [(h, b, pr) for h in range(2) for b in range(2) for pr in range(2)][cfg["tail_b"]:]
    tl = mk(epi_gu_pk(ACCA, S_ST + 2, V_T, blocks, "hl"), cfg)
    k1 = [k for k, i in enumerate(tl) if i.kind == "vst"][0]
    fg(tl[:k1]); flush(lambda t: t == "q")
    k2 = k1 + 24
    fg(tl[k1:k2])
    fg([mkwait(lgkm="ct")] + [I(f"ds_read_b64_tr_b16 v[{184+2*k}:{185+2*k}], v{160+k}", tag="wp") for k in range(12)])
    k3 = len(tl) - cfg["he_pub"]
    fg(tl[k2:k3])
    fg([mkwait(vm="prejoin"), flag_store(S_FHE)])
    fg(tl[k3:])
    st(p, cfg, "t1")
    p.wait(vm="q", lgkm="wp")
    V_HA, V_OA = 148, 152
    sal = [I(f"ds_read_b128 v[216:219], v{VCT} offset:3072", tag="ct3"), I(f"ds_read_b128 v[220:223], v{VCT} offset:4096", tag="ct3")]
    sal += mk([f"s_lshr_b32 s{T+1}, s2, 3\ns_and_b32 s{T}, s2, 7\ns_and_b32 s{T+2}, s{T+1}, 3\ns_lshl_b32 s{S_RB64}, s{T}, 2\ns_add_u32 s{S_RB64}, s{S_RB64}, s{T+2}\ns_lshr_b32 s{S_CB}, s{T+1}, 2",
               f"s_mul_i32 s{T}, s{S_W}, 3\ns_min_u32 s{T}, s{T}, 5\ns_lshl_b32 s{S_PH}, s{S_RB64}, 4\ns_add_u32 s{S_PH}, s{S_PH}, s{T}\ns_lshl_b32 s{S_PH}, s{S_PH}, 7\ns_add_u32 s{S_PH}, s{S_PH}, {FLAGS+F_HE+1024}",
               f"v_bfe_u32 v156, v{V_L16}, 5, 2\nv_bfe_u32 v157, v{V_L16}, 2, 3\nv_min_u32 v{V_PA}, 2, v156\nv_lshl_add_u32 v{V_PA}, v{V_PA}, 7, v157\nv_lshl_add_u32 v156, v156, 7, v157",
               f"s_add_u32 s{S_B}, s{S_A}, {OF-QF}\ns_add_u32 s{S_FHL}, s{S_FHE}, {F_HL-F_HE}",
               f"s_mul_i32 s{S_A}, s{S_RB64}, {2*110592}\ns_add_u32 s{S_A}, s{S_A}, {HF}\ns_mul_i32 s{T}, s{S_W}, {6*2048}\ns_add_u32 s{S_HS}, s{S_A}, s{T}\ns_lshl_b32 s{T}, s{S_W}, 14\ns_add_u32 s{S_A}, s{S_A}, s{T}", mkwait(lgkm="ct3")], cfg)
    for tt in range(4):
        sal += mk([f"s_xor_b32 s{T}, s{S_W}, {tt}\ns_lshr_b32 s{T+1}, s{T}, 1\ns_and_b32 s{T}, s{T}, 1\ns_lshl_b32 s{T}, s{T}, 8",
                   f"s_mul_i32 s{T+2}, s{T+1}, 110592\ns_add_u32 s{T+2}, s{T+2}, s{T}\nv_add_u32 v{V_HA+tt}, s{T+2}, v220",
                   f"s_mul_i32 s{T+2}, s{T+1}, 40960\ns_add_u32 s{T+2}, s{T+2}, s{T}\nv_add_u32 v{V_OA+tt}, s{T+2}, v220"], cfg)
    for tau in range(2):
        for s_ in range(3):
            w = 184 + 4 * (s_ * 2 + tau); d = 16 * tau
            p(f"v_mfma_f32_32x32x16_bf16 v[{d}:{d+15}], v[{w}:{w+3}], v[{172+4*s_}:{175+4*s_}], " + ("0" if s_ == 0 else f"v[{d}:{d+15}]"))
            fg(sal[:7]); sal = sal[7:]
    fg(sal)
    RING = [224, 240, 160, 176, 192, 128, 80, 96, 112]
    def aload(step):
        b = RING[step % 9]; o = []
        for tt in range(4):
            pc = [I(f"buffer_load_dwordx4 v[{b+4*tt}:{b+4*tt+3}], v{(V_HA if step < 14 else V_OA)+tt}, s[{S_WS}:{S_WS+3}], s{S_HS} offen sc1", tag=("act", step))]
            if tt == 3:
                if step == 3: pc += [I(f"s_add_u32 s{S_HS}, s{S_HS}, 2048"), I(f"s_cmp_lt_u32 s{S_W}, 3"), I(f"s_cselect_b32 s{S_HS}, s{S_HS}, {OOB}")]
                elif step == 5: pc += [I(f"s_add_u32 s{S_HS}, s{S_A}, {22*2048}")]
                elif step == 13: pc += [I(f"s_mul_i32 s{S_HS}, s{S_RB64}, 81920"), I(f"s_lshl_b32 s{T+3}, s{S_LW}, 1"), I(f"s_add_u32 s{S_HS}, s{S_HS}, s{T+3}"), I(f"s_add_u32 s{S_HS}, s{S_HS}, {OF}")]
                else: pc += [I(f"s_add_u32 s{S_HS}, s{S_HS}, 2048")]
            o.append(pc)
        return o
    sm = softmax_pair_pk(0, 32, 60, 52)
    k = cfg["he_samp"]
    fg(sm[:k]); flush(lambda t: isinstance(t, tuple) and t[0] == "kv")
    fg([poll_load("he", S_PH)])
    fg(sm[k:])
    st(p, cfg, "sm")
    fg([mkwait(vm="hl"), flag_store(S_FHL)])
    st(p, cfg, "hlpub")
    issued_w = [stp for stp in range(11, 19) if not any(x.tag in (("w2", stp), ("wl", stp)) for pc in bg for x in pc)]
    part = [stp for stp in range(11, 19) if stp not in issued_w and len([pc for pc in bg if any(x.tag in (("w2", stp), ("wl", stp)) for x in pc)]) < 5]
    for stp in part: flush(lambda t: t in (("w2", stp), ("wl", stp)))
    issued_w = sorted(issued_w + part)
    assert 11 in issued_w
    blob = I("s_cmp_eq_u32 s2, s2")
    blob.text = f"s_cmp_ge_u32 s{S_KVB}, {OOB}\n    s_cbranch_scc1 FB_kv\nFB_kv_done:\n    s_cmp_ge_u32 s{S_WB}, {OOB}\n    s_cbranch_scc1 FB_w\nFB_w_done:"
    p.add(blob)
    def spin(name, ld, cmpx):
        return (f"FB_{name}_l:\n    {ld}\n    s_waitcnt vmcnt(0)\n{cmpx}    s_nop 4\n    s_cbranch_vccz FB_{name}_go\n    s_cmp_eq_u32 s{S_SPIN}, 0\n    s_cbranch_scc1 FB_{name}_go\n"
                f"    s_sub_u32 s{S_SPIN}, s{S_SPIN}, 1\n    s_sleep {SLEEP[0]}\n    s_branch FB_{name}_l\nFB_{name}_go:\n")
    q = Prog()
    q(f"s_and_b32 s{T}, s2, 7\ns_lshl_b32 s{T}, s{T}, 1\ns_bfe_u32 s{T+1}, s2, 0x10003\ns_add_u32 s{T}, s{T}, s{T+1}\ns_mul_i32 s{S_KVB}, s{T}, {16*KVP_STRIDE}\ns_add_u32 s{S_KVB}, s{S_KVB}, {KVP}")
    for pc in kvloads(False):
        for x in pc: q.add(x)
    SLOW.append("FB_kv:\n    " + kvflag_addr(56).replace("\n", "\n    ") + "\n" + spin("kv", f"buffer_load_dword v57, v56, s[{S_WS}:{S_WS+3}], s{S_PKV} offen sc1", f"    v_cmp_ne_u32 vcc, v57, v{V_TAG}\n")
                + finalize(q.ins) + "    s_waitcnt vmcnt(0)\n    s_branch FB_kv_done\n")
    q = Prog()
    q(f"s_mov_b32 s{T}, s{S_CB}"); wbases(q, T)
    for stp in range(12):
        for pc in wload(stp):
            for x in pc: q.add(x)
    for stp in issued_w:
        if stp >= 12:
            for pc in wstage(stp):
                for x in pc: q.add(x)
    q0 = Prog(); wflag_addr(q0, 56, 58, T)
    SLOW.append("FB_w:\n" + finalize(q0.ins) + spin("w", f"buffer_load_dword v57, v56, s[{S_WS}:{S_WS+3}], s{S_PW} offen sc1", f"    v_cmp_ne_u32 vcc, v57, v{V_TAG}\n")
                + finalize(q.ins) + "    s_waitcnt vmcnt(0)\n    s_branch FB_w_done\n")
    for i in poll_check("he", S_PH): p.add(i)
    st(p, cfg, "hepoll")
    bg[:0] = [pc for i in range(5) for pc in aload(i)]
    clock[0] = 1e9
    red = ["v_mov_b32 v210, 0x00003f80\nv_mov_b32 v211, 0x3f800000"] + [f"v_mov_b32 v{32+e}, 0" for e in range(8)]
    for r in range(16):
        red.append(mkwait(vm=("kv", r)))
        for e in range(4): red.append(f"v_dot2c_f32_bf16 v{32+2*e}, v{80+4*r+e}, v210\nv_dot2c_f32_bf16 v{33+2*e}, v{80+4*r+e}, v211")
    for e in range(4): red.append(f"v_cvt_pk_bf16_f32 v{40+e}, v{32+2*e}, v{33+2*e}")
    red.append(f"v_min_u32 v{VKW}, {3584-16}, v{VKW}\nv_add_u32 v{VKW}, {KVL}, v{VKW}\nds_write_b128 v{VKW}, v[40:43]")
    fg(red, cfg["bg_gap2"])
    st(p, cfg, "red")
    k = max([k for k, pc in enumerate(bg) if pc[0].tag == ("act", 4)], default=-1)
    bg[k + 1:k + 1] = aload(5)
    p.wait(lgkm=0)
    p("s_barrier")
    st(p, cfg, "b2")
    for s_ in range(5):
        for tau in range(2):
            p(f"ds_read_b128 v[{80+8*s_+4*tau}:{83+8*s_+4*tau}], v{216+tau} offset:{336*s_}", tag=("a", s_))
    om = []
    for s_ in range(5):
        om.append(mkwait(lgkm=("a", s_)))
        for tau in range(2):
            d = 16 * tau
            om.append(f"v_mfma_f32_32x32x16_bf16 v[{d}:{d+15}], v[{80+8*s_+4*tau}:{83+8*s_+4*tau}], v[{60+4*s_}:{63+4*s_}], " + ("0" if s_ == 0 else f"v[{d}:{d+15}]"))
    om.append(f"v_mov_b32 v{V_PA}, v156\ns_lshl_b32 s{S_PH}, s{S_RB64}, 2\ns_add_u32 s{S_PH}, s{S_PH}, s{S_W}\ns_lshl_b32 s{S_PH}, s{S_PH}, 9\ns_add_u32 s{S_PH}, s{S_PH}, {FLAGS+F_HL}\nv_add_u32 v211, s{S_LW}, v{V_L16}\nv_add_u32 v210, 81920, v211")
    om.append(f"s_mov_b32 s{S_G}, s30\ns_mov_b32 s{S_G+1}, s31\ns_mov_b32 s{S_G+2}, {X_SZ}")
    om.append(f"v_add_f32 v20, {fx(1e-6)}, v20\nv_rcp_f32 v20, v20\ns_nop 0")
    for e in range(0, 20, 2): om.append(f"v_pk_mul_f32 v[{e}:{e+1}], v[{e}:{e+1}], v[20:21] op_sel_hi:[1,0]")
    for e in range(10): om.append(f"v_cvt_pk_bf16_f32 v{100+e}, v{2*e}, v{2*e+1}")
    fg(om, cfg["bg_gap2"])
    flush(lambda t: isinstance(t, tuple) and t[0] == "act" and t[1] < cfg["early_pre"])
    p(f"buffer_store_dwordx4 v[100:103], v218, s[{S_WS}:{S_WS+3}], s{S_B} offen sc1", tag="ost")
    p(f"buffer_store_dwordx4 v[104:107], v218, s[{S_WS}:{S_WS+3}], s{S_B} offen offset:512 sc1", tag="ost")
    p(f"buffer_store_dwordx2 v[108:109], v219, s[{S_WS}:{S_WS+3}], s{S_B} offen offset:1024 sc1", tag="ost")
    st(p, cfg, "ost")
    SACC = 80
    def wmove(stp):
        a = WSLOT[stp % 12]; off = WST[stp]
        r, off = (210, off - 81920) if off >= 81920 else ((211, off) if off < 61440 else (215, off - 61440))
        o = [[I(f"ds_read_b128 a[{a+4*nt}:{a+4*nt+3}], v{r} offset:{off+1024*nt}", tag=("wm", stp))] for nt in range(5)]
        if stp >= 14: o[0].insert(0, mkwait(vm=("wl", stp)))
        return o
    def step(i, extra, nbg):
        b = RING[i % 9]; a = WSLOT[i % 12]
        flush(lambda t: t == ("act", i))
        p.wait(vm=[("act", i)] + ([("w2", i)] if i == 11 else []), lgkm=(("wm", i) if i >= 12 else None))
        st(p, cfg, f"s{i}")
        k = 0; kb = 0
        for tt in range(4):
            for nt in range(5):
                c = 4 * (5 * tt + nt)
                dreg = f"v[{c}:{c+3}]" if i < 14 else f"a[{SACC+c}:{SACC+c+3}]"
                p(f"v_mfma_f32_16x16x32_bf16 {dreg}, a[{a+4*nt}:{a+4*nt+3}], v[{b+4*tt}:{b+4*tt+3}], " + ("0" if i in (0, 14) else dreg))
                m = 5 * tt + nt
                if bg and kb < nbg and kb * 20 <= m * nbg:
                    t0 = bg[0][0].tag
                    if not (isinstance(t0, tuple) and t0[0] == "act" and t0[1] - 9 >= i):
                        for x in bg.pop(0): p.add(x)
                        kb += 1
                while k < len(extra) and k * 19 <= m * len(extra):
                    for x in extra[k]: p.add(x)
                    k += 1
    XW, XR_ = 156, 216
    xa = [[I(f"v_add_u32 v215, 61440, v211")]]
    for tt in range(1, 4):
        xa.append([I(f"s_xor_b32 s{T+4}, s{S_W}, {tt}"), I(f"s_mul_i32 s{T+4}, s{T+4}, 15360"), I(f"s_add_u32 s{T+4}, s{T+4}, {5120*(tt-1)}"), I(f"v_add_u32 v{[156,157,213][tt-1]}, s{T+4}, v{V_L16}")])
    XWR = [156, 157, 213]
    xa.append([I(f"s_mul_i32 s{T+4}, s{S_W}, 15360"), I(f"v_add_u32 v214, s{T+4}, v{V_L16}")])
    xa.append([I(f"ds_read_b128 v[216:219], v{VCT} offset:5120", tag="ct5")])
    xa.append([I(f"s_lshl_b32 s{S_B}, s{S_RB64}, 2"), I(f"s_add_u32 s{S_B}, s{S_B}, s{S_W}"), I(f"s_mul_i32 s{S_B}, s{S_B}, 20480")])
    xa.append([I(f"s_mul_i32 s{T+4}, s{S_CB}, 160"), I(f"s_add_u32 s{S_B}, s{S_B}, s{T+4}"), I(f"s_mul_i32 s{T+4}, s{S_W}, {20*FT_S}")])
    xa.append([mkwait(lgkm="ct5")] + [I(f"v_add_u32 v{216+u}, s{T+4}, v{216+u}") for u in range(4)])
    hls, os_ = cfg["hl_step"], cfg["o_poll"]
    wm_at = cfg["wm_at"]
    XD = RING[12 % 9]
    assert XD not in [RING[k % 9] for k in range(13, 19)]
    yw = [[I(f"ds_write_b128 v{XWR[tt-1]}, v[{4*(5*tt+nt)}:{4*(5*tt+nt)+3}] offset:{1024*nt}")] for tt in range(1, 4) for nt in range(5)]
    for i in range(19):
        ex = []
        if i == hls:
            st(p, cfg, "yearly")
            for x in poll_check("hl", S_PH, pending=() if cfg["fo_step"] < hls else (S_FO,)): p.add(x)
            st(p, cfg, "hlpoll")
            p(f"s_add_u32 s{S_PH}, s{S_PH}, {F_O-F_HL}")
            flush(lambda t: isinstance(t, tuple) and t[0] == "act")
            k = 0
            while k < len(bg) and bg[k][0].kind != "salu": k += 1
            flush_n = k
            for _ in range(flush_n):
                for x in bg.pop(0): p.add(x)
            bg[:0] = [pc for j in range(6, 14) for pc in aload(j)]
            for _ in range(cfg["late_burst"]):
                for x in bg.pop(0): p.add(x)
        if i == os_:
            p.wait(lgkm=[("wm", k) for k in range(12, 19)])
            p("s_barrier")
            for x in poll_check("o", S_PH): p.add(x)
            flush(lambda t: isinstance(t, tuple) and t[0] == "act")
            bg[:0] = [pc for j in range(14, 19) for pc in aload(j)]
        for k, at in enumerate(wm_at):
            if at == i:
                assert at > k
                flush(lambda t: t == ("wl", 12 + k))
                ex += wmove(12 + k)
        if i == 0: ex += xa
        if i == cfg["fo_step"]: ex = ex + [[mkwait(vm="ost"), flag_store(S_FO)]]
        if i == hls - 1: ex = [[poll_load("hl", S_PH)]] + ex
        if i == os_ - 1: ex = [[poll_load("o", S_PH)]] + ex
        if i == 14:
            st(p, cfg, "ylate")
            bg += [[I(f"buffer_load_dwordx4 v[{XD+4*u}:{XD+4*u+3}], v{221+u}, s[{S_X}:{S_X+3}], s{S_B} offen", tag="x")] for u in range(3)]
        if i >= 15: ex += yw[4*(i-15):4*(i-15)+4]
        step(i, ex, cfg["p2_rate"])
    assert not bg
    st(p, cfg, "sdone")
    for tt in range(1, 4): p(f"v_add_u32 v{XWR[tt-1]}, 61440, v{XWR[tt-1]}")
    for tt in range(1, 4):
        for nt in range(5):
            c = SACC + 4 * (5 * tt + nt)
            p(f"ds_write_b128 v{XWR[tt-1]}, a[{c}:{c+3}] offset:{1024*nt}")
    for e in range(20): p(f"v_accvgpr_read_b32 v{224+e}, a{SACC+e}")
    p(f"v_add_u32 v215, 61440, v214")
    p.wait(lgkm=0)
    p("s_barrier")
    st(p, cfg, "b4")
    for nt in range(5):
        for src in range(3): p(f"ds_read_b128 v[{20+12*nt+4*src}:{23+12*nt+4*src}], v214 offset:{5120*src+1024*nt}", tag=("fy", nt))
    for nt in range(5):
        p.wait(lgkm=("fy", nt))
        b = 20 + 12 * nt; y = 4 * nt
        for src in range(3):
            p(f"v_pk_add_f32 v[{y}:{y+1}], v[{y}:{y+1}], v[{b+4*src}:{b+4*src+1}]\nv_pk_add_f32 v[{y+2}:{y+3}], v[{y+2}:{y+3}], v[{b+4*src+2}:{b+4*src+3}]")
        for src in range(3): p(f"ds_read_b128 v[{80+12*nt+4*src}:{83+12*nt+4*src}], v215 offset:{5120*src+1024*nt}", tag=("fs", nt))
        for e in range(4): p(f"v_mul_f32 v{b+e}, {fx(-LOG2E)}, v{y+e}")
        for e in range(4): p(f"v_exp_f32 v{b+e}, v{b+e}")
        for e in range(4): p(f"v_add_f32 v{b+e}, 1.0, v{b+e}")
        for e in range(4): p(f"v_rcp_f32 v{b+e}, v{b+e}")
        p(f"v_pk_mul_f32 v[{y}:{y+1}], v[{y}:{y+1}], v[{b}:{b+1}]\nv_pk_mul_f32 v[{y+2}:{y+3}], v[{y+2}:{y+3}], v[{b+2}:{b+3}]")
    for nt in range(5):
        p.wait(lgkm=("fs", nt))
        b = 80 + 12 * nt; s0 = 224 + 4 * nt; y = 4 * nt
        for src in range(3):
            p(f"v_pk_add_f32 v[{s0}:{s0+1}], v[{s0}:{s0+1}], v[{b+4*src}:{b+4*src+1}]\nv_pk_add_f32 v[{s0+2}:{s0+3}], v[{s0+2}:{s0+3}], v[{b+4*src+2}:{b+4*src+3}]")
        p(f"v_pk_mul_f32 v[{y}:{y+1}], v[{y}:{y+1}], v[{s0}:{s0+1}]\nv_pk_mul_f32 v[{y+2}:{y+3}], v[{y+2}:{y+3}], v[{s0+2}:{s0+3}]")
        p(f"v_cvt_pk_bf16_f32 v{y}, v{y}, v{y+1}\nv_cvt_pk_bf16_f32 v{y+1}, v{y+2}, v{y+3}")
        p(f"ds_write_b64 v219, v[{y}:{y+1}] offset:{32*nt}", tag="ft")
    p("v_mov_b32 v60, 0xffff0000")
    p.wait(lgkm="ft")
    for u in range(3): p(f"ds_read_b128 v[{20+4*u}:{23+4*u}], v{216+u}", tag=("fr", u))
    p.wait(vm="x")
    for u in range(3):
        for e in range(4):
            x = XD + 4 * u + e
            p(f"v_lshlrev_b32 v{80+8*u+2*e}, 16, v{x}\nv_and_b32 v{81+8*u+2*e}, v60, v{x}")
    for u in range(3):
        p.wait(lgkm=("fr", u))
        for e in range(4):
            a = 20 + 4 * u + e; t = 40 + 2 * e
            p(f"v_lshlrev_b32 v{t}, 16, v{a}\nv_and_b32 v{t+1}, v60, v{a}")
        for e in range(4): p(f"v_pk_add_f32 v[{40+2*e}:{41+2*e}], v[{40+2*e}:{41+2*e}], v[{80+8*u+2*e}:{81+8*u+2*e}]")
        for e in range(4): p(f"v_cvt_pk_bf16_f32 v{20+4*u+e}, v{40+2*e}, v{41+2*e}")
        p(f"buffer_store_dwordx4 v[{20+4*u}:{23+4*u}], v{221+u}, s[{S_G}:{S_G+3}], s{S_B} offen")
    if cfg.get("stamps"):
        p.add(stamp(8)); p.add(stamp(9, True)); stamp_flush(p, 1, S_WS, S_W)
    p(f"s_or_b32 s{T}, s2, s{S_W}\ns_cmp_lg_u32 s{T}, 0\ns_cbranch_scc1 KP_end")
    txt = finalize(p.ins, True)
    txt += f"""    s_mov_b32 s{T}, {FLAGS+F_S}
    v_mov_b32 v17, s{S_TAG}
KP_ep:
"""
    for i in range(1): txt += f"    buffer_load_dwordx4 v[{64+4*i}:{64+4*i+3}], v{V_L16}, s[{S_WS}:{S_WS+3}], s{T} offen offset:{1024*i} sc1\n"
    txt += "    s_waitcnt vmcnt(0)\n    v_mov_b32 v16, 0\n"
    for i in range(4): txt += f"    v_xor_b32 v{64+i}, v{64+i}, v17\n    v_or_b32 v16, v16, v{64+i}\n"
    txt += f"""    v_cmp_ne_u32 vcc, 0, v16
    s_nop 4
    s_cbranch_vccz KP_ep2
    s_cmp_eq_u32 s{S_SPIN}, 0
    s_cbranch_scc1 KP_end
    s_sub_u32 s{S_SPIN}, s{S_SPIN}, 1
    s_sleep 1
    s_branch KP_ep
KP_ep2:
    s_mov_b32 s{T}, {FLAGS+F_E}
    v_mov_b32 v16, 0
    buffer_store_dword v17, v16, s[{S_WS}:{S_WS+3}], s{T} offen sc1
KP_end:
    s_endpgm
"""
    return txt

def const_table():
    tab = [[OW + v if v >= 0 else ZR for v in row] for row in wphi_table(-1)[:12]]
    rows = [[] for _ in range(12)]
    for l in range(64):
        m = l & 31; hhk = l >> 5; hd = (m >> 2) & 1; reg = (m & 3) + 4 * (m >> 3)
        r0 = reg + 4 * hd; r1 = ((0 if hd else 16) + reg) if reg < 4 else 20
        rows[0].append(KVL + hd * 1680 + r0 * 16 if hd == hhk else ZR)
        rows[1].append(KVL + hd * 1680 + r1 * 16 if hd == hhk else ZR)
        rows[2].append(m * 16 + hhk * 1536); rows[3].append(m * 16 + hhk * 8)
        rows[4].append((l >> 4) * 512 + (l & 15) * 16)
        for u in range(3):
            idx = 64 * u + l; tok, j = divmod(idx, 10)
            rows[5 + u].append(tok * 1280 + j * 16 if idx < 160 else OOB)
            rows[8 + u].append(FT + tok * FT_S + j * 16)
        rows[11].append(FT + (l & 15) * FT_S + (l >> 4) * 8)
    return tab + rows

def gen(cfg, name):
    SLOW.clear(); SLEEP[0] = cfg['sleep']; FORCE_FB[0] = cfg.get('force_fb', 0)
    p = Prog()
    T = S_T
    p("s_cmp_ge_u32 s2, 256\ns_cbranch_scc1 KP_end")
    if cfg.get("stamps"):
        p.add(stamp(0)); p.add(stamp(1, True))
        for k in range(2, 8): p(f"s_mov_b32 s{S_STAMP+2*k}, 0")
    if cfg.get("codepf"):
        p(f"s_getpc_b64 s[4:5]\nK1_pf:\ns_mov_b32 s6, CODE_END-K1_pf\ns_mov_b32 s7, 0x20000\ns_lshr_b32 s8, s2, 3\ns_lshl_b32 s8, s8, 12\nv_lshlrev_b32 v1, 4, v0")
        p("buffer_load_dwordx4 a[252:255], v1, s[4:7], s8 offen")
    p(f"s_load_dwordx4 s[28:31], s[0:1], {KA_X}")
    p(f"s_load_dwordx4 s[32:35], s[0:1], {KA_WG}")
    p(f"s_load_dwordx2 s[36:37], s[0:1], {KA_WS}")
    p(f"s_load_dwordx2 s[60:61], s[0:1], {KA_WO}\ns_load_dwordx2 s[62:63], s[0:1], {KA_WD}")
    p(f"v_lshrrev_b32 v1, 6, v0\nv_and_b32 v0, 63, v0\nv_readfirstlane_b32 s{S_W}, v1")
    p(f"s_and_b32 s{T}, s2, 7\ns_lshr_b32 s{T+1}, s2, 3")
    p(f"s_and_b32 s{T+2}, s{T}, 1\ns_lshl_b32 s{T+2}, s{T+2}, 3\ns_and_b32 s{T+3}, s{T+1}, 7\ns_add_u32 s{S_RB}, s{T+2}, s{T+3}")
    p(f"s_lshr_b32 s{T+4}, s{T+1}, 3")
    p(f"s_mul_i32 s{T+5}, s{T+3}, {cfg['rot_a']}\ns_mul_i32 s{T+6}, s{T+4}, {cfg['rot_b']}\ns_add_u32 s{T+5}, s{T+5}, s{T+6}")
    if cfg["rot_c"] or cfg["rot_d"]:
        p(f"s_and_b32 s{T+6}, s{T}, 1\ns_mul_i32 s{T+6}, s{T+6}, {cfg['rot_c']}\ns_add_u32 s{T+5}, s{T+5}, s{T+6}\ns_lshr_b32 s{T+6}, s{T}, 1\ns_mul_i32 s{T+6}, s{T+6}, {cfg['rot_d']}\ns_add_u32 s{T+5}, s{T+5}, s{T+6}")
    p(f"s_lshr_b32 s{S_ROT}, s{T+5}, 3\ns_mul_i32 s{T+5}, s{S_ROT}, 205\ns_lshr_b32 s{T+5}, s{T+5}, 11\ns_mul_i32 s{T+5}, s{T+5}, 10\ns_sub_u32 s{S_ROT}, s{S_ROT}, s{T+5}")
    p(f"s_and_b32 s{T+5}, s{T}, 6\ns_and_b32 s{T+6}, s{T+4}, 1\ns_add_u32 s{S_GP}, s{T+5}, s{T+6}")
    p(f"s_and_b32 s{S_GRP}, s{T+4}, 2\ns_lshl_b32 s{S_GRP}, s{S_GRP}, 2\ns_add_u32 s{S_GRP}, s{S_GRP}, s{S_GP}")
    p(f"s_lshl_b32 s{S_TG}, s{S_RB}, 2\ns_add_u32 s{S_TG}, s{S_TG}, s{S_W}")
    p(f"s_lshl_b32 s{S_LW4}, s{S_W}, 12\ns_mul_i32 s{S_LW}, s{S_W}, 5120")
    p(f"s_mul_i32 s{S_BEG+3}, s{S_TG}, 40960\ns_add_u32 s{S_END+3}, s{S_BEG+3}, 1280")
    p(f"s_lshl_b32 s{S_SO+3}, s{S_ROT}, 7\ns_add_u32 s{S_SO+3}, s{S_SO+3}, s{S_BEG+3}\ns_add_u32 s{S_X2}, s{S_SO+3}, {16*1280-2048}")
    p("v_lshrrev_b32 v1, 3, v0\nv_and_b32 v2, 7, v0\nv_lshrrev_b32 v4, 4, v0\nv_xor_b32 v4, v2, v4\nv_mul_u32_u24 v5, 1280, v1")
    p(f"v_lshl_add_u32 v{V_DX}, v4, 4, v5\nv_xor_b32 v4, 4, v4\nv_lshl_add_u32 v4, v4, 4, v5\nv_add_u32 v{V_DX+1}, {8*1280-1024}, v4")
    p("v_bfe_u32 v3, v0, 4, 1\nv_lshlrev_b32 v3, 2, v3\nv_xor_b32 v2, v2, v3\nv_lshlrev_b32 v2, 4, v2")
    p(f"v_mul_u32_u24 v3, 3456, v1\nv_add_u32 v{V_DG}, v3, v2\nv_add_u32 v{V_DG+1}, {8*3456-1024}, v{V_DG}")
    p(f"v_mul_u32_u24 v3, 3840, v1\nv_add_u32 v{V_DQ}, v3, v2\nv_add_u32 v{V_DQ+1}, {8*3840-1024}, v{V_DQ}")
    p(f"v_lshrrev_b32 v6, 5, v0\nv_mul_u32_u24 v6, 1280, v6\nv_and_b32 v7, 31, v0\nv_lshl_add_u32 v8, v7, 4, v6\nv_lshl_add_u32 v9, v7, 3, v6")
    p(f"s_lshl_b32 s64, s{S_RB}, 4\ns_add_u32 s64, s64, s{S_GRP}\ns_lshl_b32 s64, s64, 2\ns_add_u32 s64, s64, s{S_W}\ns_mul_i32 s65, s64, 2560")
    p(f"s_xor_b32 s67, s2, 128\ns_lshr_b32 s68, s67, 1\ns_cmp_lt_u32 s{T+4}, 2\ns_mov_b32 s69, 65536\ns_cselect_b32 s69, 110592, s69")
    p(f"s_cmp_lt_u32 s68, 20\ns_cselect_b32 s{T+5}, 0, 20\ns_sub_u32 s{T+5}, s68, s{T+5}\ns_lshl_b32 s{T+5}, s{T+5}, 2\ns_add_u32 s{T+5}, s{T+5}, s{S_W}\ns_mul_i32 s{T+5}, s{T+5}, 10240")
    p(f"s_and_b32 s{T+6}, s67, 1\ns_mul_i32 s{T+6}, s{T+6}, 640\ns_add_u32 s{T+5}, s{T+5}, s{T+6}\ns_add_u32 s{T+6}, s69, s{S_LW}")
    st(p, cfg, "ka0")
    p("s_waitcnt lgkmcnt(0)")
    st(p, cfg, "ka")
    srd(p, S_X, 28, X_SZ)
    p(f"buffer_load_dwordx4 v[16:19], v8, s[{S_X}:{S_X+3}], s65 offen", tag="sx")
    p(f"buffer_load_dwordx4 v[20:23], v8, s[{S_X}:{S_X+3}], s65 offen offset:512", tag="sx")
    p(f"buffer_load_dwordx2 v[24:25], v9, s[{S_X}:{S_X+3}], s65 offen offset:1024", tag="sx")
    p(f"s_cmp_lt_u32 s68, 20\ns_cselect_b32 s{S_RP}, s60, s62\ns_cselect_b32 s{S_RP+1}, s61, s63\ns_mov_b32 s{S_RP+2}, {WD_SZ}\ns_cselect_b32 s{S_RP+2}, {WO_SZ}, s{S_RP+2}\ns_mov_b32 s{S_RP+3}, 0x20000")
    p(f"s_mov_b32 s63, s{T+5}\ns_mov_b32 s78, s{T+6}")
    rpk = [[I(f"s_add_u32 m0, s78, {896*c}"), I(f"buffer_load_dwordx4 v{V_DX}, s[{S_RP}:{S_RP+3}], s63 offen offset:{128*c} lds", tag="rpk")] for c in range(5)]
    srd(p, S_G, 32, WG_SZ); srd(p, S_U, 34, WG_SZ, -2048); srd(p, S_QA, 30, WQKV_SZ); srd(p, S_QB, 30, WQKV_SZ, 128 - 2048)
    def setpass(q, pi, pitch, colreg):
        q(f"s_mul_i32 s{S_BEG+pi}, s{S_W}, {16*pitch}\ns_add_u32 s{S_BEG+pi}, s{S_BEG+pi}, s{colreg}\ns_add_u32 s{S_END+pi}, s{S_BEG+pi}, {640*pitch}")
        q(f"s_mul_i32 s{S_SO+pi}, s{S_ROT}, {64*pitch}\ns_add_u32 s{S_SO+pi}, s{S_SO+pi}, s{S_BEG+pi}")
    def hstore(q, k, lreg):
        q(f"s_mul_i32 s{S_ST+k}, s{S_TG}, {216*512}\ns_lshl_b32 s{T+9}, s{lreg}, 12\ns_add_u32 s{S_ST+k}, s{S_ST+k}, s{T+9}\ns_add_u32 s{S_ST+k}, s{S_ST+k}, {HF}")
    def common_pre(q, rdbase, nsets, xring, kv):
        srd(q, S_WS, 36, WS_TOTAL)
        q(f"s_add_u32 s36, s36, {FLAGS+F_E}\ns_addc_u32 s37, s37, 0\ns_load_dword s{S_TAG}, s[36:37], 0")
        q(f"s_load_dwordx2 s[28:29], s[0:1], {KA_WPHI}\ns_load_dwordx2 s[30:31], s[0:1], {KA_OUT}")
        q(f"v_lshlrev_b32 v{V_L16}, 4, v0")
        q("v_and_b32 v1, 1, v0\nv_bfe_u32 v2, v0, 1, 1\nv_lshl_add_u32 v1, v1, 1, v2")
        q("v_bfe_u32 v2, v0, 4, 1\nv_lshl_add_u32 v1, v2, 2, v1\nv_lshlrev_b32 v1, 3, v1")
        q("v_bfe_u32 v2, v0, 2, 2\nv_lshrrev_b32 v3, 5, v0\nv_lshl_add_u32 v3, v3, 3, v2")
        q(f"v_lshl_add_u32 v4, v3, 7, v1\nv_bfe_u32 v5, v0, 3, 1\nv_lshl_add_u32 v4, v5, 6, v4\nv_add_u32 v{rdbase}, s{S_LW4}, v4")
        for j in range(4):
            for h in range(2):
                if j or h: q(f"v_xor_b32 v{rdbase+2*j+h}, {4096*j + 64*h}, v{rdbase}")
        if nsets == 2:
            for k in range(8): q(f"v_add_u32 v{rdbase+8+k}, 65536, v{rdbase+k}")
        if kv:
            q("v_mul_u32_u24 v4, 320, v3\nv_add_u32 v4, v4, v1")
            for j in range(4):
                q(f"s_xor_b32 s{T}, s{S_W}, {j}\ns_mul_i32 s{T}, s{T}, 5120\nv_add_u32 v{V_R5+j}, s{T}, v4")
        q(f"v_and_b32 v1, 31, v0\nv_lshrrev_b32 v2, 5, v0\nv_lshl_add_u32 v2, s{S_W}, 1, v2\nv_bfe_u32 v3, v0, 1, 3\nv_xor_b32 v2, v2, v3")
        q(f"v_lshlrev_b32 v2, 4, v2\nv_lshl_add_u32 v2, v1, 7, v2\nv_add_u32 v{V_XR}, s{S_LX}, v2")
        for j in range(1, 4): q(f"v_xor_b32 v{V_XR+j}, {32*j}, v{V_XR}")
        q(f"v_mov_b32 v{V_ONE}, 0x3f803f80\nv_and_b32 v1, 15, v0\nv_lshrrev_b32 v2, 4, v0\nv_lshlrev_b32 v2, 2, v2\nv_cmp_eq_u32 vcc, v1, v2")
        for k in range(4): q(f"v_cndmask_b32 v{V_SEL+k}, 0, v{V_ONE}, vcc")
        q(f"v_add_u32 v{V_CSR}, {CSX}, v{V_L16}\nv_lshl_add_u32 v{V_CSW}, s{S_W}, 2, v{V_CSR}")
    def ct_stage(q, typ):
        q(f"s_getpc_b64 s[32:33]\nKC_pc{typ}:\ns_add_u32 s32, s32, KC_tab-KC_pc{typ}\ns_addc_u32 s33, s33, 0\ns_mov_b32 s34, 6144\ns_mov_b32 s35, 0x20000")
        q(f"s_lshl_b32 s{T}, s{S_W}, 10\ns_add_u32 m0, s{T}, {CT}\ns_add_u32 s{T+1}, s{T}, 4096")
        q(f"buffer_load_dwordx4 v{V_L16}, s[32:35], s{T} offen lds")
        q(f"s_add_u32 m0, s{T}, {CT+4096}\ns_nop 0\nbuffer_load_dwordx4 v{V_L16}, s[32:35], s{T+1} offen lds")
        srd(q, 32, 28, WPHI_SZ)
        q(f"s_and_b32 s{T+5}, s2, 7\ns_lshl_b32 s{T+5}, s{T+5}, 1\ns_bfe_u32 s{T+1}, s2, 0x10003\ns_add_u32 s{T+5}, s{T+5}, s{T+1}")
        q(f"s_and_b32 s{T}, s{T}, 1024\ns_mul_i32 s{T+1}, s{T+5}, 1600\ns_add_u32 s{T+1}, s{T+1}, s{T}\ns_add_u32 m0, s{T}, {OW}")
        q(f"s_nop 0\nbuffer_load_dwordx4 v{V_L16}, s[32:35], s{T+1} offen lds")
        q(f"s_mul_i32 s{S_TAG}, s{S_TAG}, 0x9E3779B1\ns_add_u32 s{S_TAG}, s{S_TAG}, 0x7F4A7C15\ns_mov_b32 s{S_SPIN}, {cfg['spin']}")
        q(f"s_lshr_b32 s{T}, s2, 5\ns_mul_i32 s{S_PW}, s{T}, {80*128}\ns_add_u32 s{S_PW}, s{S_PW}, {FLAGS+F_W}")
        wbases(q, T)
        wflag_addr(q, 1, 2, T); q(f"v_accvgpr_write_b32 a{A_PW}, v1")
        q(f"s_lshl_b32 s{S_FS}, s2, 2\ns_add_u32 s{S_FS}, s{S_FS}, {FLAGS+F_S}\ns_cmp_eq_u32 s{S_W}, 0\ns_cselect_b32 s{S_FS}, s{S_FS}, {OOB}")
        q(f"s_lshr_b32 s{T}, s2, 4\ns_lshl_b32 s{T}, s{T}, 2\ns_add_u32 s{T}, s{T}, s{S_W}")
        q(f"s_lshl_b32 s{S_PQ}, s{T}, 7\ns_add_u32 s{S_PQ}, s{S_PQ}, {FLAGS+F_Q}")
        q(f"s_mul_i32 s{S_A}, s{T}, 40960\ns_mul_i32 s{T+1}, s{T+5}, 2560\ns_add_u32 s{S_A}, s{S_A}, s{T+1}\ns_add_u32 s{S_A}, s{S_A}, {QF}")
        q(f"s_lshr_b32 s{S_FO}, s{T}, 1\ns_lshl_b32 s{S_FO}, s{S_FO}, 4\ns_add_u32 s{S_FO}, s{S_FO}, s{T+5}\ns_lshl_b32 s{S_FO}, s{S_FO}, 7")
        q(f"s_and_b32 s{T}, s{S_W}, 1\ns_lshl_b32 s{T}, s{T}, 2\ns_add_u32 s{T}, s{T}, {FLAGS}\ns_add_u32 s{S_FO}, s{S_FO}, s{T}\ns_add_u32 s{S_FO}, s{S_FO}, {F_O}")
        q(f"s_mul_i32 s{S_KVB}, s{T+5}, {16*KVP_STRIDE}\ns_add_u32 s{S_KVB}, s{S_KVB}, {KVP}\ns_lshl_b32 s{S_PKV}, s{T+5}, 10\ns_add_u32 s{S_PKV}, s{S_PKV}, {FLAGS+F_KV}")
        q(f"s_lshr_b32 s{S_FHE}, s{S_TG}, 1\ns_lshl_b32 s{S_FHE}, s{S_FHE}, 4\ns_add_u32 s{S_FHE}, s{S_FHE}, s{S_GRP}\ns_lshl_b32 s{S_FHE}, s{S_FHE}, 7\ns_add_u32 s{S_FHE}, s{S_FHE}, s{T}\ns_add_u32 s{S_FHE}, s{S_FHE}, {F_HE}")
    def shadow(E):
        q = Prog()
        q(f"v_mov_b32 v{E}, s{S_TAG}\nv_mov_b32 v{E+1}, {OOB}\nv_cmp_eq_u32 vcc, 0, v0\nv_mov_b32 v26, 0\nv_mov_b32 v27, 0\nv_cndmask_b32 v{E+1}, v{E+1}, v0, vcc")
        q(f"v_and_b32 v7, 31, v0\nv_lshlrev_b32 v{E+2}, 3, v7\nv_lshrrev_b32 v6, 2, v0\nv_mov_b32 v8, {OOB}\nv_cmp_eq_u32 vcc, 0, v7\nv_cndmask_b32 v8, v8, v6, vcc")
        q("v_lshrrev_b32 v1, 4, v0\nv_mul_u32_u24 v1, 5120, v1\nv_bfe_u32 v2, v0, 2, 2\nv_lshl_add_u32 v1, v2, 7, v1\nv_bfe_u32 v2, v0, 3, 1\nv_bfe_u32 v3, v0, 1, 1\nv_xor_b32 v2, v2, v3")
        q("v_lshl_add_u32 v1, v2, 4, v1\nv_and_b32 v2, 1, v0\nv_lshl_add_u32 v1, v2, 3, v1")
        q(f"s_mul_i32 s{T}, s{S_W}, 5")
        for nt in range(5):
            q(f"s_and_b32 s{T+1}, s{T}, 3\ns_lshl_b32 s{T+1}, s{T+1}, 5\nv_xor_b32 v{E+4+2*nt}, s{T+1}, v1\ns_lshr_b32 s{T+1}, s{T}, 2\ns_lshl_b32 s{T+1}, s{T+1}, 10\ns_add_u32 s{T+1}, s{T+1}, s69")
            q(f"v_add_u32 v{E+4+2*nt}, s{T+1}, v{E+4+2*nt}\nv_xor_b32 v{E+5+2*nt}, 32, v{E+4+2*nt}\ns_add_u32 s{T}, s{T}, 1")
        q(f"s_and_b32 s{T}, s67, 1\ns_lshl_b32 s{T}, s{T}, 2\ns_add_u32 s{T}, s{T}, s{S_W}")
        q(f"s_mul_i32 s29, s{T}, 80\ns_add_u32 s29, s29, s68\ns_lshl_b32 s29, s29, 7\ns_add_u32 s29, s29, {FLAGS+F_W}")
        q(f"s_mul_i32 s{T}, s{T}, 74\ns_add_u32 s{T}, s{T}, s68\ns_mul_i32 s{T}, s{T}, 5120\ns_add_u32 s{T}, s{T}, {W2P}")
        q(f"s_cmp_lt_u32 s67, 148\ns_cselect_b32 s{T}, s{T}, {OOB}\ns_cselect_b32 s29, s29, {OOB}\ns_add_u32 s{T+1}, s{T}, 4096")
        q(f"s_lshl_b32 s69, s64, 4\ns_add_u32 s69, s69, {FLAGS+F_ST}\ns_lshl_b32 s67, s{S_TG}, 8\ns_add_u32 s67, s67, {FLAGS+F_ST}")
        qa = q; q = Prog()
        q.wait(vm="sx")
        for r in range(16, 26): q(f"v_dot2c_f32_bf16 v26, v{r}, v{V_ONE}\nv_dot2c_f32_bf16 v27, v{r}, v{r}")
        for sh in (8, 4, 2, 1):
            for a in (26, 27): q(f"v_add_f32_dpp v{a}, v{a}, v{a} row_ror:{sh} row_mask:0xf bank_mask:0xf")
        q("v_mov_b32 v12, v26\nv_mov_b32 v13, v27\nv_permlane16_swap_b32 v26, v12\nv_permlane16_swap_b32 v27, v13\nv_add_f32 v26, v26, v12\nv_add_f32 v27, v27, v13")
        q(f"v_mul_f32 v26, {fx(-1/640)}, v26\nv_mul_f32 v27, {fx(1/640)}, v27\nv_fma_f32 v27, -v26, v26, v27\nv_max_f32 v27, 0, v27")
        q(f"v_cvt_pk_bf16_f32 v27, v27, v27\nv_lshlrev_b32 v27, 16, v27\nv_add_f32 v27, {fx(1e-5)}, v27\nv_cvt_pk_bf16_f32 v27, v27, v27\nv_lshlrev_b32 v27, 16, v27")
        q(f"v_sqrt_f32 v27, v27\nv_cvt_pk_bf16_f32 v26, v26, v27\nv_mov_b32 v27, s{S_TAG}")
        q(f"buffer_store_dwordx2 v[26:27], v8, s[{S_WS}:{S_WS+3}], s69 offen sc1")
        qb = q; q = Prog()
        for nt in range(5):
            for i in range(2): q(f"ds_read_b64_tr_b16 v[{E+16+4*nt+2*i}:{E+17+4*nt+2*i}], v{E+4+2*nt+i} offset:{512*i}", tag=("rr", nt))
        for nt in range(5):
            q.wait(lgkm=("rr", nt))
            q(f"buffer_store_dwordx4 v[{E+16+4*nt}:{E+19+4*nt}], v{V_L16}, s[{S_WS}:{S_WS+3}], s{T if nt < 4 else T+1} offen offset:{1024*(nt&3)} sc1", tag="rs")
        rb = cfg["rp_bar"]
        return qa.ins, qb.ins, [(("bar", rb, -1), ("bar", rb, 0), [mkwait(vm="rpk")]), (("bar", rb, 1), ("bar", rb, cfg["rp_len"]), q.ins)]
    def stat_fill(typ, E):
        k = cfg["st_k"]; regs = (V_S1, E + 2, E)
        return [(k, k + 1, [poll_load("st" + typ, 67, 2, regs)]), (k + cfg["poll_k"], k + cfg["poll_k"] + 3, poll_check("st" + typ, 67, 2, regs=regs) + mk(stats_final(), cfg))]
    def ghosts(q):
        q.add(ghost("vld", "sx"))
    def sync_fill(typ, k0):
        a, b, c = wpoll(typ); pk = cfg["poll_k"]
        kq = cfg["qpoll_kv"] if typ == "k" else cfg["qpoll_gq"]
        ks = cfg["kv_samp"]
        return [(41, 44, mk(sync_setup(typ, cfg), cfg)), (k0, k0 + 1, a), (k0 + pk, k0 + pk + 1, b + mk(c, cfg)), (kq, kq + 1, [poll_load("q" + typ, S_PQ)]),
                (kq + pk, kq + pk + 1, poll_check("q" + typ, S_PQ) + mk([kvflag_addr(V_PA)], cfg)),
                (("end", -ks), ("end", -ks + 2), [poll_load("kv" + typ, S_PKV)]), (("end", -1), ("end", 0), sample_check("kv" + typ, 1, (S_KVB,)))]
    p(f"s_cmp_lt_u32 s{T+4}, 2\ns_cbranch_scc1 K1_kv")
    p(f"s_add_u32 s{S_LX}, s{S_LW4}, {XRING_GQ}")
    p(f"s_cmp_lt_u32 s{S_GP}, 5\ns_cbranch_scc1 K1_q")
    head = p
    SG, SQ = 64 * 3456, 64 * 3840
    RDG = 64
    nsl, sb = cfg["nsl"], cfg["sb"]
    p = Prog(); p.ins = list(head.ins)
    p(f"s_lshl_b32 s{T+7}, s{S_GP}, 1\ns_sub_u32 s{T+7}, s{T+7}, 5\ns_lshl_b32 s{T+1}, s{T+7}, 7"); setpass(p, 0, 3456, T + 1)
    pre = Prog(); common_pre(pre, RDG, 2, XRING_GQ, False)
    hstore(pre, 0, T + 7)
    for pi, src, inc in ((1, T + 7, 1), (2, S_GP, 19)):
        pre(f"s_add_u32 s{T+7}, s{src}, {inc}\ns_lshl_b32 s{T+1}, s{T+7}, 7"); setpass(pre, pi, 3456, T + 1); hstore(pre, pi, T + 7)
    pre("s_waitcnt lgkmcnt(0)"); ct_stage(pre, "g")
    passes = [Pass("gu", a, S_G, S_U, V_DG, SG, RDG) for a in (ACCA, ACCB, ACCA)]
    f = std_fillers(passes, [[(("m", ("passend", 1), -3), None, epi_gu(ACCA, S_ST, V_T))], [(("m", ("csbar", 2), 0), None, epi_gu(ACCB, S_ST + 1, V_T))]], cfg)
    kw = cfg["wpoll_gq"]
    sha, shb, shc = shadow(ACCB)
    emit_main(p, passes, 16384, nsl, sb, 10, f + tail_fill(passes, cfg) + sync_fill("g", kw) + stat_fill("g", ACCB) + shc, dict(cfg, pre=pre.ins + sha + shb, slot_head=[0, 1, 2, 3] * 2, slot_free=cfg["rp_bar"] + 1, pubs=[("rs", [flag_store(29, ACCB, ACCB + 1)])], wpf_start=kw + cfg["poll_k"] + 1, wl_start=kw + cfg["poll_k"] + 1, extra_dma={cfg["rp_after"]: rpk, cfg["wl_after"]: wstage(12), cfg["wl_after"] + 2: wstage(13)}))
    p("s_branch KP_join")
    txt = finalize(p.ins, True)
    p = Prog(); p.label("K1_q"); ghosts(p)
    p(f"s_lshl_b32 s{T+1}, s{S_GP}, 8"); setpass(p, 0, 3840, T + 1)
    pre = Prog()
    common_pre(pre, RDG, 2, XRING_GQ, False)
    pre(f"s_mul_i32 s72, s{S_TG}, 40960\ns_lshl_b32 s{T+9}, s{S_GP}, 13\ns_add_u32 s72, s72, s{T+9}\ns_add_u32 s72, s72, {QF}\ns_add_u32 s73, s72, 4096")
    pre(f"s_mov_b32 s{T+7}, s{S_GP}")
    for pi, inc in ((1, 0), (2, 19)):
        pre(f"s_add_u32 s{T+7}, s{T+7}, {inc}\ns_lshl_b32 s{T+1}, s{T+7}, 7"); setpass(pre, pi, 3456, T + 1); hstore(pre, pi, T + 7)
    pre("s_waitcnt lgkmcnt(0)"); ct_stage(pre, "q")
    pre(f"s_lshl_b32 s74, s{S_TG}, 5\ns_add_u32 s74, s74, s{S_GP}\ns_lshl_b32 s74, s74, 2\ns_add_u32 s74, s74, {FLAGS+F_Q}")
    sha, shb, shc = shadow(ACCB)
    passes = [Pass("q", ACCA, S_QA, S_QB, V_DQ, SQ, RDG), Pass("gu", ACCB, S_G, S_U, V_DG, SG, RDG), Pass("gu", ACCA, S_G, S_U, V_DG, SG, RDG)]
    f = std_fillers(passes, [[(cfg["q_end"], None, epi_q(ACCA, 72, V_T))], [(("m", ("csbar", 2), 0), None, epi_gu(ACCB, S_ST + 1, V_T))]], cfg)
    emit_main(p, passes, 16384, nsl, sb, 10, f + tail_fill(passes, cfg) + sync_fill("q", kw) + stat_fill("q", ACCB) + shc,
              dict(cfg, pre=pre.ins + sha + shb, slot_head=[0, 1, 2, 3] * 2, slot_free=cfg["rp_bar"] + 1, extra_dma={cfg["rp_after"]: rpk, cfg["wl_after"]: wstage(12), cfg["wl_after"] + 2: wstage(13)},
                   wpf_start=kw + cfg["poll_k"] + 1, wl_start=kw + cfg["poll_k"] + 1,
                   pubs=[("qst", [flag_store(74)]), ("rs", [flag_store(29, ACCB, ACCB + 1)])], pub_before_poll=1))
    p("s_branch KP_join")
    txt += finalize(p.ins, True)
    RDK = 192
    p = Prog(); p.label("K1_kv"); ghosts(p)
    p(f"s_add_u32 s{S_LX}, s{S_LW4}, {XRING_KV}")
    p(f"s_mul_i32 s{T+1}, s{S_GP}, 160\ns_add_u32 s{T+1}, s{T+1}, 1280"); setpass(p, 0, 3840, T + 1)
    p(f"s_movk_i32 s{T}, 3277")
    for i in range(5):
        p(f"v_add_u32 v1, {64*i}, v0\nv_mul_u32_u24 v2, s{T}, v1\nv_lshrrev_b32 v2, 16, v2")
        p("v_mul_u32_u24 v3, 20, v2\nv_sub_u32 v3, v1, v3")
        p("v_cmp_lt_u32 vcc, 9, v3\nv_mul_u32_u24 v2, 3840, v2\nv_lshl_add_u32 v2, v3, 4, v2")
        p(f"v_add_u32 v3, {1280-160}, v2\nv_cndmask_b32 v2, v2, v3, vcc")
        p(f"v_subrev_u32 v{V_D5[i]}, {1024*(i&3)}, v2")
    pre = Prog()
    common_pre(pre, RDK, 1, XRING_KV, True)
    pre(f"s_add_u32 s{T+7}, s{S_GP}, 11\ns_lshl_b32 s{T+1}, s{T+7}, 7"); setpass(pre, 1, 3456, T + 1); hstore(pre, 2, T + 7)
    VA_PW, VA_VW, VA_A, VA_B, VA_S1, VA_S3 = 221, 222, 223, 214, 215, 255
    pre(f"v_mov_b32 v2, 0\nv_mov_b32 v3, 0\nv_mov_b32 v1, {WPH+WPH_ZERO}\nds_write_b64 v1, v[2:3]")
    pre(f"v_and_b32 v1, 31, v0\nv_lshl_add_u32 v1, s{S_W}, 5, v1\nv_lshrrev_b32 v4, 5, v0")
    pre(f"v_mul_u32_u24 v5, {VL_S}, v1\nv_add_u32 v5, {VL}, v5\nv_lshl_add_u32 v{VA_VW}, v4, 4, v5")
    pre(f"v_mul_u32_u24 v5, {PHI_S}, v1\nv_mul_u32_u24 v6, 80, v4\nv_add_u32 v5, v5, v6\nv_add_u32 v{VA_PW}, {PHI}, v5")
    pre("v_bfe_u32 v1, v0, 2, 2\nv_lshlrev_b32 v1, 2, v1\nv_lshl_add_u32 v1, v4, 1, v1")
    pre("v_and_b32 v2, 1, v0\nv_bfe_u32 v3, v0, 1, 1\nv_lshl_add_u32 v2, v2, 1, v3\nv_bfe_u32 v3, v0, 4, 1\nv_lshl_add_u32 v2, v3, 2, v2")
    pre(f"v_mul_u32_u24 v5, {PHI_S}, v1\nv_lshl_add_u32 v5, v2, 3, v5\ns_mul_i32 s{T+2}, s{S_W}, 80\ns_add_u32 s{T+2}, s{T+2}, {PHI}\nv_add_u32 v{VA_A}, s{T+2}, v5")
    pre("v_and_b32 v2, 3, v0\nv_lshl_add_u32 v2, v3, 2, v2")
    pre(f"s_mul_i32 s{T+2}, s{S_W}, 40\nv_lshlrev_b32 v5, 3, v2\nv_add_u32 v5, s{T+2}, v5\nv_cmp_gt_u32 vcc, 5, v2\nv_mov_b32 v6, 160\nv_cndmask_b32 v5, v6, v5, vcc")
    pre(f"v_mul_u32_u24 v6, {VL_S}, v1\nv_add_u32 v5, v5, v6\nv_add_u32 v{VA_B}, {VL}, v5")
    pre(f"v_and_b32 v1, 31, v0\nv_mul_u32_u24 v2, 21, v4\nv_add_u32 v2, v2, v1\nv_lshlrev_b32 v2, 4, v2\nv_mov_b32 v3, {OOB}")
    pre(f"v_cmp_gt_u32 vcc, 21, v1\nv_cndmask_b32 v{VA_S1}, v3, v2, vcc\nv_cmp_gt_u32 vcc, 21, v0\nv_cndmask_b32 v{VA_S3}, v3, v2, vcc")
    pre(f"s_lshr_b32 s{T+2}, s{S_W}, 1\ns_lshl_b32 s{T+3}, s{S_GP}, 1\ns_add_u32 s{T+2}, s{T+2}, s{T+3}\ns_lshl_b32 s{T+2}, s{T+2}, 4\ns_add_u32 s{T+2}, s{T+2}, s{S_RB}")
    pre(f"s_mul_i32 s{T+2}, s{T+2}, {KVP_STRIDE}\ns_and_b32 s{T+3}, s{S_W}, 1\ns_mul_i32 s{T+3}, s{T+3}, 1680\ns_add_u32 s{T+2}, s{T+2}, s{T+3}\ns_add_u32 s{S_ST+5}, s{T+2}, {KVP}")
    pre(f"s_getpc_b64 s[60:61]\nK1_pc:\ns_add_u32 s60, s60, K1_tab-K1_pc+2048\ns_addc_u32 s61, s61, 0")
    pre(f"s_mul_i32 s{T+2}, s{S_GP}, 3200\ns_lshl_b32 s{T+3}, s{S_W}, 10\ns_add_u32 s{T+2}, s{T+2}, s{T+3}\ns_add_u32 s{T+3}, s{T+3}, {WPH}")
    pre(f"s_lshl_b32 s74, s{S_GP}, 1\ns_lshr_b32 s{T}, s{S_W}, 1\ns_add_u32 s74, s74, s{T}\ns_lshl_b32 s74, s74, 3\ns_lshr_b32 s{T}, s{S_RB}, 1\ns_add_u32 s74, s74, s{T}\ns_lshl_b32 s74, s74, 7")
    pre(f"s_and_b32 s{T}, s{S_RB}, 1\ns_lshl_b32 s{T}, s{T}, 1\ns_and_b32 s{T+1}, s{S_W}, 1\ns_add_u32 s{T}, s{T}, s{T+1}\ns_lshl_b32 s{T}, s{T}, 2\ns_add_u32 s74, s74, s{T}\ns_add_u32 s74, s74, {FLAGS+F_KV}")
    pre("s_waitcnt lgkmcnt(0)"); ct_stage(pre, "k")
    fa = [I(f"global_load_dwordx4 v[{V_T+4*i}:{V_T+4*i+3}], v{V_L16}, s[60:61] offset:{1024*i-2048}", tag="tab") for i in range(6)]
    fb = [I(f"s_mov_b32 m0, s{T+3}"), I(f"buffer_load_dwordx4 v{V_L16}, s[32:35], s{T+2} offen lds", tag="tab")]
    f1 = []
    for k in range(24):
        f1.append(f"v_add_u32 v{V_T+k}, {WPH}, v{V_T+k}")
        f1.append(I(f"ds_read_b64_tr_b16 a[{160+2*k}:{161+2*k}], v{V_T+k}", tag="wp"))
    KP = V_T; K0 = 64
    a = []
    for b in range(5):
        for e in range(8): a.append(f"v_mul_f32 v{K0+8*b+e}, v{V_RL}, v{K0+8*b+e}")
        for e in range(4): a.append(f"v_cvt_pk_bf16_f32 v{KP+4*b+e}, v{K0+8*b+2*e}, v{K0+8*b+2*e+1}")
    for tau in range(2):
        for s in range(3):
            w = 160 + 4 * ((0 * 3 + s) * 2 + tau); d = K0 + 16 * tau
            a.append(f"v_mfma_f32_32x32x16_bf16 v[{d}:{d+15}], a[{w}:{w+3}], v[{KP+4*s}:{KP+4*s+3}], " + ("0" if s == 0 else f"v[{d}:{d+15}]"))
    a.append(f"v_mov_b32 v{K0+36}, 0x3f80\nv_mov_b32 v{K0+37}, 0\nv_lshrrev_b32 v{K0+38}, 5, v{V_L16}\nv_and_b32 v{K0+38}, 16, v{K0+38}\nv_sub_u32 v{K0+38}, v{VA_VW}, v{K0+38}")
    a.append(I(f"ds_write_b64 v{K0+38}, v[{K0+36}:{K0+37}] offset:160", tag="vw"))
    for b in range(5):
        o = K0 + 40 + 8 * b
        for e in range(8): a.append(f"v_mul_f32 v{o+e}, v{V_R}, v{o+e}")
        for e in range(4): a.append(f"v_cvt_pk_bf16_f32 v{o+e}, v{o+2*e}, v{o+2*e+1}")
        a.append(I(f"ds_write_b128 v{VA_VW}, v[{o}:{o+3}] offset:{32*b}", tag="vw"))
    a.append(mkwait(lgkm="vw"))
    for tau in range(2):
        for s in range(3):
            w = 160 + 4 * ((1 * 3 + s) * 2 + tau); d = K0 + 32 + 16 * tau
            a.append(f"v_mfma_f32_32x32x16_bf16 v[{d}:{d+15}], a[{w}:{w+3}], v[{KP+8+4*s}:{KP+8+4*s+3}], " + ("0" if s == 0 else f"v[{d}:{d+15}]"))
    a1 = a; a = []
    EP = [K0 + r for r in list(range(64, 80)) + [20, 21, 22, 23]]
    for P in range(2):
        sm = softmax_pair(list(range(K0 + 32 * P, K0 + 32 * P + 20)), EP, KP, [K0 + r for r in (24, 25, 26, 27, 28, 29)])
        cnt = 0
        for s_ in sm:
            a.append(s_)
            if s_.startswith("v_cvt_pk"):
                cnt += 1
                if cnt % 4 == 0:
                    ch = cnt // 4 - 1
                    a.append(f"ds_write_b128 v{VA_PW}, v[{KP+4*ch}:{KP+4*ch+3}] offset:{160*P + 16*ch}")
    bq = []
    def kvreads(kp):
        r = []; base = K0 + 32 + 12 * (kp & 1)
        for i in range(2): r.append(I(f"ds_read_b64_tr_b16 v[{base+8+2*i}:{base+9+2*i}], v{VA_B} offset:{kp*16*VL_S + i*VL_S}", tag=("kv", kp)))
        for tau in range(2):
            for i in range(2): r.append(I(f"ds_read_b64_tr_b16 v[{base+4*tau+2*i}:{base+4*tau+2*i+1}], v{VA_A} offset:{kp*16*PHI_S + i*PHI_S + tau*64}", tag=("kv", kp)))
        return r
    bq += kvreads(0)
    for kp in range(8):
        if kp + 1 < 8: bq += kvreads(kp + 1)
        bq.append(mkwait(lgkm=("kv", kp)))
        base = K0 + 32 + 12 * (kp & 1)
        for tau in range(2):
            d = K0 + 16 * tau
            bq.append(f"v_mfma_f32_32x32x16_bf16 v[{d}:{d+15}], v[{base+4*tau}:{base+4*tau+3}], v[{base+8}:{base+11}], " + ("0" if kp == 0 else f"v[{d}:{d+15}]"))
    bq2 = []
    for ch in range(3):
        for e in range(4): bq2.append(f"v_cvt_pk_bf16_f32 v{K0+64+4*ch+e}, v{K0+8*ch+2*e}, v{K0+8*ch+2*e+1}")
        bq2.append(I(f"buffer_store_dwordx4 v[{K0+64+4*ch}:{K0+67+4*ch}], v{VA_S1 if ch < 2 else VA_S3}, s[{S_WS}:{S_WS+3}], s{S_ST+5} offen offset:{672*ch} sc1", tag="kvs"))
    passes = [Pass("kv", K0, S_QA, S_QA, V_D5, SQ, V_R5), Pass("gu", ACCA, S_G, S_U, V_DG, SG, RDK)]
    sha, shb, shc = shadow(28)
    kb = cfg["kv_bar"]; kw = cfg["wpoll_kv"]; ka = cfg["kv_a1"]
    assert kw + cfg["poll_k"] + 1 > ka
    f = std_fillers(passes, [[(ka, ka, a1), (("bar", kb, 0), ("bar", kb, 1), a), (("bar", kb, cfg["kv_bq"]), ("bar", kb, cfg["kv_bq"] + 2), bq), (("bar", kb, cfg["kv_bq"] + 6), None, bq2)]], cfg)
    f += [(("bar", 8, -2), ("bar", 8, 0), [mkwait(vm="tab")]), (("bar", 8, 1), 37, mk(f1, cfg))]
    emit_main(p, passes, 20480, 3, 1, 8, f + tail_fill(passes, cfg) + sync_fill("k", kw) + stat_fill("k", 28) + shc,
              dict(cfg, pre=pre.ins + sha + shb, cs_gaps=cfg["cs_gaps_kv"], extra_dma={cfg["rp_after"]: rpk, 5: [[x] for x in fa[:3]], 6: [[x] for x in fa[3:]], cfg["rp_bar"] + 4: [fb], 19: wstage(12) + wstage(13)}, wl_start=("bar", kb + 2, 1),
                   wpf_start=kw + cfg["poll_k"] + 1, wgap=cfg["wgap_kv"], pub_delay=cfg["pub_delay_kv"], pubs=[("kvs", [flag_store(74)]), ("rs", [flag_store(29, 28, 29)])]))
    txt += finalize(p.ins, True)
    txt += common(cfg)
    txt += "".join(SLOW)
    tab = wphi_table(WPH_ZERO)
    txt += ".p2align 6\n.type K1_tab,@object\nK1_tab:\n"
    for g in range(6):
        for l in range(64):
            txt += "  .long " + ", ".join(str(tab[4 * g + e][l]) for e in range(4)) + "\n"
    tab = const_table()
    txt += ".type KC_tab,@object\nKC_tab:\n"
    for g in range(6):
        for l in range(64):
            txt += "  .long " + ", ".join(str(tab[4 * g + e][l]) for e in range(4)) + "\n"
    return kernel_text(name, txt, 256, 256, 102)

CFG = dict(pro_pieces=16, lb=7, quiet=2, wait_every=4, nsl=6, sb=2, depth0=3, depth=5, dgap0=2, dgap=3,
           rot_a=10, rot_b=20, stflag="sc1", kv_bar=16, kv_a1=48, kv_bq=14, stagger=1, tail_b=1, cs_gaps=7, cs_gaps_kv=4,
           q_end=60, wl_after=17, pub0=36, st_k=28, rp_after=2, rp_bar=4, rp_len=9, fast_until=2, rot_c=0, rot_d=0,
           cap=25, dma_cost=10, dma_last=0, codepf=1, spin=20000, sleep=4, poll_k=4, wpoll_gq=44, wpoll_kv=44, wgap=2, wgap_kv=2,
           pub_delay=60, pub_delay_kv=30, qpoll_gq=100, qpoll_kv=68, kv_samp=14,
           bg_gap=70, bg_gap2=50, he_pub=50, he_samp=60, early_pre=4, fo_step=4, hl_step=6, late_burst=8, o_poll=10, p2_rate=5,
           wm_at=[1, 2, 5, 6, 7, 8, 9])
```

```python
import sys
from common import *
import kp
cfg = dict(kp.CFG)
for a in sys.argv[3:]:
    k, v = a.split("=", 1); cfg[k] = eval(v)
mode = sys.argv[2]
t, d = kp.gen(cfg, "main_kernel")
def warm(kind):
    p = Prog()
    p("s_cmp_ge_u32 s2, 256\ns_cbranch_scc1 KW_end")
    p("s_load_dwordx16 s[16:31], s[0:1], 0\ns_load_dwordx2 s[32:33], s[0:1], 64\ns_load_dwordx2 s[34:35], s[0:1], 80")
    p("s_lshr_b32 s3, s2, 3\ns_waitcnt lgkmcnt(0)")
    bufs = [(16, X_SZ), (18, WQKV_SZ), (22, WO_SZ), (26, WG_SZ), (28, WG_SZ), (30, WD_SZ), (20, WPHI_SZ), (32, X_SZ), (34, WS_TOTAL)]
    if kind in ("tlb", "tlbcu"):
        if kind == "tlb":
            p("s_lshl_b32 s12, s3, 8\nv_add_u32 v1, s12, v0\nv_lshlrev_b32 v1, 12, v1")
        else:
            p("v_lshlrev_b32 v1, 16, v0\nv_add_u32 v2, 0x1000000, v1")
        for (lo, sz) in bufs:
            srd(p, 8, lo, sz)
            p("buffer_load_dword v4, v1, s[8:11], 0 offen")
            if kind == "tlbcu" and sz > (1 << 24): p("buffer_load_dword v4, v2, s[8:11], 0 offen")
    if kind == "data":
        p("v_lshlrev_b32 v1, 4, v0")
        for (lo, sz) in bufs[:6]:
            srd(p, 8, lo, sz)
            p("s_mul_i32 s12, s2, 12288")
            for i in range(3): p("buffer_load_dwordx4 v[4:7], v1, s[8:11], s12 offen\ns_add_u32 s12, s12, 4096")
    if kind == "wsw":
        p("v_lshlrev_b32 v1, 4, v0\nv_mov_b32 v4, 0\nv_mov_b32 v5, 0\nv_mov_b32 v6, 0\nv_mov_b32 v7, 0")
        srd(p, 8, 34, STAMP)
        p("s_mul_i32 s12, s2, 77824")
        for i in range(19): p("buffer_store_dwordx4 v[4:7], v1, s[8:11], s12 offen\ns_add_u32 s12, s12, 4096")
    p("s_waitcnt vmcnt(0)")
    p.label("KW_end")
    p("s_endpgm")
    return kernel_text("warm_kernel", finalize(p.ins), 8, 0, 48)
M = f"; @launch kernel=main_kernel grid=(256,1,1) block=(256,1,1) lds={kp.LDS_TOTAL}\n"
W = "; @launch kernel=warm_kernel grid=(256,1,1) block=(256,1,1) lds=0\n"
tw = dw = ""
if mode == "one": L = M
elif mode == "two": L = M + M
elif mode.endswith("2"): tw, dw = warm(mode[:-1]); L = W + W + M
else: tw, dw = warm(mode); L = W + M
open(sys.argv[1], "w").write("; diagnostic\n" + L + '.amdgcn_target "amdgcn-amd-amdhsa--gfx950"\n' + t + "CODE_END:\n" + tw + d + dw)
```

```python
from common import *

S_G, S_U, S_QA, S_QB, S_WS, S_X = 4, 8, 12, 16, 20, 24
S_W, S_RB, S_TG, S_ROT, S_GP = 40, 41, 42, 43, 44
S_X2 = 45
S_W2 = 45
S_SO, S_BEG, S_END = 46, 50, 54
S_LW, S_LX = 58, 59
S_ST = 60
S_LW4 = 66
S_T = 70
S_GRP = 3
S_TAG, S_SPIN = 38, 39
S_WY, S_WB = 100, 101
F_E = 0; F_S = 1024; F_HE = 2048; F_HL = F_HE + 65536; F_O = F_HL + 65536; F_Q = F_O + 65536; F_KV = F_Q + 8192; F_ST = F_KV + 16384; F_W = F_ST + 16384
S_WO, S_FS = 0, 1
S_RP = 96
S_RE, S_RL, S_RO, S_NE, S_WE = 41, 44, 42, 3, 75
A_PW = 232
V_F0, V_TAG, V_PF, V_PA, V_L16B = 144, 145, 146, 158, 159
CT = 152576; ZR = CT + 6144; OW = CT + 8192; KVL = 147456; FT = 122880; FT_S = 176
WST = {12: 102400, 13: 122880, 14: 0, 15: 20480, 16: 40960, 17: 61440, 18: 81920}
WSLOT = [160, 180, 200] + [20 * i for i in range(8)] + [220]
ACCA, ACCB, FR = 0, 80, 160
V_XR, V_SEL, V_MEAN, V_CSW, V_CSR, V_S1, V_S2 = 144, 148, 152, 156, 157, 158, 159
V_DG, V_DQ, V_DX = 200, 202, 204
V_D5 = [202, 203, 206, 207, 208]
V_L16 = 209
V_R5 = 210
V_C0, V_C1, V_IR2, V_R, V_RL = 216, 217, 218, 219, 220
V_ONE = 152
V_T = 224
A_CS = 236
XRING_GQ = 98304; XRING_KV = 61440
PHI = 61440; PHI_S = 336
VL = PHI + 128 * PHI_S; VL_S = 176
WPH = VL + 128 * VL_S
WPH_ZERO = 4096
CSX = 147456
LDS_TOTAL = 163840

import re
VOP3 = ("v_fma_f32", "v_cvt_pk", "v_max3", "v_min3", "v_lshl_add", "v_add3", "v_bfe", "v_accvgpr", "v_mul_lo", "v_perm_b32", "v_pk_")
def cost(i, cfg=None):
    if i.waits is not None or i.kind == "wait": return 1.5
    if i.kind == "trans": return 8
    if i.kind == "mfma": return -24 if i.passes == 8 else -8
    if i.kind in ("dma", "vld", "vst"): return DMA_COST[0]
    if i.kind in ("dsr",): return 5
    if i.kind == "dsw": return 8
    if i.kind == "barrier": return 20
    if i.kind == "label": return 0
    if i.mn.startswith(VOP3): return 5
    if re.search(r"0x[0-9a-f]{3,}|[ ,]\d{3,}", i.text): return 5
    return 4
DMA_COST = [10]

def st(p, cfg, name):
    sp = cfg.get("sp", []) if cfg.get("stamps") else []
    if name in sp: p.add(stamp(2 + sp.index(name)))
    if name + "!" in sp: p(f"s_mov_b32 s{S_STAMP + 2*(2 + sp.index(name + '!'))}, s{S_SPIN}")

class Pass:
    def __init__(self, kind, acc, srdA, srdB, vd, step, rd):
        self.kind = kind; self.nT = 5 if kind == "kv" else 4
        self.acc = acc; self.srdA = srdA; self.srdB = srdB; self.vd = vd; self.step = step; self.rd = rd

def mk(lst, cfg):
    out = []
    for x in lst:
        if isinstance(x, I): out.append(x)
        else:
            for l in x.split("\n"): out.append(I(l.replace("STFLAG", cfg["stflag"]).rstrip()))
    return out

def cs_publish(nT, pi):
    o = []
    for t in range(nT): o.append(f"v_accvgpr_read_b32 v{V_T+24+t}, a{A_CS+4*t}")
    for t in range(nT):
        r = V_T + 24 + t
        o.append(f"v_and_b32 v{V_T+30}, 0xffff0000, v{r}\nv_sub_f32 v{r}, v{r}, v{V_T+30}\nv_cvt_pk_bf16_f32 v{r}, v{V_T+30}, v{r}")
        o.append(I(f"ds_write_b32 v{V_CSW}, v{r} offset:{1024*t}", tag=("csw", pi)))
    return o

def cs_read(tiles, pi):
    return [I(f"ds_read_b128 v[{V_T+4*t}:{V_T+4*t+3}], v{V_CSR} offset:{1024*t}", tag=("cs", pi, t)) for t in tiles]

def cs_apply(tiles, acc, pi):
    o = [mkwait(lgkm=[("cs", pi, t) for t in tiles])]
    for t in tiles:
        a = acc + 16 * t
        o.append(f"v_mfma_f32_32x32x16_bf16 v[{a}:{a+15}], v[{V_T+4*t}:{V_T+4*t+3}], v[{V_MEAN}:{V_MEAN+3}], v[{a}:{a+15}]")
    return o

def stats_final():
    c0 = -2.0 * LOG2E * 0.7978845608028654
    o = [f"v_and_b32 v{V_S2}, 0xffff0000, v{V_S1}", f"v_and_b32 v{V_MEAN}, 0xffff, v{V_S1}", f"v_rcp_f32 v{V_R}, v{V_S2}",
         f"v_lshl_or_b32 v{V_MEAN}, v{V_S1}, 16, v{V_MEAN}", f"v_mul_f32 v{V_IR2}, v{V_S2}, v{V_S2}"]
    o += [f"v_mov_b32 v{V_MEAN+k}, v{V_MEAN}" for k in (1, 2, 3)]
    o.append(f"v_mul_f32 v{V_C0}, {fx(c0)}, v{V_R}\nv_mul_f32 v{V_RL}, {fx(LOG2E)}, v{V_R}\nv_mul_f32 v{V_C1}, v{V_R}, v{V_R}")
    o.append(f"v_mul_f32 v{V_C1}, {fx(0.044715)}, v{V_C1}\nv_mul_f32 v{V_C1}, v{V_C1}, v{V_C0}")
    return o

def emit_main(p, passes, slot_stride, nsl, sb, NF, fillers, cfg):
    NS = 10 * len(passes); N = 4 * NS
    LB = cfg["lb"]; Q = cfg["quiet"]; WE = cfg["wait_every"]; XS = 3
    if LB + Q > NF: LB = NF - Q
    per_set = 65536 // slot_stride
    slotmap = list(cfg.get("slot_head", []))
    while len(slotmap) < NS: slotmap.append((slotmap[-1] + 1) % nsl if slotmap else 0)
    prevuser = {s: max([u for u in range(s) if slotmap[u] == slotmap[s]], default=None) for s in range(NS)}
    groups = []; s = 0
    while s < NS:
        k = 1 if s < 10 else sb
        groups.append(list(range(s, min(NS, s + k)))); s += k
    mf = []; gstart = []; marks = {}
    for gi, grp in enumerate(groups):
        gstart.append(len(mf))
        nT = passes[grp[0] // 10].nT
        ks = [4 * s + j for s in grp for j in range(4)]
        if grp[-1] % 10 == 9:
            ks = [n for n in ks if n % 4 == 0] + [n for n in ks if n % 4]
        if gi == len(groups) - 1 and cfg["stagger"]:
            k0 = [n for n in ks if n % 4 == 0]; k1 = [n for n in ks if n % 4]
            mf += [(n, t) for n in k0 for t in range(nT)]
            marks[("csdone", grp[0] // 10)] = len(mf)
            mf += [(n, t) for n in k1 for t in (0, 2)]
            marks["pair0done"] = len(mf)
            mf += [(n, t) for n in k1 for t in (1, 3)]
        else:
            for n in ks:
                mf += [(n, t) for t in range(nT)]
                if grp[-1] % 10 == 9 and n == 4 * grp[-1]: marks[("csdone", grp[0] // 10)] = len(mf)
        if grp[-1] % 10 == 9: marks[("passend", grp[0] // 10)] = len(mf)
    M = len(mf); gstart.append(M)
    kstart = {}
    for j, (n, t) in enumerate(mf): kstart.setdefault(n, j)
    def rd(j, i):
        n, t = mf[j]
        s = n // 4; kk = n % 4; P = passes[s // 10]; slot = slotmap[s]
        dst = FR + 4 * (j % NF) + 2 * i
        st = slot // per_set; off = (slot % per_set) * slot_stride
        if P.kind == "kv":
            return I(f"ds_read_b64_tr_b16 v[{dst}:{dst+1}], v{P.rd+kk} offset:{off + i*1280 + t*64}", tag=("fr", j))
        return I(f"ds_read_b64_tr_b16 v[{dst}:{dst+1}], v{P.rd + 8*st + 2*kk + (t & 1)} offset:{off + (t>>1)*2048 + i*512}", tag=("fr", j))
    def dma_pieces(s):
        pi = s // 10; P = passes[pi]; slot = slotmap[s]; tag = ("st", s)
        so = S_SO + pi
        w = []
        if P.kind == "kv":
            for i in range(5):
                pc = []
                if i == 0: pc.append(I(f"s_add_u32 m0, s{S_LW}, {slot*slot_stride}"))
                if i == 4: pc.append(I(f"s_add_u32 m0, s{S_LW}, {slot*slot_stride + 4096}"))
                pc.append(I(f"buffer_load_dwordx4 v{P.vd[i]}, s[{P.srdA}:{P.srdA+3}], s{so} offen offset:{1024*(i&3)} lds", tag=tag))
                w.append(pc)
        else:
            for i in range(4):
                pc = []
                if i == 0: pc.append(I(f"s_add_u32 m0, s{S_LW4}, {slot*slot_stride}"))
                sr_ = P.srdA if i < 2 else P.srdB
                pc.append(I(f"buffer_load_dwordx4 v{P.vd+(i&1)}, s[{sr_}:{sr_+3}], s{so} offen offset:{1024*i} lds", tag=tag))
                w.append(pc)
        if s % 10 < 9:
            w[-1] += [I(f"s_add_u32 s{so}, s{so}, {P.step}"), I(f"s_cmp_eq_u32 s{so}, s{S_END+pi}"), I(f"s_cselect_b32 s{so}, s{S_BEG+pi}, s{so}")]
        if pi == 0:
            for i in range(4):
                pc = []
                if i == 0: pc.append(I(f"s_add_u32 m0, s{S_LX}, {(s % XS)*16384}"))
                pc.append(I(f"buffer_load_dwordx4 v{V_DX+(i&1)}, s[{S_X}:{S_X+3}], s{S_SO+3 if i < 2 else S_X2} offen offset:{1024*i} lds", tag=tag))
                if i == 3 and s < 9:
                    pc += [I(f"s_add_u32 s{S_SO+3}, s{S_SO+3}, 128"), I(f"s_cmp_eq_u32 s{S_SO+3}, s{S_END+3}"), I(f"s_cselect_b32 s{S_SO+3}, s{S_BEG+3}, s{S_SO+3}"),
                           I(f"s_add_u32 s{S_X2}, s{S_SO+3}, {16*1280-2048}")]
                w.append(pc)
        return w
    gaps = [dict(pre=[], post=[], lock=False, cs=(mf[j][0] % 4 == 0)) for j in range(M)]
    pro_reads = []
    def put(g, i):
        if g < 0: pro_reads.append(i)
        else: gaps[g]["post"].append(i)
    bargap = {}; freed_at = {}
    XT = passes[1].acc
    for gi, grp in enumerate(groups):
        j0 = gstart[gi]; j1 = gstart[gi + 1]
        b = j0 - LB
        if gi > 0:
            gaps[b]["post"] += [mkwait(vm=("st", grp[-1]), lgkm=0), I("s_barrier")]
            gaps[b]["lock"] = True
            bargap[grp[0]] = b
            for s in groups[gi - 1]: freed_at[s] = b
        G = j1 - j0
        span = G - Q if gi + 1 < len(groups) else G
        if grp[0] < 10:
            s = grp[0]
            for kk in range(4):
                put(b + 1 + 2 * kk, I(f"ds_read_b128 a[{16*s+4*kk}:{16*s+4*kk+3}], v{V_XR+kk} offset:{(s % XS)*16384}", tag=("xa", 4 * s + kk)))
        for k in range(2 * G):
            j = j0 + k // 2
            g = max(b + 1 + (k * span) // (2 * G), j - NF + 1)
            assert g <= j - 2
            put(g, rd(j, k & 1))
    lastp = len(passes) - 1
    eb = marks[("csdone", lastp)] + cfg["cs_gaps"]
    gaps[eb]["post"] = [mkwait(lgkm=("csw", lastp)), I("s_barrier")] + gaps[eb]["post"]; gaps[eb]["lock"] = True
    marks[("csbar", lastp)] = eb
    for pi in range(lastp): marks[("csbar", pi)] = bargap[10 * (pi + 1)]
    for j in range(0, M, WE):
        tags = [("fr", min(M - 1, j + WE - 1))]
        for jj in range(j, min(M, j + WE)):
            if mf[jj][0] < 40: tags.append(("xa", mf[jj][0]))
        gaps[j]["pre"].append(mkwait(lgkm=tags))
    queue = [(s, pc) for s in range(NS) for pc in dma_pieces(s) + cfg.get("extra_dma", {}).get(s, [])]
    qi = 0
    st(p, cfg, "typ")
    while qi < len(queue) and qi < cfg["pro_pieces"] * len(dma_pieces(0)) // 8:
        for i in queue[qi][1]: p.add(i)
        qi += 1
        if qi == len(dma_pieces(0)):
            st(p, cfg, "iss8")
            for i in cfg.get("pre", []): p.add(i)
            st(p, cfg, "pre")
    st(p, cfg, "issued")
    p.wait(vm=("st", 0), lgkm=0)
    p("s_barrier")
    st(p, cfg, "first")
    for i in pro_reads: p.add(i)
    def gap_of(x):
        if isinstance(x, tuple):
            if x[0] == "bar": return bargap[x[1]] + x[2]
            if x[0] == "m": return marks[x[1]] + x[2]
            if x[0] == "end": return M + x[1]
        return kstart[x]
    nextg = 0
    gstage = []
    for gi, grp in enumerate(groups): gstage += [grp[0] + (len(grp) * k) // (gstart[gi+1] - gstart[gi]) for k in range(gstart[gi+1] - gstart[gi])]
    for g in range(M):
        if qi >= len(queue): break
        s, pc = queue[qi]
        cur = gstage[g]
        if g < nextg or gaps[g]["lock"]: continue
        if prevuser[s] is not None and g <= freed_at.get(prevuser[s], 10**9): continue
        if prevuser[s] is None and slotmap[s] >= 4 and "slot_free" in cfg and g <= bargap[cfg["slot_free"]]: continue
        if XS <= s < 10 and g <= freed_at.get(s - XS, 10**9): continue
        if s > cur + (cfg["depth0"] if cur < 8 else cfg["depth"]): continue
        if any(isinstance(i.tag, tuple) and i.tag[0] == "rp" for i in pc) and g <= bargap[10]: continue
        if any(isinstance(i.tag, tuple) and i.tag[0] == "wl" for i in pc) and g < gap_of(cfg["wl_start"]): continue
        k = 0
        while pc[k].kind == "salu": k += 1
        gaps[g]["pre"] = pc[:k] + gaps[g]["pre"]; pc = pc[k:]
        gaps[g]["post"].insert(0, pc[0])
        gaps[g]["dma"] = True
        dg = cfg["dgap0"] if cur < 10 else cfg["dgap"]
        if isinstance(pc[0].tag, tuple) and pc[0].tag[0] in ("rp", "wl"): dg = 2
        if cur < cfg["fast_until"]: dg = 1
        if len(pc) > 1: gaps[g + 1 if not gaps[g + 1]["lock"] and dg > 1 else g]["post"] += pc[1:]
        marks[("dmaend", s)] = g + 1
        qi += 1
        nextg = g + dg
    assert qi == len(queue), (qi, len(queue))
    DMA_COST[0] = cfg["dma_cost"]
    g = gap_of(cfg["wpf_start"])
    lastuse = {}
    for j, (n, t) in enumerate(mf):
        if n // 40 == lastp: lastuse[n % 40] = j
    wleft = []
    busy = set()
    if cfg["wburst"]:
        bars = sorted(bargap.values()) + [M]
        for b0, b1 in zip(bars, bars[1:]):
            d = [k for k in range(b0, b1) if gaps[k].get("dma")]
            if d: busy.update(range(b0, d[-1] + 2))
    for slot in range(11):
        for pc in wload(slot):
            ld = [i for i in pc if i.kind == "vld"][0]
            a0 = ld.dst[0][1]
            lo = lastuse[a0 // 4] + 1 if a0 < 160 else 0
            while g < M and (g < lo or gaps[g]["lock"] or gaps[g].get("dma") or g in busy): g += 1
            if g >= M or wleft: wleft += pc; continue
            gaps[g]["pre"] = pc[:-1] + gaps[g]["pre"]
            gaps[g]["post"] = pc[-1:] + gaps[g]["post"]; gaps[g]["dma"] = True
            g += cfg["wgap"]
    for (k0, k1, items) in sorted(fillers, key=lambda f: len(f[2]) > 60):
        g0, g1 = gap_of(k0), gap_of(k1)
        while gaps[g1 - 1]["lock"]: g1 -= 1
        def load(g):
            nxt = gaps[g + 1]["pre"] if g + 1 < M else []
            return sum(cost(i) for i in gaps[g]["post"]) + sum(cost(i) for i in nxt) - (8 if gaps[g]["cs"] else 0)
        def attempt(cap, commit):
            k = 0
            for g in range(g0, g1):
                if gaps[g]["lock"]: continue
                u = load(g)
                while k < len(items) and (u + cost(items[k]) <= cap or items[k].kind == "mfma"):
                    if items[k].kind == "mfma": u = max(u, cap)
                    u += cost(items[k])
                    if commit: gaps[g]["post"].append(items[k])
                    k += 1
            return k == len(items)
        cap = cfg["cap"]
        while not attempt(cap, False): cap += 1
        attempt(cap, True)
        if cfg.get("verbose"): print("filler", k0, k1, len(items), "cap", cap)
    for (tag, items) in cfg.get("pubs", []):
        last = max([g for g in range(M) for i in gaps[g]["post"] if i.tag == tag], default=None)
        g = last + (cfg["pub0"] if tag == "rs" else cfg["pub_delay"])
        while g < M and gaps[g]["lock"]: g += 1
        assert g < M, tag
        gaps[g]["post"] += [mkwait(vm=tag)] + items
        if cfg.get("pub_before_poll"):
            first = min(k for k in range(M) for i in gaps[k]["post"] if i.mn == "v_pk_blob" and "P_q" in i.text)
            assert g < first, ("publication after the first poll", tag, g, first)
    for j, g in enumerate(gaps):
        n, t = mf[j]; P = passes[n // 40]
        if j == kstart[n]:
            st(p, cfg, f"k{n}"); st(p, cfg, f"l{n - 40 * lastp}")
        a = P.acc + 16 * t; fr = FR + 4 * (j % NF); x = 4 * (n % 40)
        c = "0" if n % 40 == 0 else f"v[{a}:{a+15}]"
        for i in g["pre"]: p.add(i)
        p(f"v_mfma_f32_32x32x16_bf16 v[{a}:{a+15}], v[{fr}:{fr+3}], a[{x}:{x+3}], {c}")
        post = list(g["post"])
        if cfg["dma_last"] and g.get("dma"):
            d = post[0]; rest = post[1:]
            sal = [i for i in rest if i.kind == "salu"]; oth = [i for i in rest if i.kind != "salu"]
            if not any(i.kind in ("dma", "vld", "vst") or i.waits is not None and i.waits[0] is not None for i in oth) and not g.get("salu_before"):
                post = oth + [d] + sal
        if cfg.get("nodma") and n >= 40: post = [I("s_nop 0") if i.kind == "dma" else i for i in post]
        if cfg.get("notrans") and n >= 40: post = [I(i.text.replace("v_exp_f32", "v_mov_b32").replace("v_rcp_f32", "v_mov_b32")) if i.kind == "trans" else i for i in post]
        if cfg.get("novalu") and n >= 40: post = [i for i in post if i.kind not in ("valu", "trans")]
        if cfg.get("nost") and n >= 40: post = [i for i in post if i.kind != "vst"]
        if cfg.get("nobar") and n >= 40: post = [i for i in post if i.kind != "barrier"]
        if n % 4 == 0:
            d = A_CS + 4 * t
            cm = I(f"v_mfma_f32_16x16x32_bf16 a[{d}:{d+3}], v[{V_SEL}:{V_SEL+3}], v[{fr}:{fr+3}], " + ("0" if n % 40 == 0 else f"a[{d}:{d+3}]"))
            k = len(post); u = sum(cost(i) for i in gaps[j + 1]["pre"]) if j + 1 < M else 0
            tot = sum(cost(i) for i in post)
            while k > 0 and not g["lock"] and tot > cfg["cap"] and u + cost(post[k - 1]) <= 9 and post[k - 1].kind != "mfma":
                k -= 1; u += cost(post[k]); tot -= cost(post[k])
            post.insert(k, cm)
        for i in post: p.add(i)
    for i in wleft: p.add(i)

def step_off(step, dst, tmp, bases, stride):
    if step < 6: r, i, n, b = S_RE, step, f"s{S_NE}", bases[0]
    elif step < 14: r, i, n, b = S_RL, step - 6, 8, bases[1]
    else: r, i, n, b = S_RO, step - 14, 5, bases[2]
    o = [f"s_add_u32 s{dst}, s{r}, {i}"]
    if n == 8: o.append(f"s_and_b32 s{dst}, s{dst}, 7")
    else: o += [f"s_sub_u32 s{tmp}, s{dst}, {n}", f"s_min_u32 s{dst}, s{dst}, s{tmp}"]
    o += [f"s_mul_i32 s{dst}, s{dst}, {stride}", f"s_add_u32 s{dst}, s{dst}, s{b}"]
    if step in (4, 5): o += [f"s_cmp_lt_u32 s{S_W}, 3", f"s_cselect_b32 s{dst}, s{dst}, {OOB}"]
    return [I(x) for x in o]

def wload(step):
    a = WSLOT[step % 12]; o = []
    for nt in range(5):
        pc = step_off(step, S_WY, 64, (S_WE, S_WB, S_WO), 5120) if nt == 0 else []
        pc.append(I(f"buffer_load_dwordx4 a[{a+4*nt}:{a+4*nt+3}], v{V_L16 if nt < 4 else V_L16B}, s[{S_WS}:{S_WS+3}], s{S_WY} offen offset:{1024*(nt&3)} sc1", tag=("w2", step)))
        o.append(pc)
    return o

def wstage(step):
    o = []
    for nt in range(5):
        pc = []
        if nt == 0: pc += step_off(step, S_W2, 64, (S_WE, S_WB, S_WO), 5120) + [I(f"s_add_u32 m0, s{S_LW}, {WST[step]}")]
        if nt == 4: pc += [I(f"s_add_u32 m0, s{S_LW}, {WST[step]+4096}")]
        pc.append(I(f"buffer_load_dwordx4 v{V_L16 if nt < 4 else V_L16B}, s[{S_WS}:{S_WS+3}], s{S_W2} offen offset:{1024*(nt&3)} sc1 lds", tag=("wl", step)))
        o.append(pc)
    return o

def sample_check(name, n, regs):
    if n == 2: c = f"v_xor_b32 v{V_PF}, v{V_PF}, v{V_TAG}\n    v_xor_b32 v{V_PF+1}, v{V_PF+1}, v{V_TAG}\n    v_or_b32 v{V_PF}, v{V_PF}, v{V_PF+1}\n    v_cmp_ne_u32 vcc, 0, v{V_PF}"
    else: c = f"v_cmp_ne_u32 vcc, v{V_PF}, v{V_TAG}"
    blob = I(f"v_xor_b32 v{V_PF}, v{V_PF}, v{V_TAG}")
    blob.text = c + "\n    s_nop 3\n    " + ("s_cmp_eq_u32 s2, 999" if FORCE_FB[0] else "s_cmp_eq_u64 vcc, 0") + "\n" + "\n".join(f"    s_cselect_b32 s{r}, s{r}, {OOB}" for r in regs)
    blob.mn = "v_pk_samp"
    return [mkwait(vm=("poll", name)), blob]

SLOW = []
SLEEP = [4]
FORCE_FB = [0]
def flag_store(sreg, vt=V_TAG, vf=V_F0):
    return I(f"buffer_store_dword v{vt}, v{vf}, s[{S_WS}:{S_WS+3}], s{sreg} offen sc1")
def poll_load(name, sreg, n=1, regs=None):
    pf, pa, _ = regs or (V_PF, V_PA, V_TAG)
    r = f"v{pf}" if n == 1 else f"v[{pf}:{pf+1}]"
    return I(f"buffer_load_dword{'' if n == 1 else 'x2'} {r}, v{pa}, s[{S_WS}:{S_WS+3}], s{sreg} offen sc1", tag=("poll", name))
def poll_check(name, sreg, n=1, pending=(), regs=None):
    pf, pa, tg = regs or (V_PF, V_PA, V_TAG)
    c = f"v_cmp_ne_u32 vcc, v{pf + n - 1}, v{tg}"
    blob = I(f"v_xor_b32 v{V_PF}, v{V_PF}, v{V_TAG}")
    blob.text = f"s_nop 0\nP_{name}_chk:\n    {c}\n    s_nop 4\n    s_cbranch_vccnz P_{name}_slow\nP_{name}_done:"
    blob.mn = "v_pk_blob"
    o = [mkwait(vm=("poll", name)), blob]
    t = f"P_{name}_slow:\n"
    if pending:
        t += "    s_waitcnt vmcnt(0)\n" + "".join("    " + flag_store(r).text + "\n" for r in pending)
    t += f"    s_cmp_eq_u32 s{S_SPIN}, 0\n    s_cbranch_scc1 P_{name}_done\n    s_sub_u32 s{S_SPIN}, s{S_SPIN}, 1\n    s_sleep {SLEEP[0]}\n"
    t += "    " + poll_load(name, sreg, n, regs).text + f"\n    s_waitcnt vmcnt(0)\n    s_branch P_{name}_chk\n"
    SLOW.append(t)
    return o

def epi_gu(acc, sst, T, halves=(0, 1), tag=None):
    o = []
    for half in halves:
        for b in range(2):
            out = T + 16 + 4 * (b & 1)
            for pr in range(2):
                el = [8 * b + 4 * pr + e for e in range(4)]
                g = [acc + 16 * half + r for r in el]; u = [acc + 32 + 16 * half + r for r in el]
                t = [T + 8 * (1 - half) * 0 + (0 if half == 0 else 4) + 8 * pr + e for e in range(4)]
                for e in range(4): o.append(f"v_mul_f32 v{t[e]}, v{g[e]}, v{g[e]}")
                for e in range(4): o.append(f"v_fma_f32 v{t[e]}, v{t[e]}, v{V_C1}, v{V_C0}")
                for e in range(4): o.append(f"v_mul_f32 v{t[e]}, v{t[e]}, v{g[e]}")
                for e in range(4):
                    o.append(f"v_exp_f32 v{t[e]}, v{t[e]}")
                    o.append(f"v_mul_f32 v{u[e]}, v{g[e]}, v{u[e]}")
                for e in range(4): o.append(f"v_fma_f32 v{t[e]}, v{t[e]}, v{V_IR2}, v{V_IR2}")
                for e in range(4): o.append(f"v_rcp_f32 v{t[e]}, v{t[e]}")
                for e in range(4): o.append(f"v_mul_f32 v{u[e]}, v{u[e]}, v{t[e]}")
                o.append(f"v_cvt_pk_bf16_f32 v{out+2*pr}, v{u[0]}, v{u[1]}")
                o.append(f"v_cvt_pk_bf16_f32 v{out+2*pr+1}, v{u[2]}, v{u[3]}")
            o.append(I(f"buffer_store_dwordx4 v[{out}:{out+3}], v{V_L16}, s[{S_WS}:{S_WS+3}], s{sst} offen offset:{(4*half+2*b)*512} sc1", tag=tag))
    return o

def epi_gu_pk(acc, sst, T, blocks, tag):
    o = []
    pr2 = lambda r: f"v[{r}:{r+1}]"
    for (half, b, pr) in blocks:
        out = T + 16 + 4 * (b & 1)
        g = acc + 16 * half + 8 * b + 4 * pr; u = g + 32; t = T + (0 if half == 0 else 4) + 8 * pr
        for e in (0, 2): o.append(f"v_pk_mul_f32 {pr2(t+e)}, {pr2(g+e)}, {pr2(g+e)}")
        for e in (0, 2): o.append(f"v_pk_fma_f32 {pr2(t+e)}, {pr2(t+e)}, {pr2(V_C0)}, {pr2(V_C0)} op_sel:[0,1,0] op_sel_hi:[1,1,0]")
        for e in (0, 2): o.append(f"v_pk_mul_f32 {pr2(t+e)}, {pr2(t+e)}, {pr2(g+e)}")
        for e in range(4): o.append(f"v_exp_f32 v{t+e}, v{t+e}")
        for e in (0, 2): o.append(f"v_pk_mul_f32 {pr2(u+e)}, {pr2(g+e)}, {pr2(u+e)}")
        for e in (0, 2): o.append(f"v_pk_fma_f32 {pr2(t+e)}, {pr2(t+e)}, {pr2(V_IR2)}, {pr2(V_IR2)} op_sel_hi:[1,0,0]")
        for e in range(4): o.append(f"v_rcp_f32 v{t+e}, v{t+e}")
        for e in (0, 2): o.append(f"v_pk_mul_f32 {pr2(u+e)}, {pr2(u+e)}, {pr2(t+e)}")
        o.append(f"v_cvt_pk_bf16_f32 v{out+2*pr}, v{u}, v{u+1}")
        o.append(f"v_cvt_pk_bf16_f32 v{out+2*pr+1}, v{u+2}, v{u+3}")
        if pr == 1: o.append(I(f"buffer_store_dwordx4 v[{out}:{out+3}], v{V_L16}, s[{S_WS}:{S_WS+3}], s{sst} offen offset:{(4*half+2*b)*512} sc1", tag=tag))
    return o

def epi_q(acc, sst, T):
    o = []
    for t in range(4):
        for b in range(2):
            out = T + 4 * ((2 * t + b) & 3)
            for e in range(8): o.append(f"v_mul_f32 v{acc+16*t+8*b+e}, v{V_RL}, v{acc+16*t+8*b+e}")
            for e in range(4): o.append(f"v_cvt_pk_bf16_f32 v{out+e}, v{acc+16*t+8*b+2*e}, v{acc+16*t+8*b+2*e+1}")
            o.append(I(f"buffer_store_dwordx4 v[{out}:{out+3}], v{V_L16}, s[{S_WS}:{S_WS+3}], s{sst + (t>>1)} offen offset:{(4*(t&1)+2*b)*512} sc1", tag="qst"))
    return o

def std_fillers(passes, epis, cfg):
    f = []
    last = len(passes) - 1
    for pi, P in enumerate(passes):
        tiles = list(range(P.nT))
        f.append((("m", ("csdone", pi), 1), ("m", ("csbar", pi), 0), mk(cs_publish(P.nT, pi), cfg)))
        if pi < last:
            f.append((("m", ("passend", pi), -2), ("m", ("passend", pi), 1), cs_read(tiles, pi)))
            f.append((("m", ("passend", pi), 3), ("m", ("passend", pi), 5), mk(cs_apply(tiles, P.acc, pi), cfg)))
            st = ("m", ("passend", pi), 7)
            for (end, nxt, items) in epis[pi]:
                f.append((st, end, mk(items, cfg))); st = nxt
        else:
            f.append((("m", ("csbar", pi), 1), ("m", ("csbar", pi), 2), cs_read(tiles, pi)))
    return f


def tail_fill(passes, cfg):
    pi = len(passes) - 1
    e0 = mk(epi_gu(ACCA, S_ST + 2, V_T, (0,)), cfg)
    return [(("m", "pair0done", 0), ("m", "pair0done", 1), mk(cs_apply([0, 2], ACCA, pi), cfg)),
            (("m", "pair0done", 3), ("end", 0), e0[:34 * cfg["tail_b"]])]

S_FHE, S_FHL, S_FO = 43, 47, 28
S_PQ, S_PKV, S_PH, S_PW = 36, 79, 51, 37
S_PAIR, S_TGO, S_RB64, S_CB = 52, 53, 54, 55
S_A, S_B, S_HS = 76, 57, 59

def sync_setup(typ, cfg):
    T = S_T
    o = [f"v_mov_b32 v{V_TAG}, s{S_TAG}", f"v_mov_b32 v{V_F0}, {OOB}", f"v_cmp_eq_u32 vcc, 0, v{V_L16}", f"v_add_u32 v{V_L16B}, 4096, v{V_L16}",
         f"v_accvgpr_read_b32 v{V_PA}, a{A_PW}", f"v_cndmask_b32 v{V_F0}, v{V_F0}, v{V_L16}, vcc", flag_store(S_FS)]
    return o

def wflag_addr(q, d, t, st_):
    q(f"v_lshrrev_b32 v{t}, 4, v{V_L16}\nv_min_u32 v{t}, 18, v{t}")
    q(f"s_mul_i32 s{st_}, s{S_W}, 6\nv_add_u32 v{d}, s{st_}, v{t}\nv_min_u32 v{d}, 21, v{d}\nv_add_u32 v{d}, 20, v{d}")
    q(f"s_lshl_b32 s{st_}, s{S_W}, 3\ns_add_u32 s{st_}, s{st_}, 36\nv_add_u32 v{t+1}, s{st_}, v{t}\nv_cmp_lt_u32 vcc, 5, v{t}\nv_cndmask_b32 v{d}, v{d}, v{t+1}, vcc")
    q(f"s_mul_i32 s{st_}, s{S_W}, 5\ns_sub_u32 s{st_}, s{st_}, 14\nv_add_u32 v{t+1}, s{st_}, v{t}\nv_cmp_lt_u32 vcc, 13, v{t}\nv_cndmask_b32 v{d}, v{d}, v{t+1}, vcc")
    q(f"v_lshlrev_b32 v{d}, 7, v{d}")
def wbases(q, cbreg):
    q(f"s_mul_i32 s{S_WO}, s{cbreg}, {74*5120}\ns_add_u32 s{S_WO}, s{S_WO}, {W2P}")
    q(f"s_mul_i32 s{S_WE}, s{S_LW}, 6\ns_add_u32 s{S_WE}, s{S_WE}, s{S_WO}\ns_add_u32 s{S_WE}, s{S_WE}, {20*5120}")
    q(f"s_lshl_b32 s{S_WB}, s{S_LW}, 3\ns_add_u32 s{S_WB}, s{S_WB}, s{S_WO}\ns_add_u32 s{S_WB}, s{S_WB}, {42*5120}")
    q(f"s_mul_i32 s{cbreg}, s{S_LW}, 5\ns_add_u32 s{S_WO}, s{S_WO}, s{cbreg}")
def kvflag_addr(d):
    return f"v_bfe_u32 v{d}, v{V_L16}, 6, 3\nv_lshlrev_b32 v{d}, 7, v{d}\nv_bfe_u32 v{V_PF+1}, v{V_L16}, 4, 2\nv_lshl_add_u32 v{d}, v{V_PF+1}, 2, v{d}"

def wpoll(typ):
    a = [poll_load("w" + typ, S_PW)]
    b = sample_check("w" + typ, 1, (S_WB, S_WE, S_WO))
    c = [f"v_lshrrev_b32 v{V_PA}, 2, v{V_L16}", f"v_min_u32 v{V_PA}, 16, v{V_PA}"]
    return a, b, c

S_KVB = 77
def common(cfg):
    p = Prog(); T = S_T
    bg = []; clock = [0.0]
    def fg(items, gap=None):
        gap = gap or cfg["bg_gap"]
        for i in mk(items, cfg):
            p.add(i)
            clock[0] += 32 if (i.kind == "mfma" and i.passes == 8) else max(cost(i), 0)
            if i.kind in ("vld", "vst", "dma"): clock[0] = min(clock[0], gap) - gap
            if bg and clock[0] >= gap:
                for x in bg.pop(0): p.add(x)
                clock[0] = 0
    def flush(tagpred):
        idx = [k for k, pc in enumerate(bg) if any(tagpred(x.tag) for x in pc)]
        if idx:
            for _ in range(idx[-1] + 1):
                for x in bg.pop(0): p.add(x)
            clock[0] = 0
    p.label("KP_join")
    mark = I("s_nop 0", tag="prejoin"); mark.kind = "vst"; p.add(mark)
    mark = I("s_nop 0", tag="prejoinl"); mark.kind = "dsw"; p.add(mark)
    st(p, cfg, "join")
    VT4, VKV, VKW, VCT = 208, 214, 213, 212
    p.wait(lgkm="prejoinl")
    a = ACCA + 16
    p(f"v_mfma_f32_32x32x16_bf16 v[{a}:{a+15}], v[{V_T+4}:{V_T+7}], v[{V_MEAN}:{V_MEAN+3}], v[{a}:{a+15}]")
    p("s_barrier")
    p(f"buffer_load_dwordx4 v[172:175], v{V_L16}, s[{S_WS}:{S_WS+3}], s{S_A} offen sc1", tag="q")
    p(f"v_add_u32 v{VCT}, {CT}, v{V_L16}")
    a = ACCA + 48
    p(f"v_mfma_f32_32x32x16_bf16 v[{a}:{a+15}], v[{V_T+12}:{V_T+15}], v[{V_MEAN}:{V_MEAN+3}], v[{a}:{a+15}]")
    for i in range(3): p(f"ds_read_b128 v[{160+4*i}:{163+4*i}], v{VCT} offset:{1024*i}", tag="ct")
    p(f"v_and_b32 v{VT4}, 0x1f0, v{V_L16}\ns_lshl_b32 s{T}, s{S_W}, 10\nv_add_u32 v{VKW}, s{T}, v{V_L16}\nv_mov_b32 v{VKV}, {OOB}\nv_cmp_gt_u32 vcc, 3360, v{VKW}")
    p(f"buffer_load_dwordx4 v[176:179], v{V_L16}, s[{S_WS}:{S_WS+3}], s{S_A} offen offset:1024 sc1", tag="q")
    p(f"v_cndmask_b32 v{VKV}, v{VKV}, v{VKW}, vcc")
    bg.append([I(f"buffer_load_dwordx4 v[180:183], v{VT4}, s[{S_WS}:{S_WS+3}], s{S_A} offen offset:2048 sc1", tag="q")])
    def kvloads(tagged):
        o = []
        for r in range(16):
            pc = [I(f"s_lshr_b32 s50, s2, 4"), I(f"s_add_u32 s50, s50, {r}"), I(f"s_and_b32 s50, s50, 15"), I(f"s_mul_i32 s50, s50, {KVP_STRIDE}")] if (r == 0 or cfg["rkv"]) else []
            if not cfg["rkv"]: pc = [I(f"s_mov_b32 s50, {r*KVP_STRIDE}")]
            pc += [I(f"s_add_u32 s50, s50, s{S_KVB}"), I(f"buffer_load_dwordx4 v[{80+4*r}:{83+4*r}], v{VKV}, s[{S_WS}:{S_WS+3}], s50 offen sc1", tag=("kv", r) if tagged else None)]
            o.append(pc)
        return o
    bg += kvloads(True) + wload(11)
    for stp in range(14, 19): bg += wstage(stp)
    blocks = [(h, b, pr) for h in range(2) for b in range(2) for pr in range(2)][cfg["tail_b"]:]
    tl = mk(epi_gu_pk(ACCA, S_ST + 2, V_T, blocks, "hl"), cfg)
    k1 = [k for k, i in enumerate(tl) if i.kind == "vst"][0]
    fg(tl[:k1]); flush(lambda t: t == "q")
    k2 = k1 + 24
    fg(tl[k1:k2])
    fg([mkwait(lgkm="ct")] + [I(f"ds_read_b64_tr_b16 v[{184+2*k}:{185+2*k}], v{160+k}", tag="wp") for k in range(12)])
    k3 = len(tl) - cfg["he_pub"]
    fg(tl[k2:k3])
    fg([mkwait(vm="prejoin"), flag_store(S_FHE)])
    fg(tl[k3:])
    st(p, cfg, "t1")
    p.wait(vm="q", lgkm="wp")
    V_HA, V_OA = 148, 152
    sal = [I(f"ds_read_b128 v[216:219], v{VCT} offset:3072", tag="ct3"), I(f"ds_read_b128 v[220:223], v{VCT} offset:4096", tag="ct3")]
    sal += mk([f"s_lshr_b32 s{T+1}, s2, 3\ns_and_b32 s{T}, s2, 7\ns_and_b32 s{T+2}, s{T+1}, 3\ns_lshl_b32 s{S_RB64}, s{T}, 2\ns_add_u32 s{S_RB64}, s{S_RB64}, s{T+2}\ns_lshr_b32 s{S_CB}, s{T+1}, 2",
               f"s_mul_i32 s{T}, s{S_W}, 3\ns_min_u32 s{T}, s{T}, 5\ns_lshl_b32 s{S_PH}, s{S_RB64}, 4\ns_add_u32 s{S_PH}, s{S_PH}, s{T}\ns_lshl_b32 s{S_PH}, s{S_PH}, 7\ns_add_u32 s{S_PH}, s{S_PH}, {FLAGS+F_HE+1024}",
               f"v_bfe_u32 v156, v{V_L16}, 5, 2\nv_bfe_u32 v157, v{V_L16}, 2, 3\nv_min_u32 v{V_PA}, 2, v156\nv_lshl_add_u32 v{V_PA}, v{V_PA}, 7, v157\nv_lshl_add_u32 v156, v156, 7, v157",
               f"s_add_u32 s{S_B}, s{S_A}, {OF-QF}\ns_add_u32 s{S_FHL}, s{S_FHE}, {F_HL-F_HE}",
               f"s_mul_i32 s{S_A}, s{S_RB64}, {2*110592}\ns_add_u32 s{S_A}, s{S_A}, {HF}\ns_mul_i32 s{T}, s{S_W}, {6*2048}\ns_add_u32 s53, s{S_A}, s{T}\ns_lshl_b32 s{T}, s{S_W}, 14\ns_add_u32 s{S_A}, s{S_A}, s{T}\ns_add_u32 s{S_A}, s{S_A}, {22*2048}",
               f"s_mul_i32 s52, s{S_RB64}, 81920\ns_lshl_b32 s{T}, s{S_LW}, 1\ns_add_u32 s52, s52, s{T}\ns_add_u32 s52, s52, {OF}", mkwait(lgkm="ct3")], cfg)
    for tt in range(4):
        sal += mk([f"s_xor_b32 s{T}, s{S_W}, {tt}\ns_lshr_b32 s{T+1}, s{T}, 1\ns_and_b32 s{T}, s{T}, 1\ns_lshl_b32 s{T}, s{T}, 8",
                   f"s_mul_i32 s{T+2}, s{T+1}, 110592\ns_add_u32 s{T+2}, s{T+2}, s{T}\nv_add_u32 v{V_HA+tt}, s{T+2}, v220",
                   f"s_mul_i32 s{T+2}, s{T+1}, 40960\ns_add_u32 s{T+2}, s{T+2}, s{T}\nv_add_u32 v{V_OA+tt}, s{T+2}, v220"], cfg)
    for tau in range(2):
        for s_ in range(3):
            w = 184 + 4 * (s_ * 2 + tau); d = 16 * tau
            p(f"v_mfma_f32_32x32x16_bf16 v[{d}:{d+15}], v[{w}:{w+3}], v[{172+4*s_}:{175+4*s_}], " + ("0" if s_ == 0 else f"v[{d}:{d+15}]"))
            fg(sal[:7]); sal = sal[7:]
    fg(sal)
    RING = [224, 240, 160, 176, 192, 128, 80, 96, 112]
    S_HE, S_HO = 53, 52
    def aload(step):
        b = RING[step % 9]; o = []
        for tt in range(4):
            pc = step_off(step, S_HS, 64, (S_HE, S_A, S_HO), 2048) if tt == 0 else []
            pc.append(I(f"buffer_load_dwordx4 v[{b+4*tt}:{b+4*tt+3}], v{(V_HA if step < 14 else V_OA)+tt}, s[{S_WS}:{S_WS+3}], s{S_HS} offen sc1", tag=("act", step)))
            o.append(pc)
        return o
    sm = softmax_pair_pk(0, 32, 60, 52)
    k = cfg["he_samp"]
    fg(sm[:k]); flush(lambda t: isinstance(t, tuple) and t[0] == "kv")
    fg([poll_load("he", S_PH)])
    fg(sm[k:])
    st(p, cfg, "sm")
    fg([mkwait(vm="hl"), flag_store(S_FHL)])
    st(p, cfg, "hlpub")
    issued_w = [stp for stp in range(11, 19) if not any(x.tag in (("w2", stp), ("wl", stp)) for pc in bg for x in pc)]
    part = [stp for stp in range(11, 19) if stp not in issued_w and len([pc for pc in bg if any(x.tag in (("w2", stp), ("wl", stp)) for x in pc)]) < 5]
    for stp in part: flush(lambda t: t in (("w2", stp), ("wl", stp)))
    issued_w = sorted(issued_w + part)
    assert 11 in issued_w
    blob = I("s_cmp_eq_u32 s2, s2")
    blob.text = f"s_cmp_ge_u32 s{S_KVB}, {OOB}\n    s_cbranch_scc1 FB_kv\nFB_kv_done:\n    s_cmp_ge_u32 s{S_WB}, {OOB}\n    s_cbranch_scc1 FB_w\nFB_w_done:"
    p.add(blob)
    def spin(name, ld, cmpx):
        return (f"FB_{name}_l:\n    {ld}\n    s_waitcnt vmcnt(0)\n{cmpx}    s_nop 4\n    s_cbranch_vccz FB_{name}_go\n    s_cmp_eq_u32 s{S_SPIN}, 0\n    s_cbranch_scc1 FB_{name}_go\n"
                f"    s_sub_u32 s{S_SPIN}, s{S_SPIN}, 1\n    s_sleep {SLEEP[0]}\n    s_branch FB_{name}_l\nFB_{name}_go:\n")
    q = Prog()
    q(f"s_and_b32 s{T}, s2, 7\ns_lshl_b32 s{T}, s{T}, 1\ns_bfe_u32 s{T+1}, s2, 0x10003\ns_add_u32 s{T}, s{T}, s{T+1}\ns_mul_i32 s{S_KVB}, s{T}, {16*KVP_STRIDE}\ns_add_u32 s{S_KVB}, s{S_KVB}, {KVP}")
    for pc in kvloads(False):
        for x in pc: q.add(x)
    SLOW.append("FB_kv:\n    " + kvflag_addr(56).replace("\n", "\n    ") + "\n" + spin("kv", f"buffer_load_dword v57, v56, s[{S_WS}:{S_WS+3}], s{S_PKV} offen sc1", f"    v_cmp_ne_u32 vcc, v57, v{V_TAG}\n")
                + finalize(q.ins) + "    s_waitcnt vmcnt(0)\n    s_branch FB_kv_done\n")
    q = Prog()
    q(f"s_mov_b32 s{T}, s{S_CB}"); wbases(q, T)
    for stp in range(12):
        for pc in wload(stp):
            for x in pc: q.add(x)
    for stp in issued_w:
        if stp >= 12:
            for pc in wstage(stp):
                for x in pc: q.add(x)
    q0 = Prog(); wflag_addr(q0, 56, 58, T)
    SLOW.append("FB_w:\n" + finalize(q0.ins) + spin("w", f"buffer_load_dword v57, v56, s[{S_WS}:{S_WS+3}], s{S_PW} offen sc1", f"    v_cmp_ne_u32 vcc, v57, v{V_TAG}\n")
                + finalize(q.ins) + "    s_waitcnt vmcnt(0)\n    s_branch FB_w_done\n")
    for i in poll_check("he", S_PH): p.add(i)
    st(p, cfg, "hepoll")
    bg[:0] = [pc for i in range(5) for pc in aload(i)]
    clock[0] = 1e9
    red = ["v_mov_b32 v210, 0x00003f80\nv_mov_b32 v211, 0x3f800000"] + [f"v_mov_b32 v{32+e}, 0" for e in range(8)]
    for r in range(16):
        red.append(mkwait(vm=("kv", r)))
        for e in range(4): red.append(f"v_dot2c_f32_bf16 v{32+2*e}, v{80+4*r+e}, v210\nv_dot2c_f32_bf16 v{33+2*e}, v{80+4*r+e}, v211")
    for e in range(4): red.append(f"v_cvt_pk_bf16_f32 v{40+e}, v{32+2*e}, v{33+2*e}")
    red.append(f"v_min_u32 v{VKW}, {3584-16}, v{VKW}\nv_add_u32 v{VKW}, {KVL}, v{VKW}\nds_write_b128 v{VKW}, v[40:43]")
    fg(red, cfg["bg_gap2"])
    st(p, cfg, "red")
    k = max([k for k, pc in enumerate(bg) if pc[-1].tag == ("act", 4)], default=-1)
    bg[k + 1:k + 1] = aload(5)
    p.wait(lgkm=0)
    p("s_barrier")
    st(p, cfg, "b2")
    for s_ in range(5):
        for tau in range(2):
            p(f"ds_read_b128 v[{80+8*s_+4*tau}:{83+8*s_+4*tau}], v{216+tau} offset:{336*s_}", tag=("a", s_))
    om = []
    for s_ in range(5):
        om.append(mkwait(lgkm=("a", s_)))
        for tau in range(2):
            d = 16 * tau
            om.append(f"v_mfma_f32_32x32x16_bf16 v[{d}:{d+15}], v[{80+8*s_+4*tau}:{83+8*s_+4*tau}], v[{60+4*s_}:{63+4*s_}], " + ("0" if s_ == 0 else f"v[{d}:{d+15}]"))
    om.append(f"v_mov_b32 v{V_PA}, v156\ns_lshl_b32 s{S_PH}, s{S_RB64}, 2\ns_add_u32 s{S_PH}, s{S_PH}, s{S_W}\ns_lshl_b32 s{S_PH}, s{S_PH}, 9\ns_add_u32 s{S_PH}, s{S_PH}, {FLAGS+F_HL}\nv_add_u32 v211, s{S_LW}, v{V_L16}\nv_add_u32 v210, 81920, v211")
    om.append(f"s_mov_b32 s{S_G}, s30\ns_mov_b32 s{S_G+1}, s31\ns_mov_b32 s{S_G+2}, {X_SZ}")
    om.append(f"v_add_f32 v20, {fx(1e-6)}, v20\nv_rcp_f32 v20, v20\ns_nop 0")
    for e in range(0, 20, 2): om.append(f"v_pk_mul_f32 v[{e}:{e+1}], v[{e}:{e+1}], v[20:21] op_sel_hi:[1,0]")
    for e in range(10): om.append(f"v_cvt_pk_bf16_f32 v{100+e}, v{2*e}, v{2*e+1}")
    fg(om, cfg["bg_gap2"])
    flush(lambda t: isinstance(t, tuple) and t[0] == "act" and t[1] < cfg["early_pre"])
    p(f"buffer_store_dwordx4 v[100:103], v218, s[{S_WS}:{S_WS+3}], s{S_B} offen sc1", tag="ost")
    p(f"buffer_store_dwordx4 v[104:107], v218, s[{S_WS}:{S_WS+3}], s{S_B} offen offset:512 sc1", tag="ost")
    p(f"buffer_store_dwordx2 v[108:109], v219, s[{S_WS}:{S_WS+3}], s{S_B} offen offset:1024 sc1", tag="ost")
    st(p, cfg, "ost")
    SACC = 80
    def wmove(stp):
        a = WSLOT[stp % 12]; off = WST[stp]
        r, off = (210, off - 81920) if off >= 81920 else ((211, off) if off < 61440 else (215, off - 61440))
        o = [[I(f"ds_read_b128 a[{a+4*nt}:{a+4*nt+3}], v{r} offset:{off+1024*nt}", tag=("wm", stp))] for nt in range(5)]
        if stp >= 14: o[0].insert(0, mkwait(vm=("wl", stp)))
        return o
    def step(i, extra, nbg):
        b = RING[i % 9]; a = WSLOT[i % 12]
        flush(lambda t: t == ("act", i))
        p.wait(vm=[("act", i)] + ([("w2", i)] if i == 11 else []), lgkm=(("wm", i) if i >= 12 else None))
        st(p, cfg, f"s{i}")
        k = 0; kb = 0
        for tt in range(4):
            for nt in range(5):
                c = 4 * (5 * tt + nt)
                dreg = f"v[{c}:{c+3}]" if i < 14 else f"a[{SACC+c}:{SACC+c+3}]"
                p(f"v_mfma_f32_16x16x32_bf16 {dreg}, a[{a+4*nt}:{a+4*nt+3}], v[{b+4*tt}:{b+4*tt+3}], " + ("0" if i in (0, 14) else dreg))
                m = 5 * tt + nt
                if bg and kb < nbg and kb * 20 <= m * nbg:
                    t0 = bg[0][-1].tag
                    if not (isinstance(t0, tuple) and t0[0] == "act" and t0[1] - 9 >= i):
                        for x in bg.pop(0): p.add(x)
                        kb += 1
                while k < len(extra) and k * 19 <= m * len(extra):
                    for x in extra[k]: p.add(x)
                    k += 1
    XW, XR_ = 156, 216
    xa = [[I(f"v_add_u32 v215, 61440, v211")]]
    for tt in range(1, 4):
        xa.append([I(f"s_xor_b32 s{T+4}, s{S_W}, {tt}"), I(f"s_mul_i32 s{T+4}, s{T+4}, 15360"), I(f"s_add_u32 s{T+4}, s{T+4}, {5120*(tt-1)}"), I(f"v_add_u32 v{[156,157,213][tt-1]}, s{T+4}, v{V_L16}")])
    XWR = [156, 157, 213]
    xa.append([I(f"s_mul_i32 s{T+4}, s{S_W}, 15360"), I(f"v_add_u32 v214, s{T+4}, v{V_L16}")])
    xa.append([I(f"ds_read_b128 v[216:219], v{VCT} offset:5120", tag="ct5")])
    xa.append([I(f"s_lshl_b32 s{S_B}, s{S_RB64}, 2"), I(f"s_add_u32 s{S_B}, s{S_B}, s{S_W}"), I(f"s_mul_i32 s{S_B}, s{S_B}, 20480")])
    xa.append([I(f"s_mul_i32 s{T+4}, s{S_CB}, 160"), I(f"s_add_u32 s{S_B}, s{S_B}, s{T+4}"), I(f"s_mul_i32 s{T+4}, s{S_W}, {20*FT_S}")])
    xa.append([mkwait(lgkm="ct5")] + [I(f"v_add_u32 v{216+u}, s{T+4}, v{216+u}") for u in range(4)])
    hls, os_ = cfg["hl_step"], cfg["o_poll"]
    wm_at = cfg["wm_at"]
    XD = RING[12 % 9]
    assert XD not in [RING[k % 9] for k in range(13, 19)]
    yw = [[I(f"ds_write_b128 v{XWR[tt-1]}, v[{4*(5*tt+nt)}:{4*(5*tt+nt)+3}] offset:{1024*nt}")] for tt in range(1, 4) for nt in range(5)]
    for i in range(19):
        ex = []
        if i == hls:
            st(p, cfg, "yearly")
            for x in poll_check("hl", S_PH, pending=() if cfg["fo_step"] < hls else (S_FO,)): p.add(x)
            st(p, cfg, "hlpoll")
            p(f"s_add_u32 s{S_PH}, s{S_PH}, {F_O-F_HL}")
            flush(lambda t: isinstance(t, tuple) and t[0] == "act")
            bg[:0] = [pc for j in range(6, 14) for pc in aload(j)]
            for _ in range(cfg["late_burst"]):
                for x in bg.pop(0): p.add(x)
        if i == os_:
            p.wait(lgkm=[("wm", k) for k in range(12, 19)])
            p("s_barrier")
            for x in poll_check("o", S_PH): p.add(x)
            flush(lambda t: isinstance(t, tuple) and t[0] == "act")
            bg[:0] = [pc for j in range(14, 19) for pc in aload(j)]
        for k, at in enumerate(wm_at):
            if at == i:
                assert at > k
                flush(lambda t: t == ("wl", 12 + k))
                ex += wmove(12 + k)
        if i == 0: ex += xa
        if i == cfg["fo_step"]: ex = ex + [[mkwait(vm="ost"), flag_store(S_FO)]]
        if i == hls - 1: ex = [[poll_load("hl", S_PH)]] + ex
        if i == os_ - 1: ex = [[poll_load("o", S_PH)]] + ex
        if i == 14:
            st(p, cfg, "ylate")
            bg += [[I(f"buffer_load_dwordx4 v[{XD+4*u}:{XD+4*u+3}], v{221+u}, s[{S_X}:{S_X+3}], s{S_B} offen", tag="x")] for u in range(3)]
        if i >= 15: ex += yw[4*(i-15):4*(i-15)+4]
        step(i, ex, cfg["p2_rate"])
    assert not bg
    st(p, cfg, "sdone")
    for tt in range(1, 4): p(f"v_add_u32 v{XWR[tt-1]}, 61440, v{XWR[tt-1]}")
    for tt in range(1, 4):
        for nt in range(5):
            c = SACC + 4 * (5 * tt + nt)
            p(f"ds_write_b128 v{XWR[tt-1]}, a[{c}:{c+3}] offset:{1024*nt}")
    for e in range(20): p(f"v_accvgpr_read_b32 v{224+e}, a{SACC+e}")
    p(f"v_add_u32 v215, 61440, v214")
    p.wait(lgkm=0)
    p("s_barrier")
    st(p, cfg, "b4")
    for nt in range(5):
        for src in range(3): p(f"ds_read_b128 v[{20+12*nt+4*src}:{23+12*nt+4*src}], v214 offset:{5120*src+1024*nt}", tag=("fy", nt))
    for nt in range(5):
        p.wait(lgkm=("fy", nt))
        b = 20 + 12 * nt; y = 4 * nt
        for src in range(3):
            p(f"v_pk_add_f32 v[{y}:{y+1}], v[{y}:{y+1}], v[{b+4*src}:{b+4*src+1}]\nv_pk_add_f32 v[{y+2}:{y+3}], v[{y+2}:{y+3}], v[{b+4*src+2}:{b+4*src+3}]")
        for src in range(3): p(f"ds_read_b128 v[{80+12*nt+4*src}:{83+12*nt+4*src}], v215 offset:{5120*src+1024*nt}", tag=("fs", nt))
        for e in range(4): p(f"v_mul_f32 v{b+e}, {fx(-LOG2E)}, v{y+e}")
        for e in range(4): p(f"v_exp_f32 v{b+e}, v{b+e}")
        for e in range(4): p(f"v_add_f32 v{b+e}, 1.0, v{b+e}")
        for e in range(4): p(f"v_rcp_f32 v{b+e}, v{b+e}")
        p(f"v_pk_mul_f32 v[{y}:{y+1}], v[{y}:{y+1}], v[{b}:{b+1}]\nv_pk_mul_f32 v[{y+2}:{y+3}], v[{y+2}:{y+3}], v[{b+2}:{b+3}]")
    for nt in range(5):
        p.wait(lgkm=("fs", nt))
        b = 80 + 12 * nt; s0 = 224 + 4 * nt; y = 4 * nt
        for src in range(3):
            p(f"v_pk_add_f32 v[{s0}:{s0+1}], v[{s0}:{s0+1}], v[{b+4*src}:{b+4*src+1}]\nv_pk_add_f32 v[{s0+2}:{s0+3}], v[{s0+2}:{s0+3}], v[{b+4*src+2}:{b+4*src+3}]")
        p(f"v_pk_mul_f32 v[{y}:{y+1}], v[{y}:{y+1}], v[{s0}:{s0+1}]\nv_pk_mul_f32 v[{y+2}:{y+3}], v[{y+2}:{y+3}], v[{s0+2}:{s0+3}]")
        p(f"v_cvt_pk_bf16_f32 v{y}, v{y}, v{y+1}\nv_cvt_pk_bf16_f32 v{y+1}, v{y+2}, v{y+3}")
        p(f"ds_write_b64 v219, v[{y}:{y+1}] offset:{32*nt}", tag="ft")
    p("v_mov_b32 v60, 0xffff0000")
    p.wait(lgkm="ft")
    for u in range(3): p(f"ds_read_b128 v[{20+4*u}:{23+4*u}], v{216+u}", tag=("fr", u))
    p.wait(vm="x")
    for u in range(3):
        for e in range(4):
            x = XD + 4 * u + e
            p(f"v_lshlrev_b32 v{80+8*u+2*e}, 16, v{x}\nv_and_b32 v{81+8*u+2*e}, v60, v{x}")
    for u in range(3):
        p.wait(lgkm=("fr", u))
        for e in range(4):
            a = 20 + 4 * u + e; t = 40 + 2 * e
            p(f"v_lshlrev_b32 v{t}, 16, v{a}\nv_and_b32 v{t+1}, v60, v{a}")
        for e in range(4): p(f"v_pk_add_f32 v[{40+2*e}:{41+2*e}], v[{40+2*e}:{41+2*e}], v[{80+8*u+2*e}:{81+8*u+2*e}]")
        for e in range(4): p(f"v_cvt_pk_bf16_f32 v{20+4*u+e}, v{40+2*e}, v{41+2*e}")
        p(f"buffer_store_dwordx4 v[{20+4*u}:{23+4*u}], v{221+u}, s[{S_G}:{S_G+3}], s{S_B} offen")
    if cfg.get("stamps"):
        p.add(stamp(8)); p.add(stamp(9, True)); stamp_flush(p, 1, S_WS, S_W)
    p(f"s_or_b32 s{T}, s2, s{S_W}\ns_cmp_lg_u32 s{T}, 0\ns_cbranch_scc1 KP_end")
    txt = finalize(p.ins, True)
    txt += f"""    s_mov_b32 s{T}, {FLAGS+F_S}
    v_mov_b32 v17, s{S_TAG}
KP_ep:
"""
    for i in range(1): txt += f"    buffer_load_dwordx4 v[{64+4*i}:{64+4*i+3}], v{V_L16}, s[{S_WS}:{S_WS+3}], s{T} offen offset:{1024*i} sc1\n"
    txt += "    s_waitcnt vmcnt(0)\n    v_mov_b32 v16, 0\n"
    for i in range(4): txt += f"    v_xor_b32 v{64+i}, v{64+i}, v17\n    v_or_b32 v16, v16, v{64+i}\n"
    txt += f"""    v_cmp_ne_u32 vcc, 0, v16
    s_nop 4
    s_cbranch_vccz KP_ep2
    s_cmp_eq_u32 s{S_SPIN}, 0
    s_cbranch_scc1 KP_end
    s_sub_u32 s{S_SPIN}, s{S_SPIN}, 1
    s_sleep 1
    s_branch KP_ep
KP_ep2:
    s_mov_b32 s{T}, {FLAGS+F_E}
    v_mov_b32 v16, 0
    buffer_store_dword v17, v16, s[{S_WS}:{S_WS+3}], s{T} offen sc1
KP_end:
    s_endpgm
"""
    return txt

def const_table():
    tab = [[OW + v if v >= 0 else ZR for v in row] for row in wphi_table(-1)[:12]]
    rows = [[] for _ in range(12)]
    for l in range(64):
        m = l & 31; hhk = l >> 5; hd = (m >> 2) & 1; reg = (m & 3) + 4 * (m >> 3)
        r0 = reg + 4 * hd; r1 = ((0 if hd else 16) + reg) if reg < 4 else 20
        rows[0].append(KVL + hd * 1680 + r0 * 16 if hd == hhk else ZR)
        rows[1].append(KVL + hd * 1680 + r1 * 16 if hd == hhk else ZR)
        rows[2].append(m * 16 + hhk * 1536); rows[3].append(m * 16 + hhk * 8)
        rows[4].append((l >> 4) * 512 + (l & 15) * 16)
        for u in range(3):
            idx = 64 * u + l; tok, j = divmod(idx, 10)
            rows[5 + u].append(tok * 1280 + j * 16 if idx < 160 else OOB)
            rows[8 + u].append(FT + tok * FT_S + j * 16)
        rows[11].append(FT + (l & 15) * FT_S + (l >> 4) * 8)
    return tab + rows

def gen(cfg, name):
    SLOW.clear(); SLEEP[0] = cfg['sleep']; FORCE_FB[0] = cfg.get('force_fb', 0)
    p = Prog()
    T = S_T
    p("s_cmp_ge_u32 s2, 256\ns_cbranch_scc1 KP_end")
    if cfg.get("stamps"):
        p.add(stamp(0)); p.add(stamp(1, True))
        for k in range(2, 8): p(f"s_mov_b32 s{S_STAMP+2*k}, 0")
    if cfg.get("codepf"):
        p(f"s_getpc_b64 s[4:5]\nK1_pf:\ns_mov_b32 s6, CODE_END-K1_pf\ns_mov_b32 s7, 0x20000\ns_lshr_b32 s8, s2, 3\ns_lshl_b32 s8, s8, 12\nv_lshlrev_b32 v1, 4, v0")
        p("buffer_load_dwordx4 a[252:255], v1, s[4:7], s8 offen")
    p(f"s_load_dwordx4 s[28:31], s[0:1], {KA_X}")
    p(f"s_load_dwordx4 s[32:35], s[0:1], {KA_WG}")
    p(f"s_load_dwordx2 s[36:37], s[0:1], {KA_WS}")
    p(f"s_load_dwordx2 s[60:61], s[0:1], {KA_WO}\ns_load_dwordx2 s[62:63], s[0:1], {KA_WD}")
    p(f"v_lshrrev_b32 v1, 6, v0\nv_and_b32 v0, 63, v0\nv_readfirstlane_b32 s{S_W}, v1")
    p(f"s_and_b32 s{T}, s2, 7\ns_lshr_b32 s{T+1}, s2, 3")
    p(f"s_and_b32 s{T+2}, s{T}, 1\ns_lshl_b32 s{T+2}, s{T+2}, 3\ns_and_b32 s{T+3}, s{T+1}, 7\ns_add_u32 s{S_RB}, s{T+2}, s{T+3}")
    p(f"s_lshr_b32 s{T+4}, s{T+1}, 3")
    p(f"s_mul_i32 s{T+5}, s{T+3}, {cfg['rot_a']}\ns_mul_i32 s{T+6}, s{T+4}, {cfg['rot_b']}\ns_add_u32 s{T+5}, s{T+5}, s{T+6}")
    if cfg["rot_c"] or cfg["rot_d"]:
        p(f"s_and_b32 s{T+6}, s{T}, 1\ns_mul_i32 s{T+6}, s{T+6}, {cfg['rot_c']}\ns_add_u32 s{T+5}, s{T+5}, s{T+6}\ns_lshr_b32 s{T+6}, s{T}, 1\ns_mul_i32 s{T+6}, s{T+6}, {cfg['rot_d']}\ns_add_u32 s{T+5}, s{T+5}, s{T+6}")
    p(f"s_lshr_b32 s{S_ROT}, s{T+5}, 3\ns_mul_i32 s{T+5}, s{S_ROT}, 205\ns_lshr_b32 s{T+5}, s{T+5}, 11\ns_mul_i32 s{T+5}, s{T+5}, 10\ns_sub_u32 s{S_ROT}, s{S_ROT}, s{T+5}")
    p(f"s_and_b32 s{T+5}, s{T}, 6\ns_and_b32 s{T+6}, s{T+4}, 1\ns_add_u32 s{S_GP}, s{T+5}, s{T+6}")
    p(f"s_and_b32 s{S_GRP}, s{T+4}, 2\ns_lshl_b32 s{S_GRP}, s{S_GRP}, 2\ns_add_u32 s{S_GRP}, s{S_GRP}, s{S_GP}")
    p(f"s_lshl_b32 s{S_TG}, s{S_RB}, 2\ns_add_u32 s{S_TG}, s{S_TG}, s{S_W}")
    p(f"s_lshl_b32 s{S_LW4}, s{S_W}, 12\ns_mul_i32 s{S_LW}, s{S_W}, 5120")
    p(f"s_mul_i32 s{S_BEG+3}, s{S_TG}, 40960\ns_add_u32 s{S_END+3}, s{S_BEG+3}, 1280")
    p(f"s_lshl_b32 s{S_SO+3}, s{S_ROT}, 7\ns_add_u32 s{S_SO+3}, s{S_SO+3}, s{S_BEG+3}\ns_add_u32 s{S_X2}, s{S_SO+3}, {16*1280-2048}")
    p("v_lshrrev_b32 v1, 3, v0\nv_and_b32 v2, 7, v0\nv_lshrrev_b32 v4, 4, v0\nv_xor_b32 v4, v2, v4\nv_mul_u32_u24 v5, 1280, v1")
    p(f"v_lshl_add_u32 v{V_DX}, v4, 4, v5\nv_xor_b32 v4, 4, v4\nv_lshl_add_u32 v4, v4, 4, v5\nv_add_u32 v{V_DX+1}, {8*1280-1024}, v4")
    p("v_bfe_u32 v3, v0, 4, 1\nv_lshlrev_b32 v3, 2, v3\nv_xor_b32 v2, v2, v3\nv_lshlrev_b32 v2, 4, v2")
    p(f"v_mul_u32_u24 v3, 3456, v1\nv_add_u32 v{V_DG}, v3, v2\nv_add_u32 v{V_DG+1}, {8*3456-1024}, v{V_DG}")
    p(f"v_mul_u32_u24 v3, 3840, v1\nv_add_u32 v{V_DQ}, v3, v2\nv_add_u32 v{V_DQ+1}, {8*3840-1024}, v{V_DQ}")
    p(f"v_lshrrev_b32 v6, 5, v0\nv_mul_u32_u24 v6, 1280, v6\nv_and_b32 v7, 31, v0\nv_lshl_add_u32 v8, v7, 4, v6\nv_lshl_add_u32 v9, v7, 3, v6")
    p(f"s_lshl_b32 s64, s{S_RB}, 4\ns_add_u32 s64, s64, s{S_GRP}\ns_lshl_b32 s64, s64, 2\ns_add_u32 s64, s64, s{S_W}\ns_mul_i32 s65, s64, 2560")
    p(f"s_xor_b32 s67, s2, 128\ns_lshr_b32 s68, s67, 1\ns_cmp_lt_u32 s{T+4}, 2\ns_mov_b32 s69, 65536\ns_cselect_b32 s69, 110592, s69")
    p(f"s_cmp_lt_u32 s68, 20\ns_cselect_b32 s{T+5}, 0, 20\ns_sub_u32 s{T+5}, s68, s{T+5}\ns_lshl_b32 s{T+5}, s{T+5}, 2\ns_add_u32 s{T+5}, s{T+5}, s{S_W}\ns_mul_i32 s{T+5}, s{T+5}, 10240")
    p(f"s_and_b32 s{T+6}, s67, 1\ns_mul_i32 s{T+6}, s{T+6}, 640\ns_add_u32 s{T+5}, s{T+5}, s{T+6}\ns_add_u32 s{T+6}, s69, s{S_LW}")
    st(p, cfg, "ka0")
    p("s_waitcnt lgkmcnt(0)")
    st(p, cfg, "ka")
    srd(p, S_X, 28, X_SZ)
    p(f"buffer_load_dwordx4 v[16:19], v8, s[{S_X}:{S_X+3}], s65 offen", tag="sx")
    p(f"buffer_load_dwordx4 v[20:23], v8, s[{S_X}:{S_X+3}], s65 offen offset:512", tag="sx")
    p(f"buffer_load_dwordx2 v[24:25], v9, s[{S_X}:{S_X+3}], s65 offen offset:1024", tag="sx")
    p(f"s_cmp_lt_u32 s68, 20\ns_cselect_b32 s{S_RP}, s60, s62\ns_cselect_b32 s{S_RP+1}, s61, s63\ns_mov_b32 s{S_RP+2}, {WD_SZ}\ns_cselect_b32 s{S_RP+2}, {WO_SZ}, s{S_RP+2}\ns_mov_b32 s{S_RP+3}, 0x20000")
    p(f"s_mov_b32 s63, s{T+5}\ns_mov_b32 s78, s{T+6}")
    rpk = [[I(f"s_add_u32 m0, s78, {896*c}"), I(f"buffer_load_dwordx4 v{V_DX}, s[{S_RP}:{S_RP+3}], s63 offen offset:{128*c} lds", tag="rpk")] for c in range(5)]
    srd(p, S_G, 32, WG_SZ); srd(p, S_U, 34, WG_SZ, -2048); srd(p, S_QA, 30, WQKV_SZ); srd(p, S_QB, 30, WQKV_SZ, 128 - 2048)
    def setpass(q, pi, pitch, colreg):
        q(f"s_mul_i32 s{S_BEG+pi}, s{S_W}, {16*pitch}\ns_add_u32 s{S_BEG+pi}, s{S_BEG+pi}, s{colreg}\ns_add_u32 s{S_END+pi}, s{S_BEG+pi}, {640*pitch}")
        q(f"s_mul_i32 s{S_SO+pi}, s{S_ROT}, {64*pitch}\ns_add_u32 s{S_SO+pi}, s{S_SO+pi}, s{S_BEG+pi}")
    def hstore(q, k, lreg):
        q(f"s_mul_i32 s{S_ST+k}, s{S_TG}, {216*512}\ns_lshl_b32 s{T+9}, s{lreg}, 12\ns_add_u32 s{S_ST+k}, s{S_ST+k}, s{T+9}\ns_add_u32 s{S_ST+k}, s{S_ST+k}, {HF}")
    def common_pre(q, rdbase, nsets, xring, kv):
        srd(q, S_WS, 36, WS_TOTAL)
        q(f"s_add_u32 s36, s36, {FLAGS+F_E}\ns_addc_u32 s37, s37, 0\ns_load_dword s{S_TAG}, s[36:37], 0")
        q(f"s_load_dwordx2 s[28:29], s[0:1], {KA_WPHI}\ns_load_dwordx2 s[30:31], s[0:1], {KA_OUT}")
        q(f"v_lshlrev_b32 v{V_L16}, 4, v0")
        q("v_and_b32 v1, 1, v0\nv_bfe_u32 v2, v0, 1, 1\nv_lshl_add_u32 v1, v1, 1, v2")
        q("v_bfe_u32 v2, v0, 4, 1\nv_lshl_add_u32 v1, v2, 2, v1\nv_lshlrev_b32 v1, 3, v1")
        q("v_bfe_u32 v2, v0, 2, 2\nv_lshrrev_b32 v3, 5, v0\nv_lshl_add_u32 v3, v3, 3, v2")
        q(f"v_lshl_add_u32 v4, v3, 7, v1\nv_bfe_u32 v5, v0, 3, 1\nv_lshl_add_u32 v4, v5, 6, v4\nv_add_u32 v{rdbase}, s{S_LW4}, v4")
        for j in range(4):
            for h in range(2):
                if j or h: q(f"v_xor_b32 v{rdbase+2*j+h}, {4096*j + 64*h}, v{rdbase}")
        if nsets == 2:
            for k in range(8): q(f"v_add_u32 v{rdbase+8+k}, 65536, v{rdbase+k}")
        if kv:
            q("v_mul_u32_u24 v4, 320, v3\nv_add_u32 v4, v4, v1")
            for j in range(4):
                q(f"s_xor_b32 s{T}, s{S_W}, {j}\ns_mul_i32 s{T}, s{T}, 5120\nv_add_u32 v{V_R5+j}, s{T}, v4")
        q(f"v_and_b32 v1, 31, v0\nv_lshrrev_b32 v2, 5, v0\nv_lshl_add_u32 v2, s{S_W}, 1, v2\nv_bfe_u32 v3, v0, 1, 3\nv_xor_b32 v2, v2, v3")
        q(f"v_lshlrev_b32 v2, 4, v2\nv_lshl_add_u32 v2, v1, 7, v2\nv_add_u32 v{V_XR}, s{S_LX}, v2")
        for j in range(1, 4): q(f"v_xor_b32 v{V_XR+j}, {32*j}, v{V_XR}")
        q(f"v_mov_b32 v{V_ONE}, 0x3f803f80\nv_and_b32 v1, 15, v0\nv_lshrrev_b32 v2, 4, v0\nv_lshlrev_b32 v2, 2, v2\nv_cmp_eq_u32 vcc, v1, v2")
        for k in range(4): q(f"v_cndmask_b32 v{V_SEL+k}, 0, v{V_ONE}, vcc")
        q(f"v_add_u32 v{V_CSR}, {CSX}, v{V_L16}\nv_lshl_add_u32 v{V_CSW}, s{S_W}, 2, v{V_CSR}")
    def ct_stage(q, typ):
        q(f"s_getpc_b64 s[32:33]\nKC_pc{typ}:\ns_add_u32 s32, s32, KC_tab-KC_pc{typ}\ns_addc_u32 s33, s33, 0\ns_mov_b32 s34, 6144\ns_mov_b32 s35, 0x20000")
        q(f"s_lshl_b32 s{T}, s{S_W}, 10\ns_add_u32 m0, s{T}, {CT}\ns_add_u32 s{T+1}, s{T}, 4096")
        q(f"buffer_load_dwordx4 v{V_L16}, s[32:35], s{T} offen lds")
        q(f"s_add_u32 m0, s{T}, {CT+4096}\ns_nop 0\nbuffer_load_dwordx4 v{V_L16}, s[32:35], s{T+1} offen lds")
        srd(q, 32, 28, WPHI_SZ)
        q(f"s_and_b32 s{T+5}, s2, 7\ns_lshl_b32 s{T+5}, s{T+5}, 1\ns_bfe_u32 s{T+1}, s2, 0x10003\ns_add_u32 s{T+5}, s{T+5}, s{T+1}")
        q(f"s_and_b32 s{T}, s{T}, 1024\ns_mul_i32 s{T+1}, s{T+5}, 1600\ns_add_u32 s{T+1}, s{T+1}, s{T}\ns_add_u32 m0, s{T}, {OW}")
        q(f"s_nop 0\nbuffer_load_dwordx4 v{V_L16}, s[32:35], s{T+1} offen lds")
        q(f"s_mul_i32 s{S_TAG}, s{S_TAG}, 0x9E3779B1\ns_add_u32 s{S_TAG}, s{S_TAG}, 0x7F4A7C15\ns_mov_b32 s{S_SPIN}, {cfg['spin']}")
        q(f"s_lshr_b32 s{T}, s2, 5\ns_mul_i32 s{S_PW}, s{T}, {80*128}\ns_add_u32 s{S_PW}, s{S_PW}, {FLAGS+F_W}")
        wflag_addr(q, 1, 2, T); q(f"v_accvgpr_write_b32 a{A_PW}, v1")
        q(f"s_lshl_b32 s{S_FS}, s2, 2\ns_add_u32 s{S_FS}, s{S_FS}, {FLAGS+F_S}\ns_cmp_eq_u32 s{S_W}, 0\ns_cselect_b32 s{S_FS}, s{S_FS}, {OOB}")
        q(f"s_lshr_b32 s{T}, s2, 4\ns_lshl_b32 s{T}, s{T}, 2\ns_add_u32 s{T}, s{T}, s{S_W}")
        q(f"s_lshl_b32 s{S_PQ}, s{T}, 7\ns_add_u32 s{S_PQ}, s{S_PQ}, {FLAGS+F_Q}")
        q(f"s_mul_i32 s{S_A}, s{T}, 40960\ns_mul_i32 s{T+1}, s{T+5}, 2560\ns_add_u32 s{S_A}, s{S_A}, s{T+1}\ns_add_u32 s{S_A}, s{S_A}, {QF}")
        q(f"s_lshr_b32 s{S_FO}, s{T}, 1\ns_lshl_b32 s{S_FO}, s{S_FO}, 4\ns_add_u32 s{S_FO}, s{S_FO}, s{T+5}\ns_lshl_b32 s{S_FO}, s{S_FO}, 7")
        q(f"s_and_b32 s{T}, s{S_W}, 1\ns_lshl_b32 s{T}, s{T}, 2\ns_add_u32 s{T}, s{T}, {FLAGS}\ns_add_u32 s{S_FO}, s{S_FO}, s{T}\ns_add_u32 s{S_FO}, s{S_FO}, {F_O}")
        q(f"s_mul_i32 s{S_KVB}, s{T+5}, {16*KVP_STRIDE}\ns_add_u32 s{S_KVB}, s{S_KVB}, {KVP}\ns_lshl_b32 s{S_PKV}, s{T+5}, 10\ns_add_u32 s{S_PKV}, s{S_PKV}, {FLAGS+F_KV}")
        q(f"s_lshr_b32 s{S_FHE}, s{S_TG}, 1\ns_lshl_b32 s{S_FHE}, s{S_FHE}, 4\ns_add_u32 s{S_FHE}, s{S_FHE}, s{S_GRP}\ns_lshl_b32 s{S_FHE}, s{S_FHE}, 7\ns_add_u32 s{S_FHE}, s{S_FHE}, s{T}\ns_add_u32 s{S_FHE}, s{S_FHE}, {F_HE}")
    def shadow(E):
        q = Prog()
        q(f"v_mov_b32 v{E}, s{S_TAG}\nv_mov_b32 v{E+1}, {OOB}\nv_cmp_eq_u32 vcc, 0, v0\nv_mov_b32 v26, 0\nv_mov_b32 v27, 0\nv_cndmask_b32 v{E+1}, v{E+1}, v0, vcc")
        q(f"v_and_b32 v7, 31, v0\nv_lshlrev_b32 v{E+2}, 3, v7\nv_lshrrev_b32 v6, 2, v0\nv_mov_b32 v8, {OOB}\nv_cmp_eq_u32 vcc, 0, v7\nv_cndmask_b32 v8, v8, v6, vcc")
        q("v_lshrrev_b32 v1, 4, v0\nv_mul_u32_u24 v1, 5120, v1\nv_bfe_u32 v2, v0, 2, 2\nv_lshl_add_u32 v1, v2, 7, v1\nv_bfe_u32 v2, v0, 3, 1\nv_bfe_u32 v3, v0, 1, 1\nv_xor_b32 v2, v2, v3")
        q("v_lshl_add_u32 v1, v2, 4, v1\nv_and_b32 v2, 1, v0\nv_lshl_add_u32 v1, v2, 3, v1")
        q(f"s_mul_i32 s{T}, s{S_W}, 5")
        for nt in range(5):
            q(f"s_and_b32 s{T+1}, s{T}, 3\ns_lshl_b32 s{T+1}, s{T+1}, 5\nv_xor_b32 v{E+4+2*nt}, s{T+1}, v1\ns_lshr_b32 s{T+1}, s{T}, 2\ns_lshl_b32 s{T+1}, s{T+1}, 10\ns_add_u32 s{T+1}, s{T+1}, s69")
            q(f"v_add_u32 v{E+4+2*nt}, s{T+1}, v{E+4+2*nt}\nv_xor_b32 v{E+5+2*nt}, 32, v{E+4+2*nt}\ns_add_u32 s{T}, s{T}, 1")
        q(f"s_and_b32 s{T}, s67, 1\ns_lshl_b32 s{T}, s{T}, 2\ns_add_u32 s{T}, s{T}, s{S_W}")
        q(f"s_mul_i32 s29, s{T}, 80\ns_add_u32 s29, s29, s68\ns_lshl_b32 s29, s29, 7\ns_add_u32 s29, s29, {FLAGS+F_W}")
        q(f"s_mul_i32 s{T}, s{T}, 74\ns_add_u32 s{T}, s{T}, s68\ns_mul_i32 s{T}, s{T}, 5120\ns_add_u32 s{T}, s{T}, {W2P}")
        q(f"s_cmp_lt_u32 s67, 148\ns_cselect_b32 s{T}, s{T}, {OOB}\ns_cselect_b32 s29, s29, {OOB}\ns_add_u32 s{T+1}, s{T}, 4096")
        q(f"s_lshl_b32 s69, s64, 4\ns_add_u32 s69, s69, {FLAGS+F_ST}\ns_lshl_b32 s67, s{S_TG}, 8\ns_add_u32 s67, s67, {FLAGS+F_ST}")
        q(f"s_lshr_b32 s68, s2, 5\ns_bfe_u32 s64, s2, 0x20003")
        q(f"s_mul_i32 s{S_RL}, s64, {cfg['rl'][1]}\ns_mul_i32 s{S_NE}, s68, {cfg['rl'][0]}\ns_add_u32 s{S_RL}, s{S_RL}, s{S_NE}\ns_and_b32 s{S_RL}, s{S_RL}, 7")
        q(f"s_mul_i32 s{S_RO}, s64, {cfg['ro'][1]}\ns_mul_i32 s{S_NE}, s68, {cfg['ro'][0]}\ns_add_u32 s{S_RO}, s{S_RO}, s{S_NE}\ns_mul_i32 s{S_NE}, s{S_RO}, 52\ns_lshr_b32 s{S_NE}, s{S_NE}, 8\ns_mul_i32 s{S_NE}, s{S_NE}, 5\ns_sub_u32 s{S_RO}, s{S_RO}, s{S_NE}")
        q(f"s_mul_i32 s{S_RE}, s64, {cfg['re'][1]}\ns_mul_i32 s{S_NE}, s68, {cfg['re'][0]}\ns_add_u32 s{S_RE}, s{S_RE}, s{S_NE}\ns_mul_i32 s{S_NE}, s{S_RE}, 43\ns_lshr_b32 s{S_NE}, s{S_NE}, 8\ns_mul_i32 s{S_NE}, s{S_NE}, 6")
        q(f"s_sub_u32 s64, s{S_RE}, s{S_NE}\ns_and_b32 s{S_RE}, s{S_RE}, 3\ns_cmp_lt_u32 s{S_W}, 3\ns_cselect_b32 s{S_RE}, s64, s{S_RE}\ns_cselect_b32 s{S_NE}, 6, 4")
        wbases(q, 68)
        qa = q; q = Prog()
        q.wait(vm="sx")
        for r in range(16, 26): q(f"v_dot2c_f32_bf16 v26, v{r}, v{V_ONE}\nv_dot2c_f32_bf16 v27, v{r}, v{r}")
        for sh in (8, 4, 2, 1):
            for a in (26, 27): q(f"v_add_f32_dpp v{a}, v{a}, v{a} row_ror:{sh} row_mask:0xf bank_mask:0xf")
        q("v_mov_b32 v12, v26\nv_mov_b32 v13, v27\nv_permlane16_swap_b32 v26, v12\nv_permlane16_swap_b32 v27, v13\nv_add_f32 v26, v26, v12\nv_add_f32 v27, v27, v13")
        q(f"v_mul_f32 v26, {fx(-1/640)}, v26\nv_mul_f32 v27, {fx(1/640)}, v27\nv_fma_f32 v27, -v26, v26, v27\nv_max_f32 v27, 0, v27")
        q(f"v_cvt_pk_bf16_f32 v27, v27, v27\nv_lshlrev_b32 v27, 16, v27\nv_add_f32 v27, {fx(1e-5)}, v27\nv_cvt_pk_bf16_f32 v27, v27, v27\nv_lshlrev_b32 v27, 16, v27")
        q(f"v_sqrt_f32 v27, v27\nv_cvt_pk_bf16_f32 v26, v26, v27\nv_mov_b32 v27, s{S_TAG}")
        q(f"buffer_store_dwordx2 v[26:27], v8, s[{S_WS}:{S_WS+3}], s69 offen sc1")
        qb = q; q = Prog()
        for nt in range(5):
            for i in range(2): q(f"ds_read_b64_tr_b16 v[{E+16+4*nt+2*i}:{E+17+4*nt+2*i}], v{E+4+2*nt+i} offset:{512*i}", tag=("rr", nt))
        for nt in range(5):
            q.wait(lgkm=("rr", nt))
            q(f"buffer_store_dwordx4 v[{E+16+4*nt}:{E+19+4*nt}], v{V_L16}, s[{S_WS}:{S_WS+3}], s{T if nt < 4 else T+1} offen offset:{1024*(nt&3)} sc1", tag="rs")
        rb = cfg["rp_bar"]
        return qa.ins, qb.ins, [(("bar", rb, -1), ("bar", rb, 0), [mkwait(vm="rpk")]), (("bar", rb, 1), ("bar", rb, cfg["rp_len"]), q.ins)]
    def stat_fill(typ, E):
        k = cfg["st_k"]; regs = (V_S1, E + 2, E)
        return [(k, k + 1, [poll_load("st" + typ, 67, 2, regs)]), (k + cfg["poll_k"], k + cfg["poll_k"] + 3, poll_check("st" + typ, 67, 2, regs=regs) + mk(stats_final(), cfg))]
    def ghosts(q):
        q.add(ghost("vld", "sx"))
    def sync_fill(typ, k0):
        a, b, c = wpoll(typ); pk = cfg["poll_k"]
        kq = cfg["qpoll_kv"] if typ == "k" else cfg["qpoll_gq"]
        ks = cfg["kv_samp"]
        return [(41, 44, mk(sync_setup(typ, cfg), cfg)), (k0, k0 + 1, a), (k0 + pk, k0 + pk + 1, b + mk(c, cfg)), (kq, kq + 1, [poll_load("q" + typ, S_PQ)]),
                (kq + pk, kq + pk + 1, poll_check("q" + typ, S_PQ) + mk([kvflag_addr(V_PA)], cfg)),
                (("end", -ks), ("end", -ks + 2), [poll_load("kv" + typ, S_PKV)]), (("end", -1), ("end", 0), sample_check("kv" + typ, 1, (S_KVB,)))]
    p(f"s_cmp_lt_u32 s{T+4}, 2\ns_cbranch_scc1 K1_kv")
    p(f"s_add_u32 s{S_LX}, s{S_LW4}, {XRING_GQ}")
    p(f"s_cmp_lt_u32 s{S_GP}, 5\ns_cbranch_scc1 K1_q")
    head = p
    SG, SQ = 64 * 3456, 64 * 3840
    RDG = 64
    nsl, sb = cfg["nsl"], cfg["sb"]
    p = Prog(); p.ins = list(head.ins)
    p(f"s_lshl_b32 s{T+7}, s{S_GP}, 1\ns_sub_u32 s{T+7}, s{T+7}, 5\ns_lshl_b32 s{T+1}, s{T+7}, 7"); setpass(p, 0, 3456, T + 1)
    pre = Prog(); common_pre(pre, RDG, 2, XRING_GQ, False)
    hstore(pre, 0, T + 7)
    for pi, src, inc in ((1, T + 7, 1), (2, S_GP, 19)):
        pre(f"s_add_u32 s{T+7}, s{src}, {inc}\ns_lshl_b32 s{T+1}, s{T+7}, 7"); setpass(pre, pi, 3456, T + 1); hstore(pre, pi, T + 7)
    pre("s_waitcnt lgkmcnt(0)"); ct_stage(pre, "g")
    passes = [Pass("gu", a, S_G, S_U, V_DG, SG, RDG) for a in (ACCA, ACCB, ACCA)]
    f = std_fillers(passes, [[(("m", ("passend", 1), -3), None, epi_gu(ACCA, S_ST, V_T))], [(("m", ("csbar", 2), 0), None, epi_gu(ACCB, S_ST + 1, V_T))]], cfg)
    kw = cfg["wpoll_gq"]
    sha, shb, shc = shadow(ACCB)
    emit_main(p, passes, 16384, nsl, sb, 10, f + tail_fill(passes, cfg) + sync_fill("g", kw) + stat_fill("g", ACCB) + shc, dict(cfg, pre=pre.ins + sha + shb, slot_head=[0, 1, 2, 3] * 2, slot_free=cfg["rp_bar"] + 1, pubs=[("rs", [flag_store(29, ACCB, ACCB + 1)])], wpf_start=kw + cfg["poll_k"] + 1, wl_start=kw + cfg["poll_k"] + 1, extra_dma={cfg["rp_after"]: rpk, cfg["wl_after"]: wstage(12), cfg["wl_after"] + 2: wstage(13)}))
    p("s_branch KP_join")
    txt = finalize(p.ins, True)
    p = Prog(); p.label("K1_q"); ghosts(p)
    p(f"s_lshl_b32 s{T+1}, s{S_GP}, 8"); setpass(p, 0, 3840, T + 1)
    pre = Prog()
    common_pre(pre, RDG, 2, XRING_GQ, False)
    pre(f"s_mul_i32 s72, s{S_TG}, 40960\ns_lshl_b32 s{T+9}, s{S_GP}, 13\ns_add_u32 s72, s72, s{T+9}\ns_add_u32 s72, s72, {QF}\ns_add_u32 s73, s72, 4096")
    pre(f"s_mov_b32 s{T+7}, s{S_GP}")
    for pi, inc in ((1, 0), (2, 19)):
        pre(f"s_add_u32 s{T+7}, s{T+7}, {inc}\ns_lshl_b32 s{T+1}, s{T+7}, 7"); setpass(pre, pi, 3456, T + 1); hstore(pre, pi, T + 7)
    pre("s_waitcnt lgkmcnt(0)"); ct_stage(pre, "q")
    pre(f"s_lshl_b32 s74, s{S_TG}, 5\ns_add_u32 s74, s74, s{S_GP}\ns_lshl_b32 s74, s74, 2\ns_add_u32 s74, s74, {FLAGS+F_Q}")
    sha, shb, shc = shadow(ACCB)
    passes = [Pass("q", ACCA, S_QA, S_QB, V_DQ, SQ, RDG), Pass("gu", ACCB, S_G, S_U, V_DG, SG, RDG), Pass("gu", ACCA, S_G, S_U, V_DG, SG, RDG)]
    f = std_fillers(passes, [[(cfg["q_end"], None, epi_q(ACCA, 72, V_T))], [(("m", ("csbar", 2), 0), None, epi_gu(ACCB, S_ST + 1, V_T))]], cfg)
    emit_main(p, passes, 16384, nsl, sb, 10, f + tail_fill(passes, cfg) + sync_fill("q", kw) + stat_fill("q", ACCB) + shc,
              dict(cfg, pre=pre.ins + sha + shb, slot_head=[0, 1, 2, 3] * 2, slot_free=cfg["rp_bar"] + 1, extra_dma={cfg["rp_after"]: rpk, cfg["wl_after"]: wstage(12), cfg["wl_after"] + 2: wstage(13)},
                   wpf_start=kw + cfg["poll_k"] + 1, wl_start=kw + cfg["poll_k"] + 1,
                   pubs=[("qst", [flag_store(74)]), ("rs", [flag_store(29, ACCB, ACCB + 1)])], pub_before_poll=1))
    p("s_branch KP_join")
    txt += finalize(p.ins, True)
    RDK = 192
    p = Prog(); p.label("K1_kv"); ghosts(p)
    p(f"s_add_u32 s{S_LX}, s{S_LW4}, {XRING_KV}")
    p(f"s_mul_i32 s{T+1}, s{S_GP}, 160\ns_add_u32 s{T+1}, s{T+1}, 1280"); setpass(p, 0, 3840, T + 1)
    p(f"s_movk_i32 s{T}, 3277")
    for i in range(5):
        p(f"v_add_u32 v1, {64*i}, v0\nv_mul_u32_u24 v2, s{T}, v1\nv_lshrrev_b32 v2, 16, v2")
        p("v_mul_u32_u24 v3, 20, v2\nv_sub_u32 v3, v1, v3")
        p("v_cmp_lt_u32 vcc, 9, v3\nv_mul_u32_u24 v2, 3840, v2\nv_lshl_add_u32 v2, v3, 4, v2")
        p(f"v_add_u32 v3, {1280-160}, v2\nv_cndmask_b32 v2, v2, v3, vcc")
        p(f"v_subrev_u32 v{V_D5[i]}, {1024*(i&3)}, v2")
    pre = Prog()
    common_pre(pre, RDK, 1, XRING_KV, True)
    pre(f"s_add_u32 s{T+7}, s{S_GP}, 11\ns_lshl_b32 s{T+1}, s{T+7}, 7"); setpass(pre, 1, 3456, T + 1); hstore(pre, 2, T + 7)
    VA_PW, VA_VW, VA_A, VA_B, VA_S1, VA_S3 = 221, 222, 223, 214, 215, 255
    pre(f"v_mov_b32 v2, 0\nv_mov_b32 v3, 0\nv_mov_b32 v1, {WPH+WPH_ZERO}\nds_write_b64 v1, v[2:3]")
    pre(f"v_and_b32 v1, 31, v0\nv_lshl_add_u32 v1, s{S_W}, 5, v1\nv_lshrrev_b32 v4, 5, v0")
    pre(f"v_mul_u32_u24 v5, {VL_S}, v1\nv_add_u32 v5, {VL}, v5\nv_lshl_add_u32 v{VA_VW}, v4, 4, v5")
    pre(f"v_mul_u32_u24 v5, {PHI_S}, v1\nv_mul_u32_u24 v6, 80, v4\nv_add_u32 v5, v5, v6\nv_add_u32 v{VA_PW}, {PHI}, v5")
    pre("v_bfe_u32 v1, v0, 2, 2\nv_lshlrev_b32 v1, 2, v1\nv_lshl_add_u32 v1, v4, 1, v1")
    pre("v_and_b32 v2, 1, v0\nv_bfe_u32 v3, v0, 1, 1\nv_lshl_add_u32 v2, v2, 1, v3\nv_bfe_u32 v3, v0, 4, 1\nv_lshl_add_u32 v2, v3, 2, v2")
    pre(f"v_mul_u32_u24 v5, {PHI_S}, v1\nv_lshl_add_u32 v5, v2, 3, v5\ns_mul_i32 s{T+2}, s{S_W}, 80\ns_add_u32 s{T+2}, s{T+2}, {PHI}\nv_add_u32 v{VA_A}, s{T+2}, v5")
    pre("v_and_b32 v2, 3, v0\nv_lshl_add_u32 v2, v3, 2, v2")
    pre(f"s_mul_i32 s{T+2}, s{S_W}, 40\nv_lshlrev_b32 v5, 3, v2\nv_add_u32 v5, s{T+2}, v5\nv_cmp_gt_u32 vcc, 5, v2\nv_mov_b32 v6, 160\nv_cndmask_b32 v5, v6, v5, vcc")
    pre(f"v_mul_u32_u24 v6, {VL_S}, v1\nv_add_u32 v5, v5, v6\nv_add_u32 v{VA_B}, {VL}, v5")
    pre(f"v_and_b32 v1, 31, v0\nv_mul_u32_u24 v2, 21, v4\nv_add_u32 v2, v2, v1\nv_lshlrev_b32 v2, 4, v2\nv_mov_b32 v3, {OOB}")
    pre(f"v_cmp_gt_u32 vcc, 21, v1\nv_cndmask_b32 v{VA_S1}, v3, v2, vcc\nv_cmp_gt_u32 vcc, 21, v0\nv_cndmask_b32 v{VA_S3}, v3, v2, vcc")
    pre(f"s_lshr_b32 s{T+2}, s{S_W}, 1\ns_lshl_b32 s{T+3}, s{S_GP}, 1\ns_add_u32 s{T+2}, s{T+2}, s{T+3}\ns_lshl_b32 s{T+2}, s{T+2}, 4\ns_add_u32 s{T+2}, s{T+2}, s{S_RB}")
    pre(f"s_mul_i32 s{T+2}, s{T+2}, {KVP_STRIDE}\ns_and_b32 s{T+3}, s{S_W}, 1\ns_mul_i32 s{T+3}, s{T+3}, 1680\ns_add_u32 s{T+2}, s{T+2}, s{T+3}\ns_add_u32 s{S_ST+5}, s{T+2}, {KVP}")
    pre(f"s_getpc_b64 s[60:61]\nK1_pc:\ns_add_u32 s60, s60, K1_tab-K1_pc+2048\ns_addc_u32 s61, s61, 0")
    pre(f"s_mul_i32 s{T+2}, s{S_GP}, 3200\ns_lshl_b32 s{T+3}, s{S_W}, 10\ns_add_u32 s{T+2}, s{T+2}, s{T+3}\ns_add_u32 s{T+3}, s{T+3}, {WPH}")
    pre(f"s_lshl_b32 s74, s{S_GP}, 1\ns_lshr_b32 s{T}, s{S_W}, 1\ns_add_u32 s74, s74, s{T}\ns_lshl_b32 s74, s74, 3\ns_lshr_b32 s{T}, s{S_RB}, 1\ns_add_u32 s74, s74, s{T}\ns_lshl_b32 s74, s74, 7")
    pre(f"s_and_b32 s{T}, s{S_RB}, 1\ns_lshl_b32 s{T}, s{T}, 1\ns_and_b32 s{T+1}, s{S_W}, 1\ns_add_u32 s{T}, s{T}, s{T+1}\ns_lshl_b32 s{T}, s{T}, 2\ns_add_u32 s74, s74, s{T}\ns_add_u32 s74, s74, {FLAGS+F_KV}")
    pre("s_waitcnt lgkmcnt(0)"); ct_stage(pre, "k")
    fa = [I(f"global_load_dwordx4 v[{V_T+4*i}:{V_T+4*i+3}], v{V_L16}, s[60:61] offset:{1024*i-2048}", tag="tab") for i in range(6)]
    fb = [I(f"s_mov_b32 m0, s{T+3}"), I(f"buffer_load_dwordx4 v{V_L16}, s[32:35], s{T+2} offen lds", tag="tab")]
    f1 = []
    for k in range(24):
        f1.append(f"v_add_u32 v{V_T+k}, {WPH}, v{V_T+k}")
        f1.append(I(f"ds_read_b64_tr_b16 a[{160+2*k}:{161+2*k}], v{V_T+k}", tag="wp"))
    KP = V_T; K0 = 64
    a = []
    for b in range(5):
        for e in range(8): a.append(f"v_mul_f32 v{K0+8*b+e}, v{V_RL}, v{K0+8*b+e}")
        for e in range(4): a.append(f"v_cvt_pk_bf16_f32 v{KP+4*b+e}, v{K0+8*b+2*e}, v{K0+8*b+2*e+1}")
    for tau in range(2):
        for s in range(3):
            w = 160 + 4 * ((0 * 3 + s) * 2 + tau); d = K0 + 16 * tau
            a.append(f"v_mfma_f32_32x32x16_bf16 v[{d}:{d+15}], a[{w}:{w+3}], v[{KP+4*s}:{KP+4*s+3}], " + ("0" if s == 0 else f"v[{d}:{d+15}]"))
    a.append(f"v_mov_b32 v{K0+36}, 0x3f80\nv_mov_b32 v{K0+37}, 0\nv_lshrrev_b32 v{K0+38}, 5, v{V_L16}\nv_and_b32 v{K0+38}, 16, v{K0+38}\nv_sub_u32 v{K0+38}, v{VA_VW}, v{K0+38}")
    a.append(I(f"ds_write_b64 v{K0+38}, v[{K0+36}:{K0+37}] offset:160", tag="vw"))
    for b in range(5):
        o = K0 + 40 + 8 * b
        for e in range(8): a.append(f"v_mul_f32 v{o+e}, v{V_R}, v{o+e}")
        for e in range(4): a.append(f"v_cvt_pk_bf16_f32 v{o+e}, v{o+2*e}, v{o+2*e+1}")
        a.append(I(f"ds_write_b128 v{VA_VW}, v[{o}:{o+3}] offset:{32*b}", tag="vw"))
    a.append(mkwait(lgkm="vw"))
    for tau in range(2):
        for s in range(3):
            w = 160 + 4 * ((1 * 3 + s) * 2 + tau); d = K0 + 32 + 16 * tau
            a.append(f"v_mfma_f32_32x32x16_bf16 v[{d}:{d+15}], a[{w}:{w+3}], v[{KP+8+4*s}:{KP+8+4*s+3}], " + ("0" if s == 0 else f"v[{d}:{d+15}]"))
    a1 = a; a = []
    EP = [K0 + r for r in list(range(64, 80)) + [20, 21, 22, 23]]
    for P in range(2):
        sm = softmax_pair(list(range(K0 + 32 * P, K0 + 32 * P + 20)), EP, KP, [K0 + r for r in (24, 25, 26, 27, 28, 29)])
        cnt = 0
        for s_ in sm:
            a.append(s_)
            if s_.startswith("v_cvt_pk"):
                cnt += 1
                if cnt % 4 == 0:
                    ch = cnt // 4 - 1
                    a.append(f"ds_write_b128 v{VA_PW}, v[{KP+4*ch}:{KP+4*ch+3}] offset:{160*P + 16*ch}")
    bq = []
    def kvreads(kp):
        r = []; base = K0 + 32 + 12 * (kp & 1)
        for i in range(2): r.append(I(f"ds_read_b64_tr_b16 v[{base+8+2*i}:{base+9+2*i}], v{VA_B} offset:{kp*16*VL_S + i*VL_S}", tag=("kv", kp)))
        for tau in range(2):
            for i in range(2): r.append(I(f"ds_read_b64_tr_b16 v[{base+4*tau+2*i}:{base+4*tau+2*i+1}], v{VA_A} offset:{kp*16*PHI_S + i*PHI_S + tau*64}", tag=("kv", kp)))
        return r
    bq += kvreads(0)
    for kp in range(8):
        if kp + 1 < 8: bq += kvreads(kp + 1)
        bq.append(mkwait(lgkm=("kv", kp)))
        base = K0 + 32 + 12 * (kp & 1)
        for tau in range(2):
            d = K0 + 16 * tau
            bq.append(f"v_mfma_f32_32x32x16_bf16 v[{d}:{d+15}], v[{base+4*tau}:{base+4*tau+3}], v[{base+8}:{base+11}], " + ("0" if kp == 0 else f"v[{d}:{d+15}]"))
    bq2 = []
    for ch in range(3):
        for e in range(4): bq2.append(f"v_cvt_pk_bf16_f32 v{K0+64+4*ch+e}, v{K0+8*ch+2*e}, v{K0+8*ch+2*e+1}")
        bq2.append(I(f"buffer_store_dwordx4 v[{K0+64+4*ch}:{K0+67+4*ch}], v{VA_S1 if ch < 2 else VA_S3}, s[{S_WS}:{S_WS+3}], s{S_ST+5} offen offset:{672*ch} sc1", tag="kvs"))
    passes = [Pass("kv", K0, S_QA, S_QA, V_D5, SQ, V_R5), Pass("gu", ACCA, S_G, S_U, V_DG, SG, RDK)]
    sha, shb, shc = shadow(28)
    kb = cfg["kv_bar"]; kw = cfg["wpoll_kv"]; ka = cfg["kv_a1"]
    assert kw + cfg["poll_k"] + 1 > ka
    f = std_fillers(passes, [[(ka, ka, a1), (("bar", kb, 0), ("bar", kb, 1), a), (("bar", kb, cfg["kv_bq"]), ("bar", kb, cfg["kv_bq"] + 2), bq), (("bar", kb, cfg["kv_bq"] + 6), None, bq2)]], cfg)
    f += [(("bar", 8, -2), ("bar", 8, 0), [mkwait(vm="tab")]), (("bar", 8, 1), 37, mk(f1, cfg))]
    emit_main(p, passes, 20480, 3, 1, 8, f + tail_fill(passes, cfg) + sync_fill("k", kw) + stat_fill("k", 28) + shc,
              dict(cfg, pre=pre.ins + sha + shb, cs_gaps=cfg["cs_gaps_kv"], extra_dma={cfg["rp_after"]: rpk, 5: [[x] for x in fa[:3]], 6: [[x] for x in fa[3:]], cfg["rp_bar"] + 4: [fb], 19: wstage(12) + wstage(13)}, wl_start=("bar", kb + 2, 1),
                   wpf_start=kw + cfg["poll_k"] + 1, wgap=cfg["wgap_kv"], pub_delay=cfg["pub_delay_kv"], pubs=[("kvs", [flag_store(74)]), ("rs", [flag_store(29, 28, 29)])]))
    txt += finalize(p.ins, True)
    txt += common(cfg)
    txt += "".join(SLOW)
    tab = wphi_table(WPH_ZERO)
    txt += ".p2align 6\n.type K1_tab,@object\nK1_tab:\n"
    for g in range(6):
        for l in range(64):
            txt += "  .long " + ", ".join(str(tab[4 * g + e][l]) for e in range(4)) + "\n"
    tab = const_table()
    txt += ".type KC_tab,@object\nKC_tab:\n"
    for g in range(6):
        for l in range(64):
            txt += "  .long " + ", ".join(str(tab[4 * g + e][l]) for e in range(4)) + "\n"
    return kernel_text(name, txt, 256, 256, 102)

CFG = dict(pro_pieces=16, lb=7, quiet=2, wait_every=4, nsl=6, sb=2, depth0=3, depth=5, dgap0=2, dgap=3,
           rot_a=20, rot_b=20, stflag="sc1", kv_bar=16, kv_a1=48, kv_bq=14, stagger=1, tail_b=1, cs_gaps=7, cs_gaps_kv=4,
           q_end=60, wl_after=17, pub0=36, st_k=28, rp_after=2, rp_bar=4, rp_len=9, fast_until=2, rot_c=10, rot_d=5, rl=(1, 2), ro=(1, 1), re=(1, 3), rkv=1, wburst=1,
           cap=25, dma_cost=10, dma_last=0, codepf=1, spin=20000, sleep=4, poll_k=4, wpoll_gq=44, wpoll_kv=44, wgap=2, wgap_kv=2,
           pub_delay=60, pub_delay_kv=30, qpoll_gq=100, qpoll_kv=68, kv_samp=14,
           bg_gap=70, bg_gap2=50, he_pub=50, he_samp=60, early_pre=4, fo_step=4, hl_step=6, late_burst=8, o_poll=10, p2_rate=5,
           wm_at=[1, 2, 5, 6, 7, 8, 9])
```

```python
import sys
from common import *
import os, importlib
kp = importlib.import_module(os.environ.get('KMOD', 'kq'))
KN = "recurrent_scan__linear_kernel_hedgehog__glu_gated_geglu__prompt_kernel"
cfg = dict(kp.CFG)
for a in sys.argv[2:]:
    k, v = a.split("=", 1); cfg[k] = eval(v)
t, d = kp.gen(cfg, KN)
import re
nt = cfg.get("nt", "")
def addnt(line):
    if not line.lstrip().startswith("buffer_load"): return line
    cls = None
    if "s[24:27]" in line: cls = "x" if line.rstrip().endswith("lds") else "s"
    elif ("s[4:7]" in line or "s[8:11]" in line) and line.rstrip().endswith("lds"): cls = "g"
    elif ("s[12:15]" in line or "s[16:19]" in line) and line.rstrip().endswith("lds"): cls = "q"
    elif "s[96:99]" in line: cls = "r"
    if cls and cls in nt:
        return line[:-3] + "nt lds" if line.endswith("lds") else line + " nt"
    return line
t = "\n".join(addnt(l) for l in t.split("\n"))
hdr = f"""; generated by gen/buildp.py : one persistent kernel, one workgroup per CU
; @launch grid=(256,1,1) block=(256,1,1) lds={kp.LDS_TOTAL}
.amdgcn_target "amdgcn-amd-amdhsa--gfx950"
"""
open(sys.argv[1], "w").write(hdr + t + "CODE_END:\n" + d)
```

```python
import sys
from common import *
import os, importlib
kp = importlib.import_module(os.environ.get('KMOD', 'kq'))
KN = "recurrent_scan__linear_kernel_hedgehog__glu_gated_geglu__prompt_kernel"
cfg = dict(kp.CFG)
for a in sys.argv[2:]:
    k, v = a.split("=", 1); cfg[k] = eval(v)
t, d = kp.gen(cfg, KN)
import re
nt = cfg.get("nt", "")
def addnt(line):
    if not line.lstrip().startswith("buffer_load"): return line
    cls = None
    if "s[24:27]" in line: cls = "x" if line.rstrip().endswith("lds") else "s"
    elif ("s[4:7]" in line or "s[8:11]" in line) and line.rstrip().endswith("lds"): cls = "g"
    elif ("s[12:15]" in line or "s[16:19]" in line) and line.rstrip().endswith("lds"): cls = "q"
    elif "s[96:99]" in line: cls = "r"
    if cls and cls in nt:
        return line[:-3] + "nt lds" if line.endswith("lds") else line + " nt"
    return line
t = "\n".join(addnt(l) for l in t.split("\n"))
hdr = f"""; generated by gen/buildp.py : one persistent kernel, one workgroup per CU
; @launch grid=(256,1,1) block=(256,1,1) lds={kp.LDS_TOTAL}
.amdgcn_target "amdgcn-amd-amdhsa--gfx950"
"""
full = hdr + t + "CODE_END:\n" + d
if cfg.get("align"):
    import alignfix
    full, n = alignfix.fix(full, cfg["align"]); print("widened", n)
open(sys.argv[1], "w").write(full)
```
